```python
import torch

def _softmax(x, axis=-1):
    return torch.softmax(x, dim=axis)

def _gelu(x):
    return torch.nn.functional.gelu(x, approximate='tanh')

def _silu(x):
    return torch.nn.functional.silu(x)

def _sigmoid(x):
    return torch.sigmoid(x)

def _layernorm(x, axis=-1, eps=1e-05):
    m = x.mean(dim=axis, keepdim=True)
    v = x.var(dim=axis, keepdim=True, unbiased=False)
    return (x - m) / torch.sqrt(v + eps)

def _scatter_add(tgt, idx, src, axis=0):
    return tgt.clone().index_add_(axis, idx, src)

def _segment_sum(src, seg, n):
    out = torch.zeros((n,) + src.shape[1:], dtype=src.dtype)
    return out.index_add_(0, seg, src)

def _pad(x, pw):
    flat = tuple((v for pair in reversed(pw) for v in pair))
    return torch.nn.functional.pad(x, flat)
kernel_name = 'sequential_preLN__ssm_conv_s4d__mixer_gmlp__prompt'

def setup_inputs():

    _w = lambda a: (lambda t: t.to(torch.bfloat16) if t.is_floating_point() else t)(torch.as_tensor(a))

    def _A_setup():
        Bsz, L, D, N = (1, 2048, 640, 192)
        return {'u': _w((lambda *s: torch.randn(*s, dtype=torch.bfloat16) * 0.05)(Bsz, L, D)), 'log_A_real': _w((lambda *s: torch.randn(*s, dtype=torch.bfloat16) * 6.4)(D, N) * 0.5), 'A_imag': _w((lambda *s: torch.randn(*s, dtype=torch.bfloat16) * 0.05)(D, N) * 3.14), 'C_real': _w((lambda *s: torch.randn(*s, dtype=torch.bfloat16) * 0.05)(D, N) / N ** 0.5), 'C_imag': _w((lambda *s: torch.randn(*s, dtype=torch.bfloat16) * 0.05)(D, N) / N ** 0.5), 'log_dt': _w((lambda *s: torch.randn(*s, dtype=torch.bfloat16) * 0.05)(D) * 0.5 - 4.0), 'D_skip': _w((lambda *s: torch.randn(*s, dtype=torch.bfloat16) * 0.05)(D))}
    _A_in = _A_setup()

    def _B_setup():
        B, S, D, F = (1, 2048, 640, 1536)
        Fh = F // 2
        return {'x': _w((lambda *s: torch.randn(*s, dtype=torch.bfloat16) * 0.05)(B, S, D)), 'w_in': _w((lambda *s: torch.randn(*s, dtype=torch.bfloat16) * 0.4)(D, 2 * Fh)), 'w_sp': _w(0.01 * (lambda *s: torch.randn(*s, dtype=torch.bfloat16) * 0.4)(S, S)), 'b_sp': _w(1.0 + 0.01 * (lambda *s: torch.randn(*s, dtype=torch.bfloat16) * 0.05)(S)), 'w_out': _w((lambda *s: torch.randn(*s, dtype=torch.bfloat16) * 0.05)(Fh, D))}
    _B_in = _B_setup()
    return {'A_u': _A_in['u'], 'A_log_A_real': _A_in['log_A_real'], 'A_A_imag': _A_in['A_imag'], 'A_C_real': _A_in['C_real'], 'A_C_imag': _A_in['C_imag'], 'A_log_dt': _A_in['log_dt'], 'A_D_skip': _A_in['D_skip'], 'B_x': _B_in['x'], 'B_w_in': _B_in['w_in'], 'B_w_sp': _B_in['w_sp'], 'B_b_sp': _B_in['b_sp'], 'B_w_out': _B_in['w_out']}

def reference(A_u, A_log_A_real, A_A_imag, A_C_real, A_C_imag, A_log_dt, A_D_skip, B_x, B_w_in, B_w_sp, B_b_sp, B_w_out):

    def _A_ref(u, log_A_real, A_imag, C_real, C_imag, log_dt, D_skip):
        L = u.shape[1]
        dt = torch.exp(log_dt)
        A = -torch.exp(log_A_real) + 1j * A_imag
        C = (C_real + 1j * C_imag) * dt[:, None]
        pos = (lambda x, dt: x.to(dt))(torch.arange(L), log_dt.dtype)
        P = torch.exp((A * dt[:, None])[:, :, None] * pos[None, None, :])
        K = 2.0 * torch.einsum('dn,dnl->dl', C, P).real
        L2 = 2 * L
        u_t = (lambda x, *d: x.permute(*d))(u, 0, 2, 1)
        Kf = (lambda x, *a, **k: torch.fft.rfft(x.float(), *a, **k))(K, L2)
        Uf = (lambda x, *a, **k: torch.fft.rfft(x.float(), *a, **k))(u_t, L2)
        y = (lambda x, *a, **k: torch.fft.irfft(x, *a, **k).to(torch.bfloat16))(Uf * Kf[None, :, :], L2)[:, :, :L]
        y = (lambda x, *d: x.permute(*d))(y, 0, 2, 1)
        return y + u * D_skip[None, None, :]

    def _B_ref(x, w_in, w_sp, b_sp, w_out):
        B, S, D = x.shape
        F = w_in.shape[-1]
        Fh = F // 2
        z = _gelu(torch.einsum('bsd,df->bsf', x, w_in))
        z1 = z[..., :Fh].clone()
        z2 = _layernorm(z[..., Fh:], axis=-1)
        g = torch.einsum('ts,bsf->btf', w_sp, z2) + b_sp[None, :, None]
        return torch.einsum('bsf,fd->bsd', z1 * g, w_out)
    x = A_u
    h = x + _A_ref(_layernorm(x, axis=-1), A_log_A_real, A_A_imag, A_C_real, A_C_imag, A_log_dt, A_D_skip)
    h2 = h + _B_ref(_layernorm(h, axis=-1), B_w_in, B_w_sp, B_b_sp, B_w_out)
    return h2
```

```python
import re

TRANS = ("v_exp_f32", "v_log_f32", "v_rcp_f32", "v_rsq_f32", "v_sqrt_f32", "v_sin_f32", "v_cos_f32", "v_rcp_iflag_f32")

def _regs(tok):
    tok = tok.strip()
    tok = re.sub(r"^-|^abs\(|\)$|^\||\|$", "", tok)
    tok = tok.lstrip("-").replace("abs(", "").replace(")", "").replace("|", "")
    m = re.fullmatch(r"([vsa])(\d+)", tok)
    if m: return {tok}
    m = re.fullmatch(r"([vsa])\[(\d+):(\d+)\]", tok)
    if m: return {f"{m.group(1)}{i}" for i in range(int(m.group(2)), int(m.group(3)) + 1)}
    if tok in ("vcc", "vcc_lo", "vcc_hi"): return {"vcc"}
    if tok in ("exec", "exec_lo", "exec_hi"): return {"exec"}
    if tok == "m0": return {"m0"}
    return set()

class Ins:
    def __init__(self, text):
        self.text = text
        t = text.split(";")[0].strip()
        self.label = t.endswith(":")
        self.directive = t.startswith(".")
        self.mn = ""
        self.dst = set(); self.src = set()
        self.srcAB = set(); self.srcC = set()
        if self.label or self.directive or not t:
            return
        parts = t.split(None, 1)
        mn = self.mn = parts[0]
        rest = parts[1] if len(parts) > 1 else ""
        ops = []; depth = 0; cur = ""
        for ch in rest:
            if ch == "[": depth += 1
            if ch == "]": depth -= 1
            if ch == "," and depth == 0: ops.append(cur); cur = ""
            else: cur += ch
        if cur.strip(): ops.append(cur)
        ops = [o.strip() for o in ops]
        mods = ""
        if ops:
            last = ops[-1].split(None, 1)
            ops[-1] = last[0]
            mods = last[1] if len(last) > 1 else ""
        self.ops = ops; self.mods = mods
        R = [_regs(o) for o in ops]
        self.valu = mn.startswith("v_") and not mn.startswith("v_mfma")
        self.mfma = mn.startswith("v_mfma")
        self.salu = mn.startswith("s_") and not mn.startswith(("s_load", "s_waitcnt", "s_nop", "s_barrier", "s_branch", "s_cbranch", "s_endpgm", "s_sleep", "s_memtime", "s_memrealtime", "s_setprio", "s_buffer_load"))
        self.ds = mn.startswith("ds_")
        self.vmem = mn.startswith(("buffer_", "global_", "flat_"))
        self.trans = mn.replace("_e32", "").replace("_e64", "") in TRANS
        self.dpp = ("row_" in mods or "quad_perm" in mods or "wave_" in mods or "_dpp" in mn)
        self.lds_dma = self.vmem and (re.search(r"\blds\b", mods) is not None or "load_lds" in mn)
        un = lambda l: set().union(*l) if l else set()
        if self.mfma:
            self.dst = R[0]; self.srcAB = R[1] | R[2]; self.srcC = R[3]; self.src = self.srcAB | self.srcC
            self.passes = 8 if "32x32" in mn else 4
        elif self.valu:
            if mn.startswith("v_cmp"):
                self.dst = R[0]; self.src = un(R[1:])
                if mn.startswith("v_cmpx"): self.dst |= {"exec"}
            elif mn.startswith(("v_add_co", "v_sub_co", "v_subrev_co", "v_addc_co", "v_subb_co", "v_mad_u64", "v_div_scale")):
                self.dst = R[0] | R[1]; self.src = un(R[2:])
            elif mn.startswith("v_permlane") and "swap" in mn:
                self.dst = R[0] | R[1]; self.src = R[0] | R[1]
            elif mn.startswith("v_swap"):
                self.dst = R[0] | R[1]; self.src = R[0] | R[1]
            else:
                self.dst = R[0]; self.src = un(R[1:])
                if mn.startswith(("v_fmac", "v_pk_fmac", "v_dot2c", "v_writelane")) or self.dpp: self.src |= R[0]
        elif self.ds:
            if mn.startswith(("ds_read", "ds_bpermute", "ds_permute", "ds_swizzle")):
                self.dst = R[0]; self.src = un(R[1:])
            else:
                self.src = un(R)
            if "addtid" in mn: self.src |= {"m0"}
        elif self.vmem:
            if self.lds_dma:
                self.src = un(R) | {"m0"}
            elif "load" in mn:
                self.dst = R[0]; self.src = un(R[1:])
            else:
                self.src = un(R)
                self.store_data = R[0] if mn.startswith("buffer_") else R[1]
                self.wide = mn.endswith(("x3", "x4"))
        elif mn.startswith("s_"):
            if mn.startswith(("s_cmp", "s_cbranch", "s_branch", "s_waitcnt", "s_nop", "s_barrier", "s_endpgm", "s_sleep", "s_setprio", "s_bitcmp")):
                self.src = un(R)
            else:
                self.dst = R[0] if R else set(); self.src = un(R[1:])
                if "saveexec" in mn: self.dst |= {"exec"}; self.src |= {"exec"}

    def states(self):
        if self.label or self.directive or not self.mn: return 0
        if self.mn == "s_nop": return int(self.ops[0], 0) + 1
        return 1

def need(p, c):
    n = 0
    vd = {r for r in p.dst if r[0] in "va" and r != "vcc"}
    sd = {r for r in p.dst if r[0] == "s" or r == "vcc"}
    if p.valu:
        if p.trans and c.valu and not c.trans and (vd & c.src): n = max(n, 1)
        if p.trans and (c.mfma) and (vd & c.src): n = max(n, 2)
        if c.mfma and (vd & c.src): n = max(n, 2)
        if c.valu and c.dpp and (vd & c.src): n = max(n, 2)
        if c.valu and c.mn.startswith("v_permlane") and (vd & c.src): n = max(n, 2)
        if c.valu and c.mn.startswith(("v_readlane", "v_readfirstlane")) and (vd & c.src): n = max(n, 1)
        if sd:
            if c.valu and (sd & c.src):
                n = max(n, 4 if c.mn.startswith(("v_readlane", "v_writelane")) else 2)
            if c.valu and "vcc" in sd and c.mn.startswith(("v_cndmask", "v_addc", "v_subb")): n = max(n, 2)
            if c.vmem and (sd & c.src): n = max(n, 5)
            if (c.salu or c.mn.startswith(("s_load", "s_cbranch_vcc"))) and ((sd & c.src) or (c.mn.startswith("s_cbranch_vcc") and "vcc" in sd)): n = max(n, 1)
        if "exec" in p.dst:
            if c.valu and c.dpp: n = max(n, 5)
            if c.mfma or (c.valu and c.mn.startswith(("v_readlane", "v_readfirstlane", "v_writelane", "v_permlane"))): n = max(n, 4)
        if "op_sel" in p.mods and not p.mn.startswith("v_pk") and c.valu and (vd & (c.src | c.dst)): n = max(n, 1)
        if p.mn.startswith("v_dot"):
            if (c.valu or c.mfma or c.ds or c.vmem) and (vd & (c.src | c.dst)):
                same = c.mn == p.mn and len(c.ops) > 3 and not (vd & (_regs(c.ops[1]) | _regs(c.ops[2])))
                if not same: n = max(n, 3)
    if p.mfma:
        ps = p.passes
        if c.mfma:
            if vd & c.srcAB: n = max(n, {4: 8, 8: 12}[ps])
            if vd & c.srcC and not (c.srcC == vd and c.passes == ps): n = max(n, {4: 6, 8: 10}[ps])
            if (vd & c.dst) and not (c.srcC == vd): n = max(n, {4: 8, 8: 12}[ps])
        elif (c.valu or c.ds or c.vmem) and (vd & (c.src | c.dst)): n = max(n, {4: 8, 8: 12}[ps])
        if c.valu and (p.srcC & c.dst): n = max(n, {4: 3, 8: 7}[ps])
    if p.salu and "m0" in p.dst and (c.lds_dma or (c.ds and "addtid" in c.mn)): n = max(n, 1)
    if p.vmem and getattr(p, "wide", False) and (p.store_data & c.dst): n = max(n, 2 if c.valu else 1)
    return n

class Asm:
    def __init__(self):
        self.lines = []
    def __call__(self, s):
        for l in s.split("\n"):
            l = l.strip()
            if l: self.lines.append(l)
    def pad(self):
        out = []
        hist = []
        for l in self.lines:
            i = Ins(l)
            if i.label or i.directive or not i.mn:
                out.append(i); continue
            req = 0; dist = 0
            for p in reversed(hist):
                r = need(p, i) - dist
                req = max(req, r)
                dist += p.states()
                if dist > 20: break
            if req > 0:
                nop = Ins(f"s_nop {req - 1}")
                out.append(nop); hist.append(nop)
            out.append(i); hist.append(i)
            hist = hist[-24:]
        return "\n".join((x.text if (x.label or x.directive) else "    " + x.text) for x in out) + "\n"
```

```python
import numpy as np
from layout import *

def P(r): return f"v[{r}:{r+1}]"
def Q(r): return f"v[{r}:{r+3}]"

class Cnt:
    def __init__(self, a, name, mx): self.a = a; self.name = name; self.mx = mx; self.q = []
    def issue(self, tag, n=1): self.q.extend([tag] * n)
    def wait(self, tags):
        last = max((i for i, t in enumerate(self.q) if t in tags), default=-1)
        if last < 0: return
        n = min(len(self.q) - 1 - last, self.mx)
        self.a(f"s_waitcnt {self.name}({n})")
        del self.q[:len(self.q) - n]
    def all(self):
        self.a(f"s_waitcnt {self.name}(0)"); self.q = []

def entry(a, name, stamp, nextlabel):
    a(f"{name}_kernel:")
    if stamp: a("s_memrealtime s[90:91]")
    a(f"""
    s_cmp_ge_u32 s2, 256
    s_cbranch_scc1 {name.upper()}_END
    s_load_dwordx8 s[32:39], s[0:1], 64
    s_load_dwordx2 s[30:31], s[0:1], 96
    s_load_dwordx2 s[42:43], s[0:1], 112
    v_and_b32 v1, 63, v0
    v_lshrrev_b32 v2, 6, v0
    s_and_b32 s6, s2, 7
    s_lshr_b32 s7, s2, 3
    v_readfirstlane_b32 s8, v2
    s_lshl_b32 s6, s6, 2
    s_lshr_b32 s9, s7, 3
    s_add_u32 s6, s6, s9
    s_and_b32 s7, s7, 7
    v_and_b32 v2, 15, v1
    v_lshrrev_b32 v3, 4, v1
    s_lshr_b32 s10, s8, 1
    s_and_b32 s11, s8, 1
    """)

def srd(a, r, base, off, nbytes):
    if off:
        a(f"s_add_u32 s{r}, s{base}, {off}\ns_addc_u32 s{r+1}, s{base+1}, 0")
    else:
        a(f"s_mov_b32 s{r}, s{base}\ns_mov_b32 s{r+1}, s{base+1}")
    a(f"s_mov_b32 s{r+2}, {nbytes}\ns_mov_b32 s{r+3}, 0x20000")

def allred_g(a, regs, tmp):
    for swap in ("v_permlane32_swap_b32", "v_permlane16_swap_b32"):
        for k, r in enumerate(regs): a(f"v_mov_b32 v{tmp+k}, v{r}")
        for k, r in enumerate(regs): a(f"{swap} v{r}, v{tmp+k}")
        for k, r in enumerate(regs): a(f"v_add_f32 v{r}, v{r}, v{tmp+k}")

def ln_finish(a, s, q, n, t):
    a(f"v_mul_f32 v{s}, {fhex(1/n)}, v{s}")
    a(f"v_mul_f32 v{t}, v{s}, v{s}")
    a(f"v_mul_f32 v{q}, {fhex(1/n)}, v{q}")
    a(f"v_sub_f32 v{q}, v{q}, v{t}")
    a(f"v_max_f32 v{q}, 0, v{q}")
    a(f"v_cvt_pk_bf16_f32 v{q}, 0, v{q}")
    a(f"v_add_f32 v{q}, {fhex(1e-5)}, v{q}")
    a(f"v_cvt_pk_bf16_f32 v{q}, 0, v{q}")
    a(f"v_sqrt_f32 v{q}, v{q}")
    a(f"v_cvt_pk_bf16_f32 v{s}, 0, v{s}")
    a(f"v_cvt_pk_bf16_f32 v{q}, 0, v{q}")
    a(f"v_rcp_f32 v{q}, v{q}")

K3_NS = 5
K3_RING = 81920
K3_TR = K3_RING + K3_NS * 12288
K3_LDS = K3_TR + 4 * 32 * 112
K3_VGPR = 168

def gen_k3(a, stamp=False):
    entry(a, "k3", stamp, None)
    vm = Cnt(a, "vmcnt", 63); lg = Cnt(a, "lgkmcnt", 15)
    a(f"""
    v_lshrrev_b32 v9, 3, v1
    v_and_b32 v10, 7, v1
    v_and_b32 v11, 6, v9
    v_xor_b32 v10, v10, v11
    s_lshl_b32 s12, s8, 4
    v_add_u32 v9, s12, v9
    v_lshlrev_b32 v9, 12, v9
    v_lshl_add_u32 v4, v10, 4, v9
    s_lshl_b32 s12, s6, 7
    v_add_u32 v4, s12, v4
    v_add_u32 v5, {8*4096 - 1024}, v4
    s_mul_i32 s12, s8, {16*3072}
    s_mul_i32 s13, s7, 192
    s_add_u32 s12, s12, s13
    """)
    for e in range(3):
        a(f"""
        v_add_u32 v9, {64*e}, v1
        v_mul_u32_u24 v10, 43691, v9
        v_lshrrev_b32 v10, 19, v10
        v_mul_u32_u24 v11, 12, v10
        v_sub_u32 v9, v9, v11
        v_lshrrev_b32 v11, 1, v10
        v_and_b32 v11, 2, v11
        v_xor_b32 v9, v9, v11
        v_mul_u32_u24 v10, 3072, v10
        v_lshl_add_u32 v9, v9, 4, v10
        v_add_u32 v{6+e}, s12, v9
        """)
        if e: a(f"v_subrev_u32 v{6+e}, {1024*e}, v{6+e}")
    a("s_lshl_b32 s14, s8, 11")
    a(f"s_mul_i32 s15, s8, 3072\ns_add_u32 s15, s15, {K3_RING}")
    a("s_waitcnt lgkmcnt(0)")
    srd(a, 16, 42, WS_HT, 640 * 4096)
    srd(a, 20, 32, 0, 640 * 3072)
    def dma(i):
        if i >= 20: return
        if i < 10:
            a(f"s_add_u32 m0, s14, {8192*i}")
            a(f"s_mov_b32 s24, {64*4096*i}")
            a("buffer_load_dwordx4 v4, s[16:19], s24 offen lds")
            a("buffer_load_dwordx4 v5, s[16:19], s24 offen offset:1024 lds")
            vm.issue(i, 2)
        a(f"s_add_u32 m0, s15, {12288*(i % K3_NS)}")
        a(f"s_mov_b32 s25, {64*3072*(i % 10) + (1536 if i < 10 else 0)}")
        for e in range(3):
            a(f"buffer_load_dwordx4 v{6+e}, s[20:23], s25 offen offset:{1024*e} lds")
        vm.issue(i, 3)
    for i in range(K3_NS): dma(i)
    CS = lambda ph, nt: 24 + 12*ph + 4*nt
    a(f"""
    s_mul_i32 s12, s7, 384
    s_mul_i32 s13, s11, 192
    s_add_u32 s12, s12, s13
    s_add_u32 s12, s12, {WS_CSUM}
    v_lshl_add_u32 v9, v3, 4, s12
    """)
    for ph in range(2):
        for nt in range(3):
            a(f"global_load_dwordx4 {Q(CS(ph, nt))}, v9, s[42:43] offset:{(3072 if ph == 0 else 0) + 64*nt}")
            vm.issue("cs")
    a(f"""
    v_lshrrev_b32 v9, 2, v2
    v_lshl_add_u32 v9, v3, 2, v9
    v_lshrrev_b32 v10, 1, v9
    v_and_b32 v10, 3, v10
    v_and_b32 v11, 3, v2
    v_lshlrev_b32 v11, 3, v11
    s_lshl_b32 s12, s10, 1
    v_xor_b32 v12, s12, v10
    v_xor_b32 v13, 1, v12
    v_lshl_add_u32 v19, v9, 7, v11
    v_lshl_add_u32 v12, v12, 5, v19
    v_lshl_add_u32 v13, v13, 5, v19
    v_add_u32 v14, 40960, v12
    v_add_u32 v15, 40960, v13
    v_mul_u32_u24 v19, 192, v9
    v_add_u32 v19, v19, v11
    v_add_u32 v19, {K3_RING}, v19
    v_and_b32 v10, 1, v3
    s_mul_i32 s12, s11, 3
    """)
    for nt in range(3):
        a(f"s_add_u32 s13, s12, {nt}\nv_xor_b32 v11, s13, v10\nv_lshl_add_u32 v{16+nt}, v11, 5, v19")
    ST = 20
    for r in range(4): a(f"v_mov_b32 v{ST+r}, 0")
    a("s_mov_b32 s26, 0x3f803f80")
    ACC = lambda ph, mt, nt: 48 + 24*ph + 12*mt + 4*nt
    FH = lambda b, mt: 96 + 20*b + 4*mt
    FW = lambda b, nt: 104 + 20*b + 4*nt
    def reads(j):
        st = j >> 1; b = j & 1; kk = j % 20
        r = []
        ho = kk * 4096
        hb = 12
        if ho >= 40960: ho -= 40960; hb = 14
        wo = 12288 * (st % K3_NS) + (j & 1) * 6144
        for mt in range(2):
            for h in range(2): r.append(f"ds_read_b64_tr_b16 {P(FH(b, mt) + 2*h)}, v{hb+mt} offset:{ho + 2048*h}")
        for nt in range(3):
            for h in range(2): r.append(f"ds_read_b64_tr_b16 {P(FW(b, nt) + 2*h)}, v{16+nt} offset:{wo + 3072*h}")
        return r
    TMP = 136
    def gelu_tile(acc, cs, mr):
        t = TMP
        for h in (0, 2): a(f"v_pk_fma_f32 {P(acc+h)}, {P(cs+h)}, {P(mr)}, {P(acc+h)} op_sel:[0,0,0] op_sel_hi:[1,0,1] neg_lo:[1,0,0] neg_hi:[1,0,0]")
        for h in (0, 2): a(f"v_pk_mul_f32 {P(acc+h)}, {P(acc+h)}, {P(mr)} op_sel:[0,1] op_sel_hi:[1,1]")
        for r in range(4): a(f"v_cvt_pk_bf16_f32 v{acc+r}, 0, v{acc+r}")
        for h in (0, 2): a(f"v_pk_mul_f32 {P(t+h)}, {P(acc+h)}, {P(acc+h)}")
        for h in (0, 2): a(f"v_pk_fma_f32 {P(t+h)}, {P(t+h)}, v[144:145], v[144:145] op_sel:[0,1,0] op_sel_hi:[1,1,0]")
        for h in (0, 2): a(f"v_pk_mul_f32 {P(t+h)}, {P(t+h)}, {P(acc+h)}")
        for r in range(4): a(f"v_exp_f32 v{t+r}, v{t+r}")
        for r in range(4): a(f"v_add_f32 v{t+r}, 1.0, v{t+r}")
        for r in range(4): a(f"v_rcp_f32 v{t+r}, v{t+r}")
        for h in (0, 2): a(f"v_pk_mul_f32 {P(acc+h)}, {P(acc+h)}, {P(t+h)}")
    a(f"v_mov_b32 v144, {fhex(-2.302208198)}\nv_mov_b32 v145, {fhex(-0.1029432397)}")
    MR = lambda mt: 146 + 2*mt
    vm.wait({0}); a("s_barrier")
    if stamp: a("s_memrealtime s[92:93]")
    for r in reads(0): a(r)
    for j in range(40):
        ph = j // 20; b = j & 1
        a("s_waitcnt lgkmcnt(0)")
        if b == 1 and j < 39:
            vm.wait({(j >> 1) + 1}); a("s_barrier"); dma((j >> 1) + K3_NS)
        nxt = reads(j + 1) if j < 39 else []
        extra = []
        if ph == 0:
            for mt in range(2):
                for r in range(4):
                    extra.append(f"v_dot2_f32_bf16 v{ST+mt}, v{FH(b, mt)+r}, s26, v{ST+mt}")
                    extra.append(f"v_dot2_f32_bf16 v{ST+2+mt}, v{FH(b, mt)+r}, v{FH(b, mt)+r}, v{ST+2+mt}")
        k = 0
        for mt in range(2):
            for nt in range(3):
                c = "0" if j % 20 == 0 else Q(ACC(ph, mt, nt))
                a(f"v_mfma_f32_16x16x32_bf16 {Q(ACC(ph, mt, nt))}, {Q(FW(b, nt))}, {Q(FH(b, mt))}, {c}")
                for r in nxt[2*k:2*k+2]: a(r)
                for r in extra[3*k:3*k+3]: a(r)
                k += 1
        if j == 19:
            if stamp: a("s_memrealtime s[94:95]")
            allred_g(a, [ST, ST+1, ST+2, ST+3], TMP)
            for mt in range(2):
                ln_finish(a, ST+mt, ST+2+mt, 640, TMP+mt)
                a(f"v_mov_b32 v{MR(mt)}, v{ST+mt}\nv_mov_b32 v{MR(mt)+1}, v{ST+2+mt}")
            vm.wait({"cs"})
            SQ = lambda mt: 150 + 4*mt
            for mt in range(2):
                for nt in range(3):
                    acc = ACC(0, mt, nt)
                    gelu_tile(acc, CS(0, nt), MR(mt))
                    for r in range(4): a(f"v_cvt_pk_bf16_f32 v{acc+r}, 0, v{acc+r}")
                    if nt == 0:
                        a(f"v_pk_add_f32 {P(SQ(mt))}, {P(acc)}, {P(acc+2)}")
                        a(f"v_pk_mul_f32 {P(SQ(mt)+2)}, {P(acc)}, {P(acc)}")
                        a(f"v_pk_fma_f32 {P(SQ(mt)+2)}, {P(acc+2)}, {P(acc+2)}, {P(SQ(mt)+2)}")
                    else:
                        for h in (0, 2):
                            a(f"v_pk_add_f32 {P(SQ(mt))}, {P(SQ(mt))}, {P(acc+h)}")
                            a(f"v_pk_fma_f32 {P(SQ(mt)+2)}, {P(acc+h)}, {P(acc+h)}, {P(SQ(mt)+2)}")
            for mt in range(2):
                a(f"v_add_f32 v{ST+2*mt}, v{SQ(mt)}, v{SQ(mt)+1}")
                a(f"v_add_f32 v{ST+2*mt+1}, v{SQ(mt)+2}, v{SQ(mt)+3}")
            allred_g(a, [ST, ST+1, ST+2, ST+3], TMP)
            a(f"""
            v_and_b32 v9, 16, v1
            v_cmp_eq_u32 vcc, 0, v9
            s_lshl_b32 s12, s6, 13
            s_lshl_b32 s13, s10, 8
            s_add_u32 s12, s12, s13
            s_add_u32 s12, s12, {WS_PST}
            v_cndmask_b32 v{ST}, v{ST+2}, v{ST}, vcc
            v_cndmask_b32 v{ST+1}, v{ST+3}, v{ST+1}, vcc
            v_max_f32 v{ST+1}, 0, v{ST+1}
            v_and_b32 v9, 31, v1
            v_lshl_add_u32 v9, v9, 3, s12
            s_lshl_b32 s13, s7, 1
            s_add_u32 s13, s13, s11
            s_lshl_b32 s13, s13, 9
            v_add_u32 v10, s13, v9
            s_mov_b32 exec_hi, 0
            global_store_dwordx2 v10, {P(ST)}, s[42:43] sc1
            s_mov_b32 exec_hi, -1
            v_lshrrev_b32 v10, 5, v1
            v_lshl_add_u32 v9, v10, 12, v9
            """)
            vm.issue("pst")
            if stamp: a("s_memrealtime s[96:97]")
    if stamp: a("s_memrealtime s[98:99]")
    G = 96
    def pst_loads():
        for k in range(8): a(f"global_load_dwordx2 {P(G + 2*k)}, v9, s[42:43] offset:{512*k} sc1")
    pst_loads()
    a(f"""
    s_lshl_b32 s12, s6, 3
    s_add_u32 s12, s12, s7
    s_mul_i32 s12, s12, 12288
    s_mul_i32 s13, s8, 3072
    s_add_u32 s12, s12, s13
    s_add_u32 s12, s12, {WS_Z1}
    v_lshl_add_u32 v10, v1, 4, s12
    """)
    for nt in range(3):
        o = 116 + 4*nt
        for mt in range(2):
            acc = ACC(1, mt, nt)
            gelu_tile(acc, CS(1, nt), MR(mt))
            a(f"v_cvt_pk_bf16_f32 v{o+2*mt}, v{acc}, v{acc+1}")
            a(f"v_cvt_pk_bf16_f32 v{o+2*mt+1}, v{acc+2}, v{acc+3}")
        a(f"global_store_dwordx4 v10, {Q(o)}, s[42:43] offset:{1024*nt}")
    a("s_mov_b32 s27, 0")
    a("s_waitcnt vmcnt(3)")
    a("K3_POLL:")
    a(f"v_max_u32 v11, v{G}, v{G+1}")
    for k in range(1, 8): a(f"v_max3_u32 v11, v11, v{G+2*k}, v{G+2*k+1}")
    a(f"""
    v_cmp_eq_u32 vcc, -1, v11
    s_add_u32 s27, s27, 1
    s_cbranch_vccz K3_READY
    s_cmp_ge_u32 s27, 0x40000
    s_cbranch_scc1 K3_READY
    s_sleep 1
    """)
    pst_loads()
    a("s_waitcnt vmcnt(0)\ns_branch K3_POLL\nK3_READY:")
    for k in (0, 2, 4, 6): a(f"v_pk_add_f32 {P(G+2*k)}, {P(G+2*k)}, {P(G+2*k+2)}")
    a(f"v_pk_add_f32 {P(G)}, {P(G)}, {P(G+4)}\nv_pk_add_f32 {P(G+8)}, {P(G+8)}, {P(G+12)}\nv_pk_add_f32 {P(G)}, {P(G)}, {P(G+8)}")
    a(f"""
    v_mov_b32 v{G+2}, v{G}
    v_mov_b32 v{G+3}, v{G+1}
    v_permlane32_swap_b32 v{G}, v{G+2}
    v_permlane32_swap_b32 v{G+1}, v{G+3}
    v_pk_add_f32 {P(G)}, {P(G)}, {P(G+2)}
    """)
    ln_finish(a, G, G+1, 768, G+4)
    a(f"""
    v_mov_b32 v{G+2}, v{G}
    v_mov_b32 v{G+3}, v{G+1}
    v_permlane16_swap_b32 v{G}, v{G+2}
    v_permlane16_swap_b32 v{G+1}, v{G+3}
    s_mul_i32 s12, s8, {32*112}
    s_add_u32 s12, s12, {K3_TR}
    v_mul_u32_u24 v11, 112, v2
    v_lshl_add_u32 v11, v3, 3, v11
    v_add_u32 v11, s12, v11
    v_lshrrev_b32 v12, 2, v2
    v_lshl_add_u32 v12, v3, 3, v12
    v_mul_u32_u24 v12, 112, v12
    v_and_b32 v13, 3, v2
    v_lshl_add_u32 v12, v13, 3, v12
    v_add_u32 v12, s12, v12
    s_lshl_b32 s12, s7, 5
    s_add_u32 s12, s12, s6
    s_mul_i32 s12, s12, 12288
    s_mul_i32 s13, s8, 3072
    s_add_u32 s12, s12, s13
    s_add_u32 s12, s12, {WS_Z2}
    v_lshl_add_u32 v10, v1, 4, s12
    """)
    for nt in range(3):
        for mt in range(2):
            acc = ACC(0, mt, nt); mr = G + 2*mt
            for h in (0, 2): a(f"v_pk_add_f32 {P(acc+h)}, {P(acc+h)}, {P(mr)} op_sel:[0,0] op_sel_hi:[1,0] neg_lo:[0,1] neg_hi:[0,1]")
            for r in range(4): a(f"v_cvt_pk_bf16_f32 v{acc+r}, 0, v{acc+r}")
            for h in (0, 2): a(f"v_pk_mul_f32 {P(acc+h)}, {P(acc+h)}, {P(mr)} op_sel:[0,1] op_sel_hi:[1,1]")
            a(f"v_cvt_pk_bf16_f32 v{acc}, v{acc}, v{acc+1}")
            a(f"v_cvt_pk_bf16_f32 v{acc+1}, v{acc+2}, v{acc+3}")
            a(f"ds_write_b64 v11, {P(acc)} offset:{16*112*mt + 32*nt}")
        for h in range(2):
            a(f"ds_read_b64_tr_b16 {P(72 + 4*nt + 2*h)}, v12 offset:{32*nt + 4*112*h}")
    for nt in range(3):
        a(f"s_waitcnt lgkmcnt({4*(2-nt)})")
        a(f"global_store_dwordx4 v10, {Q(72 + 4*nt)}, s[42:43] offset:{1024*nt}")
    if stamp: stamp_out(a, "K3", 1)
    a("K3_END:\ns_endpgm")

def decode_z1(v):
    v = v.reshape(32, 8, 2, 2, 3, 4, 16, 2, 4)
    return v.transpose(0, 2, 7, 6, 1, 3, 4, 5, 8).reshape(2048, 768)
def decode_z2(v):
    v = v.reshape(8, 32, 2, 6, 4, 16, 8)
    return v.transpose(1, 2, 4, 6, 0, 3, 5).reshape(2048, 768)
def decode_p(v):
    v = v.reshape(32, 8, 4, 3, 4, 16, 2, 4)
    return v.transpose(0, 2, 5, 1, 3, 6, 4, 7).reshape(2048, 768)

K4_NS = 6
K4_LDS = K4_NS * 20480
K4_VGPR = 128

def gen_k4(a, stamp=False):
    entry(a, "k4", stamp, None)
    vm = Cnt(a, "vmcnt", 63)
    a(f"""
    v_lshrrev_b32 v9, 3, v1
    v_and_b32 v10, 7, v1
    v_lshrrev_b32 v11, 1, v9
    v_xor_b32 v10, v10, v11
    s_lshl_b32 s12, s6, 6
    s_lshl_b32 s13, s8, 4
    s_add_u32 s12, s12, s13
    v_add_u32 v9, s12, v9
    v_lshlrev_b32 v9, 12, v9
    v_lshl_add_u32 v4, v10, 4, v9
    v_xor_b32 v5, 64, v4
    v_add_u32 v5, {8*4096 - 1024}, v5
    s_mul_i32 s12, s7, {32*12288}
    s_mul_i32 s15, s8, 3072
    s_add_u32 s12, s12, s15
    v_lshl_add_u32 v6, v1, 4, s12
    s_lshl_b32 s14, s8, 11
    s_add_u32 s15, s15, 8192
    s_waitcnt lgkmcnt(0)
    """)
    srd(a, 16, 34, 0, 2048 * 4096)
    srd(a, 20, 42, WS_Z2, 2048 * 768 * 2)
    def dma(i):
        if i >= 32: return
        so = 20480 * (i % K4_NS)
        a(f"s_add_u32 m0, s14, {so}")
        a(f"s_movk_i32 s24, {128*i}")
        a("buffer_load_dwordx4 v4, s[16:19], s24 offen lds")
        a("buffer_load_dwordx4 v5, s[16:19], s24 offen offset:1024 lds")
        a(f"s_add_u32 m0, s15, {so}")
        a(f"s_mov_b32 s25, {12288*i}")
        for e in range(3): a(f"buffer_load_dwordx4 v6, s[20:23], s25 offen offset:{1024*e} lds")
        vm.issue(i, 5)
    for i in range(K4_NS): dma(i)
    Z1 = 20
    a(f"""
    s_lshl_b32 s12, s6, 3
    s_add_u32 s12, s12, s7
    s_mul_i32 s26, s12, 12288
    s_mul_i32 s13, s8, 3072
    s_add_u32 s12, s26, s13
    s_add_u32 s12, s12, {WS_Z1}
    v_lshl_add_u32 v10, v1, 4, s12
    s_lshl_b32 s12, s6, 7
    s_lshl_b32 s13, s10, 6
    s_add_u32 s12, s12, s13
    v_lshl_add_u32 v11, v2, 1, s12
    """)
    for nt in range(3): a(f"global_load_dwordx4 {Q(Z1 + 4*nt)}, v10, s[42:43] offset:{1024*nt}")
    a("global_load_ushort v32, v11, s[36:37]\nglobal_load_ushort v33, v11, s[36:37] offset:32")
    vm.issue("z1", 5)
    a(f"""
    v_lshrrev_b32 v9, 1, v2
    v_xor_b32 v9, v9, v3
    v_lshlrev_b32 v9, 4, v9
    v_lshl_add_u32 v9, v2, 7, v9
    s_lshl_b32 s12, s10, 12
    v_add_u32 v12, s12, v9
    v_xor_b32 v13, 64, v12
    v_add_u32 v14, 61440, v12
    v_add_u32 v15, 61440, v13
    s_mul_i32 s12, s11, 3072
    s_add_u32 s12, s12, 8192
    v_lshl_add_u32 v16, v1, 4, s12
    v_add_u32 v17, 61440, v16
    """)
    ACC = lambda mt, nt: 40 + 12*mt + 4*nt
    FWs = lambda b, mt: 64 + 20*b + 4*mt
    FZ = lambda b, nt: 72 + 20*b + 4*nt
    def reads(j):
        st = j >> 1; b = j & 1
        so = 20480 * (st % K4_NS); hi = 0
        if so >= 61440: so -= 61440; hi = 1
        r = [f"ds_read_b128 {Q(FWs(b, mt))}, v{12 + 2*hi + b} offset:{so + 2048*mt}" for mt in range(2)]
        r += [f"ds_read_b128 {Q(FZ(b, nt))}, v{16 + hi} offset:{so + 6144*b + 1024*nt}" for nt in range(3)]
        return [r[0], r[2], r[3], r[4], r[1]]
    vm.wait({0}); a("s_barrier")
    if stamp: a("s_memrealtime s[92:93]")
    for r in reads(0): a(r)
    for j in range(64):
        b = j & 1
        a("s_waitcnt lgkmcnt(0)")
        if b == 1 and j < 63:
            vm.wait({(j >> 1) + 1}); a("s_barrier"); dma((j >> 1) + K4_NS)
        nxt = reads(j + 1) if j < 63 else []
        k = 0
        for mt in range(2):
            for nt in range(3):
                c = "0" if j == 0 else Q(ACC(mt, nt))
                a(f"v_mfma_f32_16x16x32_bf16 {Q(ACC(mt, nt))}, {Q(FZ(b, nt))}, {Q(FWs(b, mt))}, {c}")
                for r in nxt[k:k+1]: a(r)
                k += 1
    if stamp: a("s_memrealtime s[94:95]")
    a(f"""
    v_lshlrev_b32 v32, 16, v32
    v_lshlrev_b32 v34, 16, v33
    s_mul_i32 s12, s10, 6144
    s_mul_i32 s13, s11, 1032
    s_add_u32 s12, s12, s13
    s_add_u32 s12, s12, s26
    s_add_u32 s12, s12, {WS_P}
    v_lshl_add_u32 v10, v1, 4, s12
    s_mul_i32 s13, s11, 1008
    s_add_u32 s13, s13, 8
    v_add_u32 v11, s13, v10
    """)
    T = 64
    for mt in range(2):
        for nt in range(3):
            acc = ACC(mt, nt); z = Z1 + 4*nt + 2*mt; t = T + 4*((3*mt + nt) & 1)
            for r in range(4): a(f"v_cvt_pk_bf16_f32 v{acc+r}, 0, v{acc+r}")
            for h in range(2):
                a(f"v_lshlrev_b32 v{t+2*h}, 16, v{z+h}")
                a(f"v_and_b32 v{t+2*h+1}, 0xffff0000, v{z+h}")
            for h in (0, 2): a(f"v_pk_add_f32 {P(acc+h)}, {P(acc+h)}, {P(32+2*mt)} op_sel:[0,0] op_sel_hi:[1,0]")
            for r in range(4): a(f"v_cvt_pk_bf16_f32 v{acc+r}, 0, v{acc+r}")
            for h in (0, 2): a(f"v_pk_mul_f32 {P(acc+h)}, {P(acc+h)}, {P(t+h)}")
            a(f"v_cvt_pk_bf16_f32 v{acc}, v{acc}, v{acc+1}")
            a(f"v_cvt_pk_bf16_f32 v{acc+1}, v{acc+2}, v{acc+3}")
            ad, off = (("v10", 0), ("v11", 0), ("v10", 1024))[nt]
            if mt == 1 and nt == 2:
                a("v_add_u32 v10, 1024, v10"); off = 0
            a(f"global_store_dwordx2 {ad}, {P(acc)}, s[42:43] offset:{off + 3072*mt}")
    if stamp: stamp_out(a, "K4", 2)
    a("K4_END:\ns_endpgm")

K5_H = 768 * 160
K5_LDS = K5_H + 80 * 128
K5_VGPR = 192

def gen_k5(a, stamp=False):
    entry(a, "k5", stamp, None)
    vm = Cnt(a, "vmcnt", 63)
    a(f"s_mul_i32 s12, s8, {32*1280}\ns_mul_i32 s13, s7, 160\ns_add_u32 s12, s12, s13")
    for e in range(5):
        a(f"""
        v_add_u32 v9, {64*e}, v1
        v_mul_u32_u24 v10, 52429, v9
        v_lshrrev_b32 v10, 19, v10
        v_mul_u32_u24 v11, 10, v10
        v_sub_u32 v9, v9, v11
        v_mul_u32_u24 v10, 1280, v10
        v_lshl_add_u32 v9, v9, 4, v10
        v_add_u32 v{4+e}, s12, v9
        """)
        if e: a(f"v_subrev_u32 v{4+e}, {1024*(e & 3)}, v{4+e}") if (e & 3) else None
    a(f"""
    s_mul_i32 s12, s6, {8*12288}
    s_mul_i32 s13, s8, 3072
    s_add_u32 s12, s12, s13
    v_lshl_add_u32 v12, v1, 4, s12
    v_lshrrev_b32 v9, 3, v1
    v_and_b32 v10, 7, v1
    v_and_b32 v11, 6, v9
    v_xor_b32 v10, v10, v11
    s_mul_i32 s12, s7, 80
    s_lshl_b32 s13, s8, 3
    s_add_u32 s12, s12, s13
    v_add_u32 v9, s12, v9
    v_lshlrev_b32 v9, 12, v9
    v_lshl_add_u32 v13, v10, 4, v9
    s_lshl_b32 s12, s6, 7
    v_add_u32 v13, s12, v13
    s_mul_i32 s14, s8, 5120
    s_waitcnt lgkmcnt(0)
    """)
    srd(a, 16, 38, 0, 768 * 1280)
    srd(a, 20, 42, WS_P, 2048 * 768 * 2)
    srd(a, 24, 42, WS_HT, 640 * 4096)
    PF = lambda ks: 96 + 4*ks
    for c in range(6):
        a(f"s_add_u32 m0, s14, {20480*c}")
        a(f"s_mov_b32 s28, {128*1280*c}")
        for e in range(4): a(f"buffer_load_dwordx4 v{4+e}, s[16:19], s28 offen offset:{1024*e} lds")
        a(f"s_add_u32 m0, s14, {20480*c + 4096}")
        a(f"s_nop 0")
        a(f"buffer_load_dwordx4 v8, s[16:19], s28 offen lds")
        for ks in range(4*c, 4*c + 4):
            if ks % 3 == 0: a(f"s_mov_b32 s29, {12288*(ks//3)}")
            a(f"buffer_load_dwordx4 {Q(PF(ks))}, v12, s[20:23], s29 offen offset:{1024*(ks % 3)}")
        vm.issue(c, 9)
    a(f"s_lshl_b32 s15, s8, 10\ns_add_u32 s15, s15, {K5_H}")
    for e in range(3):
        if e == 2: a("s_cmp_ge_u32 s8, 2\ns_cbranch_scc1 K5_NOH")
        a(f"s_add_u32 m0, s15, {4096*e}")
        a(f"s_mov_b32 s28, {32*4096*e}")
        a("buffer_load_dwordx4 v13, s[24:27], s28 offen lds")
    a("K5_NOH:")
    vm.issue("h", 2)
    a(f"""
    v_lshrrev_b32 v9, 2, v2
    v_lshl_add_u32 v9, v3, 2, v9
    v_and_b32 v11, 3, v2
    v_lshlrev_b32 v11, 3, v11
    v_mul_u32_u24 v14, 160, v9
    v_add_u32 v14, v14, v11
    v_add_u32 v15, 61440, v14
    v_lshrrev_b32 v10, 1, v9
    v_and_b32 v10, 3, v10
    v_xor_b32 v10, s8, v10
    v_lshl_add_u32 v16, v9, 7, v11
    v_lshl_add_u32 v16, v10, 5, v16
    v_add_u32 v16, {K5_H}, v16
    s_mul_i32 s12, s6, {64*1280}
    s_mul_i32 s13, s8, {16*1280}
    s_add_u32 s12, s12, s13
    s_mul_i32 s13, s7, 160
    s_add_u32 s12, s12, s13
    v_mul_u32_u24 v17, 1280, v2
    v_lshl_add_u32 v17, v3, 3, v17
    v_add_u32 v17, s12, v17
    """)
    ACC = lambda nt: 20 + 4*nt
    FW = lambda b, nt: 40 + 20*b + 4*nt
    def reads(j):
        o = j * 5120; hi = 0
        if o >= 61440: o -= 61440; hi = 1
        return [f"ds_read_b64_tr_b16 {P(FW(j & 1, nt) + 2*h)}, v{14+hi} offset:{o + 32*nt + 2560*h}" for nt in range(5) for h in range(2)]
    vm.wait({0}); a("s_barrier")
    if stamp: a("s_memrealtime s[92:93]")
    for r in reads(0): a(r)
    HF = 80
    for j in range(24):
        a("s_waitcnt lgkmcnt(0)")
        if j % 4 == 3:
            if j < 23: vm.wait({j // 4 + 1})
            else: vm.all()
            a("s_barrier")
        nxt = reads(j + 1) if j < 23 else [f"ds_read_b64_tr_b16 {P(HF + 2*nt)}, v16 offset:{2048*nt}" for nt in range(5)]
        for nt in range(5):
            c = "0" if j == 0 else Q(ACC(nt))
            a(f"v_mfma_f32_16x16x32_bf16 {Q(ACC(nt))}, {Q(FW(j & 1, nt))}, {Q(PF(j))}, {c}")
            for r in nxt[2*nt:2*nt+2]: a(r)
    if stamp: a("s_memrealtime s[94:95]")
    a("s_waitcnt lgkmcnt(0)")
    for nt in range(5):
        acc = ACC(nt); t = 40 + 4*nt
        for h in range(2):
            a(f"v_lshlrev_b32 v{t+2*h}, 16, v{HF+2*nt+h}")
            a(f"v_and_b32 v{t+2*h+1}, 0xffff0000, v{HF+2*nt+h}")
        for r in range(4): a(f"v_cvt_pk_bf16_f32 v{acc+r}, 0, v{acc+r}")
        for h in (0, 2): a(f"v_pk_add_f32 {P(acc+h)}, {P(acc+h)}, {P(t+h)}")
        a(f"v_cvt_pk_bf16_f32 v{acc}, v{acc}, v{acc+1}")
        a(f"v_cvt_pk_bf16_f32 v{acc+1}, v{acc+2}, v{acc+3}")
        a(f"global_store_dwordx2 v17, {P(acc)}, s[30:31] offset:{32*nt}")
    if stamp: stamp_out(a, "K5", 3)
    a("K5_END:\ns_endpgm")
```

```python
from asmgen import Asm
from layout import *

LOG2E = "0x3fb8aa3b"
NLOG2E = "0xbfb8aa3b"
INV2PI = "0x3e22f983"

KW_STRIDE = 16640
KC0 = 66560; KC_STRIDE = 3200
U0 = 79360; U_STRIDE = 4608
XU0 = 97792; XU_STRIDE = 8192
K1_LDS = 130560
EROW = 784

def P(r): return f"v[{r}:{r+1}]"
def Q(r): return f"v[{r}:{r+3}]"

def cmul(a, sets):
    for d, x, y, t in sets:
        a(f"v_pk_mul_f32 {P(t)}, {P(x)}, {P(y)} op_sel:[0,0] op_sel_hi:[0,1]")
    for d, x, y, t in sets:
        a(f"v_pk_fma_f32 {P(d)}, {P(x)}, {P(y)}, {P(t)} op_sel:[1,1,0] op_sel_hi:[1,0,1] neg_lo:[1,0,0]")

def gen_k1(a, stamp=False):
    a("k1_kernel:")
    if stamp: a("s_memrealtime s[90:91]")
    a(f"""
    s_cmp_ge_u32 s2, 256
    s_cbranch_scc1 K1_END
    s_load_dwordx16 s[16:31], s[0:1], 0
    s_load_dwordx8 s[32:39], s[0:1], 64
    s_load_dwordx4 s[40:43], s[0:1], 104
    s_getpc_b64 s[4:5]
K1_PC:
    v_lshlrev_b32 v2, 7, v0
    v_min_u32 v2, CODE_END-K1_PC-4, v2
    global_load_dword v23, v2, s[4:5]
    v_and_b32 v1, 63, v0
    v_lshrrev_b32 v2, 6, v0
    s_and_b32 s6, s2, 7
    s_lshr_b32 s7, s2, 3
    v_readfirstlane_b32 s8, v2
    s_cmp_lt_u32 s7, 12
    s_cbranch_scc1 K1_HELPER
    s_mul_i32 s9, s6, 20
    s_add_u32 s9, s9, s7
    s_sub_u32 s9, s9, 12
    s_cmp_ge_u32 s8, 4
    s_cbranch_scc1 K1_STAGE
    """)
    a(f"""
    s_setprio 2
    s_lshl_b32 s10, s9, 2
    s_add_u32 s10, s10, s8
    s_mul_i32 s11, s10, 384
    v_lshl_add_u32 v14, v1, 2, s11
    s_add_u32 s11, s11, 256
    v_lshl_add_u32 v15, v1, 1, s11
    s_lshl_b32 s12, s10, 1
    s_and_b32 s12, s12, -4
    s_waitcnt lgkmcnt(0)
    global_load_dword v16, v14, s[18:19]
    global_load_ushort v17, v15, s[18:19]
    global_load_dword v18, v14, s[20:21]
    global_load_ushort v19, v15, s[20:21]
    global_load_dword v20, v14, s[22:23]
    global_load_ushort v21, v15, s[22:23]
    global_load_dword v22, v14, s[24:25]
    global_load_ushort v23, v15, s[24:25]
    s_load_dword s13, s[26:27], s12
    """)
    a(f"""
    s_mul_i32 s44, s8, {KW_STRIDE}
    s_mul_i32 s45, s8, {KC_STRIDE}
    s_add_u32 s45, s45, {KC0 + 96}
    s_mul_i32 s46, s8, {U_STRIDE}
    s_add_u32 s46, s46, {U0}
    s_lshl_b32 s47, s8, 13
    s_add_u32 s47, s47, {XU0}
    v_lshl_add_u32 v2, v1, 3, s44
    s_add_u32 s48, s44, 512
    v_lshl_add_u32 v3, v1, 2, s48
    v_and_b32 v10, 15, v1
    v_lshrrev_b32 v11, 4, v1
    v_mul_u32_u24 v4, {EROW}, v10
    v_lshl_add_u32 v4, v11, 4, v4
    v_add_u32 v4, s44, v4
    v_mov_b32 v12, 0
    v_mov_b32 v13, 0
    v_lshl_add_u32 v5, v1, 3, s46
    ds_write_b64 v5, v[12:13]
    s_sub_u32 s48, s45, 96
    v_lshl_add_u32 v5, v1, 2, s48
    ds_write_b32 v5, v12
    """)
    a(f"""
    v_max_u32 v12, 1, v11
    v_sub_u32 v12, 6, v12
    v_lshlrev_b32 v5, v12, v10
    v_lshlrev_b32 v13, 4, v11
    v_lshlrev_b32 v6, 9, v11
    v_cmp_gt_u32 vcc, 2, v11
    v_cndmask_b32 v13, v6, v13, vcc
    v_add3_u32 v5, v5, v13, s45
    v_mov_b32 v13, 0x100
    v_cmp_eq_u32 vcc, 3, v11
    v_cndmask_b32 v13, 8, v13, vcc
    v_lshlrev_b32 v12, v12, 16
    v_add_u32 v7, v5, v12
    v_add_u32 v8, v7, v13
    v_lshl_add_u32 v9, v10, 2, v6
    v_add_u32 v6, v5, v13
    s_add_u32 s48, s45, 2048
    v_add_u32 v9, s48, v9
    """)
    a(f"""
    v_add_u32 v12, 1, v10
    v_and_b32 v12, 3, v12
    v_mul_u32_u24 v13, 4162, v12
    v_lshlrev_b32 v12, 3, v11
    v_sub_u32 v12, v12, v10
    v_lshl_add_u32 v13, v12, 1, v13
    s_add_u32 s48, s44, 30
    v_add_u32 v252, s48, v13
    v_lshlrev_b32 v12, 5, v10
    v_lshl_add_u32 v12, v11, 4, v12
    s_add_u32 s48, s46, 32
    v_add_u32 v253, s48, v12
    v_lshlrev_b32 v12, 2, v10
    v_add_u32 v12, v12, v11
    v_lshl_add_u32 v254, v12, 4, s47
    s_lshl_b32 s48, s10, 12
    v_lshl_add_u32 v255, v12, 3, s48
    """)
    SB = [24, 44, 64]
    AR, Z1, W, ZZ, CUR, R2, R4, R6, PW, T = [lambda s, k=k: SB[s] + 2 * k for k in range(10)]
    PKS = [(84, 86), (88, 90)]
    ACC = 92; AF = 108; BF = 204
    S3 = range(3)
    a(f"""
    s_waitcnt lgkmcnt(0)
    s_lshl_b32 s14, s13, 16
    s_and_b32 s13, s13, 0xffff0000
    s_bitcmp1_b32 s10, 0
    s_cselect_b32 s13, s13, s14
    v_mov_b32 v12, {LOG2E}
    v_mul_f32 v12, s13, v12
    v_exp_f32 v12, v12
    v_cvt_pk_bf16_f32 v12, 0, v12
    s_waitcnt vmcnt(0)
    """)
    if stamp: a("s_memrealtime s[92:93]")
    def unpack(dst, raw):
        a(f"v_lshlrev_b32 v{dst[0]}, 16, v{raw}")
        a(f"v_and_b32 v{dst[1]}, 0xffff0000, v{raw}")
        a(f"v_lshlrev_b32 v{dst[2]}, 16, v{raw+1}")
    unpack([AR(s) for s in S3], 16)
    unpack([AR(s) + 1 for s in S3], 18)
    unpack([CUR(s) for s in S3], 20)
    unpack([CUR(s) + 1 for s in S3], 22)
    for s in S3: a(f"v_mul_f32 v{AR(s)}, {LOG2E}, v{AR(s)}")
    for s in S3: a(f"v_exp_f32 v{AR(s)}, v{AR(s)}")
    a(f"v_max3_f32 v13, abs(v{CUR(0)}), abs(v{CUR(0)+1}), abs(v{CUR(1)})")
    a(f"v_max3_f32 v14, abs(v{CUR(1)+1}), abs(v{CUR(2)}), abs(v{CUR(2)+1})")
    a("v_max_u32 v13, v13, v14")
    for s in S3: a(f"v_cvt_pk_bf16_f32 v{AR(s)}, 0, v{AR(s)}")
    a("v_max_u32_dpp v13, v13, v13 row_ror:8 row_mask:0xf bank_mask:0xf")
    for s in S3: a(f"v_mul_f32 v{AR(s)}, v{AR(s)}, v12")
    a("v_max_u32_dpp v13, v13, v13 row_ror:4 row_mask:0xf bank_mask:0xf")
    for s in S3: a(f"v_mul_f32 v{AR(s)+1}, v{AR(s)+1}, v12")
    a("v_max_u32_dpp v13, v13, v13 row_ror:2 row_mask:0xf bank_mask:0xf")
    for s in S3: a(f"v_mul_f32 v{AR(s)}, {NLOG2E}, v{AR(s)}")
    a("v_max_u32_dpp v13, v13, v13 row_ror:1 row_mask:0xf bank_mask:0xf")
    for s in S3: a(f"v_mul_f32 v{AR(s)+1}, {INV2PI}, v{AR(s)+1}")
    a("""
    v_readlane_b32 s48, v13, 0
    v_readlane_b32 s49, v13, 16
    v_readlane_b32 s50, v13, 32
    v_readlane_b32 s51, v13, 48
    """)
    def anchor(dst, p, conj=False):
        for s in S3:
            if p == 1:
                a(f"v_exp_f32 v{PW(s)}, v{AR(s)}")
                a(f"v_fract_f32 v{T(s)+1}, v{AR(s)+1}")
            else:
                a(f"v_mul_f32 v{T(s)}, {float(p)}, v{AR(s)}" if False else f"v_mul_f32 v{T(s)}, {fhex(p)}, v{AR(s)}")
                a(f"v_mul_f32 v{T(s)+1}, {fhex(p)}, v{AR(s)+1}")
        if p != 1:
            for s in S3:
                a(f"v_exp_f32 v{PW(s)}, v{T(s)}")
                a(f"v_fract_f32 v{T(s)+1}, v{T(s)+1}")
        for s in S3:
            a(f"v_cos_f32 v{dst(s)}, v{T(s)+1}")
            a(f"v_sin_f32 v{dst(s)+1}, v{T(s)+1}")
        for s in S3:
            a(f"v_pk_mul_f32 {P(dst(s))}, {P(dst(s))}, {P(PW(s))} op_sel:[0,0] op_sel_hi:[1,0]" + (" neg_hi:[1,0]" if conj else ""))
    anchor(Z1, 1)
    a("""
    s_max_u32 s48, s48, s49
    s_max_u32 s50, s50, s51
    s_max_u32 s48, s48, s50
    s_and_b32 s48, s48, 0x7f800000
    s_max_u32 s48, s48, 0x01000000
    s_min_u32 s48, s48, 0x7e000000
    s_sub_u32 s49, 0x7f000000, s48
    """)
    anchor(ZZ, 256)
    anchor(W, 8, conj=True)
    a("v_mul_f32 v15, s48, v12")
    a("v_add_f32 v15, v15, v15")
    for s in S3:
        a(f"v_mul_f32 v{CUR(s)}, s49, v{CUR(s)}")
        a(f"v_mul_f32 v{CUR(s)+1}, s49, -v{CUR(s)+1}")
    cnt = [0]
    def row(slot, reg):
        pk, pk2 = PKS[cnt[0] & 1]; cnt[0] += 1
        if reg is None:
            a(f"v_mov_b32 v{pk}, 0x3c00"); a(f"v_mov_b32 v{pk+1}, 0x3c00"); a(f"v_mov_b32 v{pk2}, 0x3c00")
        else:
            a(f"v_cvt_pk_f16_f32 v{pk}, v{reg(0)}, v{reg(0)+1}")
            a(f"v_cvt_pk_f16_f32 v{pk+1}, v{reg(1)}, v{reg(1)+1}")
            a(f"v_cvt_pk_f16_f32 v{pk2}, v{reg(2)}, v{reg(2)+1}")
        a(f"ds_write_b64 v2, {P(pk)} offset:{slot*EROW}")
        a(f"ds_write_b32 v3, v{pk2} offset:{slot*EROW}")
    def cm(d, x, y): cmul(a, [(d(s), x(s), y(s), T(s)) for s in S3])
    TMP = AR
    row(0, None); row(1, Z1)
    cm(R2, Z1, Z1); row(2, R2)
    cm(TMP, R2, Z1); row(3, TMP)
    cm(R4, R2, R2); row(4, R4)
    cm(TMP, R4, Z1); row(5, TMP)
    cm(R6, R4, R2); row(6, R6)
    cm(TMP, R6, Z1); row(7, TMP)
    row(8, ZZ)
    cm(TMP, ZZ, R2); row(9, TMP)
    cm(TMP, ZZ, R4); row(10, TMP)
    cm(TMP, ZZ, R6); row(11, TMP)
    cm(PW, ZZ, ZZ); row(12, PW)
    cm(TMP, PW, R4); row(13, TMP)
    cm(PW, PW, ZZ); row(14, PW)
    cm(TMP, PW, R4); row(15, TMP)
    for ks in range(12): a(f"ds_read_b128 {Q(AF + 4*ks)}, v4 offset:{64*ks}")
    for i in range(5):
        cm(PW, PW, ZZ); row(i, PW)
    for ks in range(12): a(f"ds_read_b128 {Q(AF + 48 + 4*ks)}, v4 offset:{64*ks}")
    for j in range(16):
        row(j, CUR); cm(CUR, CUR, W)
    for ks in range(12): a(f"ds_read_b128 {Q(BF + 4*ks)}, v4 offset:{64*ks}")
    def kmfma(nt, ks):
        for mt in range(2):
            acc = ACC + 8 * nt + 4 * mt
            c = "0" if ks == 0 else Q(acc)
            a(f"v_mfma_f32_16x16x32_f16 {Q(acc)}, {Q(AF + 48*mt + 4*ks)}, {Q(BF + 4*ks)}, {c}")
    for j in range(16):
        row(j, CUR)
        if j == 2: a("s_waitcnt lgkmcnt(6)")
        if 2 <= j < 14: kmfma(0, j - 2)
        if j < 15: cm(CUR, CUR, W)
    for ks in range(12): a(f"ds_read_b128 {Q(BF + 4*ks)}, v4 offset:{64*ks}")
    a(f"""
    s_sub_u32 s48, s45, 96
    v_lshl_add_u32 v10, v1, 5, s48
    v_cmp_eq_u32 vcc, 34, v1
    s_add_u32 s48, s45, 1024
    v_lshl_add_u32 v12, v1, 3, s48
    v_cndmask_b32 v11, 0, 4, vcc
    v_sub_u32 v11, v10, v11
    v_cmp_eq_u32 vcc, 63, v1
    v_lshlrev_b32 v16, 4, v1
    s_add_u32 s48, s44, 3056
    v_cndmask_b32 v13, 0, 4, vcc
    v_sub_u32 v13, v12, v13
    v_sub_u32 v16, s48, v16
    v_lshlrev_b32 v17, 3, v1
    s_add_u32 s48, s44, 3576
    v_sub_u32 v17, s48, v17
    v_lshlrev_b32 v18, 5, v1
    s_add_u32 s48, s44, 2016
    v_sub_u32 v18, s48, v18
    """)
    for ks in range(12):
        a(f"s_waitcnt lgkmcnt({11-ks})")
        kmfma(1, ks)
    a(f"""
    ds_write_b64 v5, {P(ACC)}
    ds_write_b64 v6, {P(ACC+2)}
    ds_write_b64 v7, {P(ACC+8)}
    ds_write_b64 v8, {P(ACC+10)}
    s_mov_b32 exec_hi, 0
    ds_write2_b32 v9, v{ACC+4}, v{ACC+5} offset0:0 offset1:32
    ds_write2_b32 v9, v{ACC+6}, v{ACC+7} offset0:64 offset1:96
    ds_write2_b32 v9, v{ACC+12}, v{ACC+13} offset0:16 offset1:48
    ds_write2_b32 v9, v{ACC+14}, v{ACC+15} offset0:80 offset1:112
    s_mov_b64 exec, -1
    """)
    E0 = 24
    a(f"""
    ds_read_b64 v[40:41], v12 offset:1024
    ds_read_b32 v42, v12 offset:1032
    ds_read_b64 v[44:45], v12 offset:512
    ds_read_b32 v46, v12 offset:520
    ds_read_b64 v[48:49], v12
    ds_read_b32 v50, v12 offset:8
    ds_read_b32 v51, v13 offset:12
    ds_read_b128 v[24:27], v10
    ds_read_b128 v[28:31], v10 offset:16
    ds_read_b32 v32, v10 offset:32
    ds_read2_b32 v[34:35], v11 offset0:9 offset1:10
    """)
    def emit_region(e, n, addr, off0, regs):
        cur = [None] * (n // 2)
        for sg in range(4):
            for d in range(n // 2):
                want = (e[sg + n - 1 - 2 * d], e[sg + n - 2 - 2 * d])
                if cur[d] != want:
                    a(f"v_cvt_pk_f16_f32 v{regs + d}, v{want[0]}, v{want[1]}")
                    cur[d] = want
            if n == 4:
                a(f"ds_write_b64 {addr}, {P(regs)} offset:{off0 + 4160*sg}")
            else:
                for h in range(n // 8):
                    a(f"ds_write_b128 {addr}, {Q(regs + 4*h)} offset:{off0 + 4160*sg + 16*h}")
            if n <= 8 and len(set(e)) > 4:
                regs += n // 2; cur = [None] * (n // 2)
    a("s_waitcnt lgkmcnt(9)")
    emit_region([40]*5 + [41]*7 + [42]*7, 16, "v18", 0, 56)
    a("s_waitcnt lgkmcnt(15)")
    emit_region([44]*3 + [45]*3 + [46]*5, 8, "v16", 0, 64)
    a("s_waitcnt lgkmcnt(12)")
    emit_region([48, 48, 49, 50, 50, 50, 51], 4, "v17", 0, 68)
    a("s_mov_b64 exec, 0x7ffffffff" if False else "s_mov_b32 exec_lo, -1\ns_mov_b32 exec_hi, 7")
    emit_region([24, 25, 26, 27, 28, 29, 30, 31, 32, 34, 35], 8, "v16", 1072, 72)
    a("s_mov_b64 exec, -1")
    if stamp: a("s_memrealtime s[94:95]")
    a("s_waitcnt lgkmcnt(0)")
    a("s_barrier")
    if stamp: a("s_memrealtime s[96:97]")
    CA = 24; AA = 56; BB = 88
    def rdA(q, s):
        o = 512 * (7 - q) + 64 * (7 - s)
        a(f"ds_read_b64 {P(AA + 4*q)}, v252 offset:{o}")
        a(f"ds_read_b64 {P(AA + 4*q + 2)}, v252 offset:{o + 8}")
    def rdB(d, s):
        a(f"ds_read_b128 {Q(BB + 4*d)}, v253 offset:{512*d + 64*(7 - s)}")
    out = []
    def issue(tag, n): out.extend([tag] * n)
    def wait_for(tags):
        last = max((i for i, t in enumerate(out) if t in tags), default=-1)
        if last >= 0:
            n = len(out) - 1 - last
            a(f"s_waitcnt lgkmcnt({min(n, 15)})")
            keep = min(n, 15)
            del out[:len(out) - keep]
    for q in range(7, -1, -1):
        rdA(q, 0); issue(("A", q), 2)
        rdB(7 - q, 0); issue(("B", 7 - q), 1)
    touched = set()
    for s in range(8):
        for q in range(7, -1, -1):
            for d in range(0, 8 - q):
                wait_for({("A", q), ("B", d)})
                c = q + d
                cin = Q(CA + 4*c) if c in touched else "0"
                touched.add(c)
                a(f"v_mfma_f32_16x16x32_f16 {Q(CA + 4*c)}, {Q(AA + 4*q)}, {Q(BB + 4*d)}, {cin}")
                if q == 0:
                    if s < 7: rdB(d, s + 1); issue(("B", d), 1)
                    else:
                        a(f"ds_read_b128 {Q(120 + 4*d)}, v254 offset:{1024*d}"); issue(("X", d), 1)
            if s < 7: rdA(q, s + 1); issue(("A", q), 2)
    if stamp: a("s_memrealtime s[98:99]")
    a("v_mov_b32 v14, v15")
    for c in range(8):
        acc = CA + 4*c; xu = 120 + 4*c; t = 56 + 8 * (c & 1)
        wait_for({("X", c)})
        a(f"v_pk_mul_f32 {P(acc)}, {P(acc)}, v[14:15]")
        a(f"v_pk_mul_f32 {P(acc+2)}, {P(acc+2)}, v[14:15]")
        for r in range(4): a(f"v_lshlrev_b32 v{t+r}, 16, v{xu+r}")
        for r in range(4): a(f"v_cvt_pk_bf16_f32 v{acc+r}, 0, v{acc+r}")
        a(f"v_pk_add_f32 {P(acc)}, {P(acc)}, {P(t)}")
        a(f"v_pk_add_f32 {P(acc+2)}, {P(acc+2)}, {P(t+2)}")
        for r in range(4): a(f"v_and_b32 v{xu+r}, 0xffff0000, v{xu+r}")
        for r in range(4): a(f"v_cvt_pk_bf16_f32 v{acc+r}, 0, v{acc+r}")
        a(f"v_pk_add_f32 {P(acc)}, {P(acc)}, {P(xu)}")
        a(f"v_pk_add_f32 {P(acc+2)}, {P(acc+2)}, {P(xu+2)}")
        a(f"v_cvt_pk_bf16_f32 v{acc}, v{acc}, v{acc+1}")
        a(f"v_cvt_pk_bf16_f32 v{acc+1}, v{acc+2}, v{acc+3}")
        a(f"global_store_dwordx2 v255, {P(acc)}, s[42:43] offset:{512*c}")
    if stamp: stamp_out(a, "K1K", 0)
    a("s_endpgm")

    a(f"""
K1_STAGE:
    v_subrev_u32 v2, 256, v0
    v_mul_u32_u24 v3, 10240, v2
    s_lshl_b32 s10, s9, 3
    v_add_u32 v3, s10, v3
    v_add_u32 v4, 5120, v3
    s_waitcnt lgkmcnt(0)
    s_load_dwordx2 s[12:13], s[28:29], s10
    """)
    for i in range(8):
        a(f"global_load_dwordx2 {P(16 + 2*i)}, v{3 + (i >> 2)}, s[16:17] offset:{1280*(i & 3)}")
    a(f"""
    s_sub_u32 s11, s8, 4
    s_lshl_b32 s11, s11, 6
    v_and_b32 v5, 15, v1
    v_lshl_add_u32 v5, v5, 2, s11
    v_lshlrev_b32 v6, 5, v2
    v_add_u32 v7, {WS_STAT1}, v6
    v_add_u32 v6, {XU0}, v6
    v_lshlrev_b32 v8, 4, v2
    v_add_u32 v8, {U0 + 512}, v8
    s_waitcnt lgkmcnt(0)
    s_lshl_b32 s44, s12, 16
    s_and_b32 s45, s12, 0xffff0000
    s_lshl_b32 s46, s13, 16
    s_and_b32 s47, s13, 0xffff0000
    s_waitcnt vmcnt(0)
    s_mov_b32 s14, 0
K1_POLL:
    global_load_dword v9, v5, s[40:41] sc1
    s_waitcnt vmcnt(0)
    v_cmp_eq_u32 vcc, 0, v9
    s_add_u32 s14, s14, 1
    s_cbranch_vccz K1_READY
    s_sleep 2
    s_cmp_lt_u32 s14, 0x40000
    s_cbranch_scc1 K1_POLL
K1_READY:
    global_load_dwordx4 v[32:35], v7, s[42:43] sc1
    global_load_dwordx4 v[36:39], v7, s[42:43] offset:16 sc1
    """)
    if stamp: a("s_memrealtime s[92:93]")
    XF = lambda i, c: 64 + 4*i + c
    UF = lambda i, c: 96 + 4*i + c
    MR = lambda i: 40 + 2*i
    for i in range(8):
        for h in range(2):
            a(f"v_lshlrev_b32 v{XF(i, 2*h)}, 16, v{16 + 2*i + h}")
            a(f"v_and_b32 v{XF(i, 2*h+1)}, 0xffff0000, v{16 + 2*i + h}")
    a("s_waitcnt vmcnt(0)")
    for i in range(8):
        a(f"v_lshlrev_b32 v{MR(i)+1}, 16, v{32+i}")
        a(f"v_and_b32 v{MR(i)}, 0xffff0000, v{32+i}")
        a(f"v_rcp_f32 v{MR(i)+1}, v{MR(i)+1}")
    for i in range(8):
        for h in range(2):
            a(f"v_pk_add_f32 {P(UF(i, 2*h))}, {P(XF(i, 2*h))}, {P(MR(i))} op_sel:[0,0] op_sel_hi:[1,0] neg_lo:[0,1] neg_hi:[0,1]")
        for c in range(4): a(f"v_cvt_pk_bf16_f32 v{UF(i,c)}, 0, v{UF(i,c)}")
        for h in range(2):
            a(f"v_pk_mul_f32 {P(UF(i, 2*h))}, {P(UF(i, 2*h))}, {P(MR(i))} op_sel:[0,1] op_sel_hi:[1,1]")
        for c in range(4): a(f"v_cvt_pk_bf16_f32 v{UF(i,c)}, 0, v{UF(i,c)}")
    for c in range(4):
        for i in range(0, 8, 2):
            a(f"v_cvt_pk_f16_f32 v{16 + 4*c + i//2}, v{UF(i,c)}, v{UF(i+1,c)}")
        a(f"ds_write_b128 v8, {Q(16 + 4*c)} offset:{U_STRIDE*c}")
    for i in range(8):
        for h in range(2):
            a(f"v_pk_mul_f32 {P(UF(i, 2*h))}, {P(UF(i, 2*h))}, s[{44+2*h}:{45+2*h}]")
    for c in range(4):
        for i in range(8):
            a(f"v_cvt_pk_bf16_f32 v{128 + 8*c + i}, v{UF(i,c)}, v{XF(i,c)}")
        a(f"ds_write_b128 v6, {Q(128 + 8*c)} offset:{XU_STRIDE*c}")
        a(f"ds_write_b128 v6, {Q(132 + 8*c)} offset:{XU_STRIDE*c + 16}")
    if stamp: a("s_memrealtime s[94:95]")
    a("s_waitcnt lgkmcnt(0)")
    a("s_barrier")
    if stamp: stamp_out(a, "K1S", 0, tid=256, slot=1)
    a("s_endpgm")

    a(f"""
K1_HELPER:
    s_lshl_b32 s9, s7, 3
    s_add_u32 s9, s9, s6
    s_cmp_ge_u32 s7, 8
    s_cbranch_scc1 K1_H2
    v_lshrrev_b32 v2, 4, v0
    s_lshl_b32 s10, s9, 5
    v_add_u32 v2, s10, v2
    v_mul_u32_u24 v3, 1280, v2
    v_and_b32 v4, 15, v0
    v_lshl_add_u32 v3, v4, 4, v3
    s_waitcnt lgkmcnt(0)
    """)
    for j in range(5): a(f"global_load_dwordx4 {Q(16 + 4*j)}, v3, s[16:17] offset:{256*j}")
    a(f"v_lshlrev_b32 v2, 2, v2\nv_add_u32 v2, {WS_STAT1}, v2")
    for j in range(5):
        a(f"s_waitcnt vmcnt({4-j})")
        for r in range(4):
            a(f"v_lshlrev_b32 v{40 + 8*j + 2*r}, 16, v{16 + 4*j + r}")
            a(f"v_and_b32 v{41 + 8*j + 2*r}, 0xffff0000, v{16 + 4*j + r}")
    if stamp: a("s_memrealtime s[92:93]")
    a("v_pk_add_f32 v[6:7], v[40:41], v[42:43]")
    a("v_pk_add_f32 v[8:9], v[44:45], v[46:47]")
    for k in range(4, 20, 2):
        a(f"v_pk_add_f32 v[6:7], v[6:7], {P(40 + 2*k)}")
        a(f"v_pk_add_f32 v[8:9], v[8:9], {P(42 + 2*k)}")
    def red16(r):
        for sh in (8, 4, 2, 1):
            a(f"v_add_f32_dpp v{r}, v{r}, v{r} row_ror:{sh} row_mask:0xf bank_mask:0xf")
    a("v_pk_add_f32 v[6:7], v[6:7], v[8:9]")
    a("v_add_f32 v6, v6, v7")
    red16(6)
    a(f"v_mul_f32 v10, {fhex(1/640)}, v6")
    for k in range(20):
        a(f"v_pk_add_f32 {P(40+2*k)}, {P(40+2*k)}, v[10:11] op_sel:[0,0] op_sel_hi:[1,0] neg_lo:[0,1] neg_hi:[0,1]")
    a("v_pk_mul_f32 v[6:7], v[40:41], v[40:41]")
    a("v_pk_mul_f32 v[8:9], v[42:43], v[42:43]")
    for k in range(2, 20, 2):
        a(f"v_pk_fma_f32 v[6:7], {P(40+2*k)}, {P(40+2*k)}, v[6:7]")
        a(f"v_pk_fma_f32 v[8:9], {P(42+2*k)}, {P(42+2*k)}, v[8:9]")
    a("v_pk_add_f32 v[6:7], v[6:7], v[8:9]")
    a("v_add_f32 v6, v6, v7")
    red16(6)
    a(f"""
    v_mul_f32 v6, {fhex(1/640)}, v6
    v_cvt_pk_bf16_f32 v6, 0, v6
    v_add_f32 v6, {fhex(1e-5)}, v6
    v_cvt_pk_bf16_f32 v6, 0, v6
    v_sqrt_f32 v6, v6
    v_cmp_eq_u32 vcc, 0, v4
    v_cvt_pk_bf16_f32 v6, v6, v10
    s_and_saveexec_b64 s[12:13], vcc
    global_store_dword v2, v6, s[42:43] sc1
    s_mov_b64 exec, s[12:13]
    s_waitcnt vmcnt(0)
    s_barrier
    s_cmp_lg_u32 s8, 0
    s_cbranch_scc1 K1_PF
    s_lshl_b32 s10, s9, 2
    v_mov_b32 v2, s10
    v_mov_b32 v3, 1
    s_mov_b64 exec, 1
    global_store_dword v2, v3, s[40:41] sc1
    s_mov_b64 exec, -1
    """)
    if stamp: a("s_memrealtime s[94:95]"); stamp_out(a, "K1H", 0, slot=2)
    a(f"""
    s_branch K1_PF
K1_H2:
    s_cmp_eq_u32 s7, 11
    s_cbranch_scc1 K1_H3
    s_sub_u32 s10, s9, 64
    s_lshl_b32 s10, s10, 7
    v_lshrrev_b32 v2, 3, v0
    v_mul_u32_u24 v3, 3072, v2
    v_and_b32 v4, 7, v0
    v_lshl_add_u32 v3, v4, 4, v3
    v_add_u32 v3, s10, v3
    s_waitcnt lgkmcnt(0)
    """)
    for i in range(10):
        a(f"global_load_dwordx4 {Q(16 + 4*i)}, v3, s[32:33]")
        if i < 9: a(f"v_add_u32 v3, {64*3072}, v3")
    for i in range(10):
        a(f"s_waitcnt vmcnt({9-i})")
        b = 64 if i == 0 else 72
        for r in range(4):
            a(f"v_lshlrev_b32 v{b + 2*r}, 16, v{16 + 4*i + r}")
            a(f"v_and_b32 v{b + 1 + 2*r}, 0xffff0000, v{16 + 4*i + r}")
        if i:
            for r in range(4): a(f"v_pk_add_f32 {P(64 + 2*r)}, {P(64 + 2*r)}, {P(72 + 2*r)}")
    a(f"""
    v_lshlrev_b32 v5, 5, v0
    ds_write_b128 v5, v[64:67]
    ds_write_b128 v5, v[68:71] offset:16
    s_lshl_b32 s11, s8, 11
    v_lshl_add_u32 v6, v1, 2, s11
    s_waitcnt lgkmcnt(0)
    s_barrier
    """)
    for i in range(8): a(f"ds_read_b32 v{16+i}, v6 offset:{256*i}")
    a("s_waitcnt lgkmcnt(0)")
    for i in range(1, 8): a(f"v_add_f32 v16, v16, v{16+i}")
    a(f"""
    v_lshlrev_b32 v5, 2, v0
    ds_write_b32 v5, v16 offset:16384
    s_waitcnt lgkmcnt(0)
    s_barrier
    s_cmp_lg_u32 s8, 0
    s_cbranch_scc1 K1_PF
    """)
    for i in range(8): a(f"ds_read_b32 v{16+i}, v5 offset:{16384 + 256*i}")
    a("s_waitcnt lgkmcnt(0)")
    for i in range(1, 8): a(f"v_add_f32 v16, v16, v{16+i}")
    a(f"""
    s_lshl_b32 s10, s10, 1
    s_add_u32 s10, s10, {WS_CSUM}
    v_add_u32 v5, s10, v5
    global_store_dword v5, v16, s[42:43]
    s_branch K1_PF
K1_H3:
    s_lshl_b32 s10, s6, 15
    s_add_u32 s10, s10, {WS_PST}
    v_lshl_add_u32 v2, v0, 4, s10
    v_mov_b32 v4, -1
    v_mov_b32 v5, -1
    v_mov_b32 v6, -1
    v_mov_b32 v7, -1
    s_waitcnt lgkmcnt(0)
    """)
    for i in range(4):
        a("global_store_dwordx4 v2, v[4:7], s[42:43]")
        if i < 3: a("v_add_u32 v2, 0x2000, v2")
    a(f"""
K1_PF:
    s_lshl_b32 s10, s7, 16
    v_lshl_add_u32 v2, v0, 7, s10
    s_mov_b32 s52, s32
    s_mov_b32 s53, s33
    s_mov_b32 s54, {640*1536*2}
    s_mov_b32 s55, 0x20000
    s_lshl_b32 s11, s6, 20
    s_add_u32 s56, s34, s11
    s_addc_u32 s57, s35, 0
    s_mov_b32 s58, 0x100000
    s_mov_b32 s59, 0x20000
    s_mul_i32 s11, s6, 122880
    s_add_u32 s60, s38, s11
    s_addc_u32 s61, s39, 0
    s_mov_b32 s62, 122880
    s_mov_b32 s63, 0x20000
    v_add_u32 v3, 0xc0000, v2
    v_add_u32 v4, 0x180000, v2
    buffer_load_dword v5, v2, s[56:59], 0 offen
    buffer_load_dword v5, v3, s[56:59], 0 offen
    buffer_load_dword v5, v2, s[60:63], 0 offen
    buffer_load_dword v5, v2, s[52:55], 0 offen
    buffer_load_dword v5, v3, s[52:55], 0 offen
    buffer_load_dword v5, v4, s[52:55], 0 offen
K1_END:
    s_endpgm
    """)
```

```python
import struct
WS_HT = 0
WS_STAT1 = 0x280000
WS_CSUM = 0x284000
WS_PST = 0x288000
WS_Z1 = 0x300000
WS_Z2 = 0x600000
WS_P = 0x900000
WS_STAMP = 0x1000000
def fhex(x): return "0x%08x" % struct.unpack("<I", struct.pack("<f", x))[0]
def stamp_out(a, tag, kidx, tid=0, slot=0, ws="s[42:43]"):
    a("s_waitcnt vmcnt(0)")
    a("s_memrealtime s[100:101]")
    a("s_waitcnt lgkmcnt(0)")
    for i, r in enumerate((90, 92, 94, 96, 98, 100)):
        a(f"v_mov_b32 v{2+i}, s{r}")
    a(f"s_lshl_b32 s88, s2, 5")
    a(f"s_add_u32 s88, s88, {WS_STAMP + (kidx*4 + slot)*8192}")
    a("v_mov_b32 v10, s88")
    a(f"v_cmp_eq_u32 vcc, {tid}, v0")
    a("s_and_saveexec_b64 s[86:87], vcc")
    a(f"s_cbranch_execz ST_{tag}")
    a(f"global_store_dwordx4 v10, v[2:5], {ws}")
    a(f"global_store_dwordx2 v10, v[6:7], {ws} offset:16")
    a(f"ST_{tag}:")
    a("s_mov_b64 exec, s[86:87]")
```

```python
import sys
from asmgen import Asm
from layout import *
import gen_k1

HEADER = open("sequential_preLN__ssm_conv_s4d__mixer_gmlp__prompt.s.ref").read().split("; Override launch")[0]

def kd(name, vgpr, sgpr=102, accum=None):
    accum = accum or ((vgpr + 3) // 4 * 4)
    return f""".p2align 6
.amdhsa_kernel {name}
  .amdhsa_next_free_vgpr {vgpr}
  .amdhsa_next_free_sgpr {sgpr}
  .amdhsa_accum_offset {accum}
  .amdhsa_group_segment_fixed_size 0
  .amdhsa_kernarg_size 120
  .amdhsa_user_sgpr_count 2
  .amdhsa_user_sgpr_kernarg_segment_ptr 1
  .amdhsa_system_sgpr_workgroup_id_x 1
.end_amdhsa_kernel
"""

def build(stamp=False, nk=4):
    ks = [("k1_kernel", gen_k1.gen_k1, 512, gen_k1.K1_LDS, 256)]
    try:
        import gen_gemm
        ks += [("k3_kernel", gen_gemm.gen_k3, 256, gen_gemm.K3_LDS, gen_gemm.K3_VGPR),
               ("k4_kernel", gen_gemm.gen_k4, 256, gen_gemm.K4_LDS, gen_gemm.K4_VGPR),
               ("k5_kernel", gen_gemm.gen_k5, 256, gen_gemm.K5_LDS, gen_gemm.K5_VGPR)]
    except ImportError:
        pass
    ks = ks[:nk]
    s = HEADER
    for name, g, nt, lds, vg in ks:
        s += f"; @launch kernel={name} grid=(256,1,1) block=({nt},1,1) lds={lds}\n"
    s += '.amdgcn_target "amdgcn-amd-amdhsa--gfx950"\n.text\n'
    for name, g, nt, lds, vg in ks:
        a = Asm(); g(a, stamp)
        s += f".globl {name}\n.p2align 8\n.type {name},@function\n" + a.pad()
    s += "CODE_END:\n    s_endpgm\n"
    s += '.section .rodata,"a"\n'
    for name, g, nt, lds, vg in ks:
        s += kd(name, vg)
    return s

if __name__ == "__main__":
    out = sys.argv[1]
    stamp = "stamp" in sys.argv
    nk = 4
    for x in sys.argv:
        if x.startswith("nk="): nk = int(x[3:])
    open(out, "w").write(build(stamp, nk))
```

```python
import re

TRANS = ("v_exp_f32", "v_log_f32", "v_rcp_f32", "v_rsq_f32", "v_sqrt_f32", "v_sin_f32", "v_cos_f32", "v_rcp_iflag_f32")

def _regs(tok):
    tok = tok.strip()
    tok = re.sub(r"^-|^abs\(|\)$|^\||\|$", "", tok)
    tok = tok.lstrip("-").replace("abs(", "").replace(")", "").replace("|", "")
    m = re.fullmatch(r"([vsa])(\d+)", tok)
    if m: return {tok}
    m = re.fullmatch(r"([vsa])\[(\d+):(\d+)\]", tok)
    if m: return {f"{m.group(1)}{i}" for i in range(int(m.group(2)), int(m.group(3)) + 1)}
    if tok in ("vcc", "vcc_lo", "vcc_hi"): return {"vcc"}
    if tok in ("exec", "exec_lo", "exec_hi"): return {"exec"}
    if tok == "m0": return {"m0"}
    return set()

class Ins:
    def __init__(self, text):
        self.text = text
        t = text.split(";")[0].strip()
        self.label = t.endswith(":")
        self.directive = t.startswith(".")
        self.mn = ""
        self.dst = set(); self.src = set()
        self.srcAB = set(); self.srcC = set()
        if self.label or self.directive or not t:
            return
        parts = t.split(None, 1)
        mn = self.mn = parts[0]
        rest = parts[1] if len(parts) > 1 else ""
        ops = []; depth = 0; cur = ""
        for ch in rest:
            if ch == "[": depth += 1
            if ch == "]": depth -= 1
            if ch == "," and depth == 0: ops.append(cur); cur = ""
            else: cur += ch
        if cur.strip(): ops.append(cur)
        ops = [o.strip() for o in ops]
        mods = ""
        if ops:
            last = ops[-1].split(None, 1)
            ops[-1] = last[0]
            mods = last[1] if len(last) > 1 else ""
        self.ops = ops; self.mods = mods
        R = [_regs(o) for o in ops]
        self.valu = mn.startswith("v_") and not mn.startswith("v_mfma")
        self.mfma = mn.startswith("v_mfma")
        self.salu = mn.startswith("s_") and not mn.startswith(("s_load", "s_waitcnt", "s_nop", "s_barrier", "s_branch", "s_cbranch", "s_endpgm", "s_sleep", "s_memtime", "s_memrealtime", "s_setprio", "s_buffer_load"))
        self.ds = mn.startswith("ds_")
        self.vmem = mn.startswith(("buffer_", "global_", "flat_"))
        self.trans = mn.replace("_e32", "").replace("_e64", "") in TRANS
        self.dpp = ("row_" in mods or "quad_perm" in mods or "wave_" in mods or "_dpp" in mn)
        self.lds_dma = self.vmem and (re.search(r"\blds\b", mods) is not None or "load_lds" in mn)
        un = lambda l: set().union(*l) if l else set()
        if self.mfma:
            self.dst = R[0]; self.srcAB = R[1] | R[2]; self.srcC = R[3]; self.src = self.srcAB | self.srcC
            self.passes = 8 if "32x32" in mn else 4
        elif self.valu:
            if mn.startswith("v_cmp"):
                self.dst = R[0]; self.src = un(R[1:])
                if mn.startswith("v_cmpx"): self.dst |= {"exec"}
            elif mn.startswith(("v_add_co", "v_sub_co", "v_subrev_co", "v_addc_co", "v_subb_co", "v_mad_u64", "v_div_scale")):
                self.dst = R[0] | R[1]; self.src = un(R[2:])
            elif mn.startswith("v_permlane") and "swap" in mn:
                self.dst = R[0] | R[1]; self.src = R[0] | R[1]
            elif mn.startswith("v_swap"):
                self.dst = R[0] | R[1]; self.src = R[0] | R[1]
            else:
                self.dst = R[0]; self.src = un(R[1:])
                if mn.startswith(("v_fmac", "v_pk_fmac", "v_dot2c", "v_writelane")) or self.dpp: self.src |= R[0]
        elif self.ds:
            if mn.startswith(("ds_read", "ds_bpermute", "ds_permute", "ds_swizzle", "ds_add_rtn")):
                self.dst = R[0]; self.src = un(R[1:])
            else:
                self.src = un(R)
            if "addtid" in mn: self.src |= {"m0"}
        elif self.vmem:
            if self.lds_dma:
                self.src = un(R) | {"m0"}
            elif "load" in mn:
                self.dst = R[0]; self.src = un(R[1:])
            else:
                self.src = un(R)
                self.store_data = R[0] if mn.startswith("buffer_") else R[1]
                self.wide = mn.endswith(("x3", "x4"))
        elif mn.startswith("s_"):
            if mn.startswith(("s_cmp", "s_cbranch", "s_branch", "s_waitcnt", "s_nop", "s_barrier", "s_endpgm", "s_sleep", "s_setprio", "s_bitcmp")):
                self.src = un(R)
            else:
                self.dst = R[0] if R else set(); self.src = un(R[1:])
                if "saveexec" in mn: self.dst |= {"exec"}; self.src |= {"exec"}

    def states(self):
        if self.label or self.directive or not self.mn: return 0
        if self.mn == "s_nop": return int(self.ops[0], 0) + 1
        return 1

def need(p, c):
    n = 0
    vd = {r for r in p.dst if r[0] in "va" and r != "vcc"}
    sd = {r for r in p.dst if r[0] == "s" or r == "vcc"}
    if p.valu:
        if p.trans and c.valu and not c.trans and (vd & c.src): n = max(n, 1)
        if p.trans and (c.mfma) and (vd & c.src): n = max(n, 2)
        if c.mfma and (vd & c.src): n = max(n, 2)
        if c.valu and c.dpp and (vd & c.src): n = max(n, 2)
        if c.valu and c.mn.startswith("v_permlane") and (vd & c.src): n = max(n, 2)
        if c.valu and c.mn.startswith(("v_readlane", "v_readfirstlane")) and (vd & c.src): n = max(n, 1)
        if sd:
            if c.valu and (sd & c.src):
                n = max(n, 4 if c.mn.startswith(("v_readlane", "v_writelane")) else 2)
            if c.valu and "vcc" in sd and c.mn.startswith(("v_cndmask", "v_addc", "v_subb")): n = max(n, 2)
            if c.vmem and (sd & c.src): n = max(n, 5)
            if (c.salu or c.mn.startswith(("s_load", "s_cbranch_vcc"))) and ((sd & c.src) or (c.mn.startswith("s_cbranch_vcc") and "vcc" in sd)): n = max(n, 1)
        if "exec" in p.dst:
            if c.valu and c.dpp: n = max(n, 5)
            if c.mfma or (c.valu and c.mn.startswith(("v_readlane", "v_readfirstlane", "v_writelane", "v_permlane"))): n = max(n, 4)
        if "op_sel" in p.mods and not p.mn.startswith("v_pk") and c.valu and (vd & (c.src | c.dst)): n = max(n, 1)
        if p.mn.startswith("v_dot"):
            if (c.valu or c.mfma or c.ds or c.vmem) and (vd & (c.src | c.dst)):
                same = c.mn == p.mn and len(c.ops) > 3 and not (vd & (_regs(c.ops[1]) | _regs(c.ops[2])))
                if not same: n = max(n, 3)
    if p.mfma:
        ps = p.passes
        if c.mfma:
            if vd & c.srcAB: n = max(n, {4: 8, 8: 12}[ps])
            if vd & c.srcC and not (c.srcC == vd and c.passes == ps): n = max(n, {4: 6, 8: 10}[ps])
            if (vd & c.dst) and not (c.srcC == vd): n = max(n, {4: 8, 8: 12}[ps])
        elif (c.valu or c.ds or c.vmem) and (vd & (c.src | c.dst)): n = max(n, {4: 8, 8: 12}[ps])
        if c.valu and (p.srcC & c.dst): n = max(n, {4: 3, 8: 7}[ps])
    if p.salu and "m0" in p.dst and (c.lds_dma or (c.ds and "addtid" in c.mn)): n = max(n, 1)
    if p.vmem and getattr(p, "wide", False) and (p.store_data & c.dst): n = max(n, 2 if c.valu else 1)
    return n

class Asm:
    def __init__(self):
        self.lines = []
    def __call__(self, s):
        for l in s.split("\n"):
            l = l.strip()
            if l: self.lines.append(l)
    def pad(self):
        out = []
        hist = []
        for l in self.lines:
            i = Ins(l)
            if i.label or i.directive or not i.mn:
                out.append(i); continue
            req = 0; dist = 0
            for p in reversed(hist):
                r = need(p, i) - dist
                req = max(req, r)
                dist += p.states()
                if dist > 20: break
            if req > 0:
                nop = Ins(f"s_nop {req - 1}")
                out.append(nop); hist.append(nop)
            out.append(i); hist.append(i)
            hist = hist[-24:]
        return "\n".join((x.text if (x.label or x.directive) else "    " + x.text) for x in out) + "\n"


import subprocess, tempfile, os
E64_OK = ("v_mov_b32", "v_add_f32", "v_mul_f32", "v_sub_f32", "v_max_f32", "v_lshlrev_b32", "v_lshrrev_b32", "v_and_b32", "v_add_u32",
          "v_exp_f32", "v_rcp_f32", "v_sin_f32", "v_cos_f32", "v_fract_f32", "v_sqrt_f32", "v_xor_b32", "v_sub_u32", "v_max_u32", "v_min_u32")

def align_runs(text, minrun=5):
    with tempfile.TemporaryDirectory() as d:
        sp = os.path.join(d, "a.s"); op = os.path.join(d, "a.o")
        open(sp, "w").write(text)
        r = subprocess.run(["clang", "-x", "assembler", "-target", "amdgcn-amd-amdhsa", "-mcpu=gfx950", "-c", sp, "-o", op], capture_output=True, text=True)
        assert r.returncode == 0, r.stderr
        dis = subprocess.run(["llvm-objdump", "-d", "--mcpu=gfx950", op], capture_output=True, text=True).stdout
    ins = []
    for l in dis.split("\n"):
        m = re.search(r"^\s+(\S+).*// ([0-9A-F]+): ((?:[0-9A-F]{8} ?)+)", l)
        if m: ins.append((m.group(1), int(m.group(2), 16), 4 * len(m.group(3).split())))
    lines = text.split("\n")
    idx = []
    k = 0
    intext = False
    for n, l in enumerate(lines):
        t = l.split(";")[0].strip()
        if t == ".text": intext = True
        if t.startswith(".section"): intext = False
        if not intext or not t: continue
        if t.startswith(".p2align"):
            idx.append((n, -1))
            while k < len(ins) and ins[k][1] % 256 != 0 and ins[k][0] in ("s_nop", "s_code_end", "v_cndmask_b32_e32"): k += 1
            continue
        if t.startswith(".") or t.endswith(":"): continue
        mn = t.split()[0]
        assert ins[k][0].startswith(mn.replace("_e64", "").replace("_e32", "")), (l, ins[k])
        idx.append((n, ins[k][2])); k += 1
    off = 0; fixes = 0
    for p, (n, sz) in enumerate(idx):
        if sz < 0: off = 0; continue
        if sz == 8 and off % 8 == 4 and p > 0 and idx[p-1][1] == 4:
            run = 0
            while p + run < len(idx) and idx[p + run][1] == 8: run += 1
            pl = lines[idx[p-1][0]].strip(); pm = pl.split()[0]
            if pm in E64_OK and "dpp" not in pl and "row_" not in pl and run >= 2:
                lines[idx[p-1][0]] = "    " + pl.replace(pm, pm + "_e64", 1); off += 4; fixes += 1
            elif run >= minrun:
                lines[n] = "    s_nop 0\n" + lines[n]; off += 4; fixes += 1
        off += sz
    return "\n".join(lines)
```

```python
import numpy as np
from layout import *

def pipeline(a, j0, j1, reads, mfmas, pre, tail_reads=None):
    lg = Cnt(a, "lgkmcnt", 15)
    def emit(r): a(r[1]); lg.issue(r[0])
    for j in (j0, j0 + 1):
        for r in reads(j): emit(r)
    for j in range(j0, j1):
        pre(j)
        nxt = reads(j + 2) if j + 2 < j1 else (list(tail_reads) if (tail_reads and j == j1 - 1) else [])
        ms = mfmas(j)
        extra = len(nxt) - len(ms)
        for k, (tags, text) in enumerate(ms):
            lg.wait(tags)
            a(text)
            if nxt: emit(nxt.pop(0))
            if extra > 0 and k >= len(ms) - extra and nxt: emit(nxt.pop(0))
    return lg

K3_NS = 5
K3_RING = 81920
K3_TR = K3_RING + K3_NS * 12288
K3_ST = K3_TR + 4 * 32 * 112
K3_LDS = K3_ST + 512

Z1R = 20

def gen_k3(a):
    a("""
PH3:
    v_and_b32 v2, 15, v1
    v_lshrrev_b32 v3, 4, v1
    s_lshr_b32 s10, s3, 1
    s_and_b32 s11, s3, 1
    """)
    a(f"""
    v_lshrrev_b32 v9, 3, v1
    v_and_b32 v10, 7, v1
    v_and_b32 v11, 6, v9
    v_xor_b32 v10, v10, v11
    v_lshlrev_b32 v9, 7, v9
    v_lshl_add_u32 v5, v10, 4, v9
    s_mul_i32 s12, s46, 81920
    v_add_u32 v5, s12, v5
    s_lshl_b32 s12, s3, 11
    v_add_u32 v4, s12, v5
    s_mul_i32 s59, s3, 3072
    s_mul_i32 s12, s47, {20*6144}
    s_add_u32 s12, s12, s59
    v_lshl_add_u32 v6, v1, 4, s12
    s_lshl_b32 s14, s3, 11
    s_add_u32 s59, s59, {K3_RING}
    """)
    srd(a, 48, 42, WS_HT, 640 * 4096)
    srd(a, 52, 42, WS_WI, 640 * 3072)
    def mk_dma(vm):
        def dma_h(i):
            if i >= 10: return
            a(f"s_add_u32 m0, s14, {8192*i}")
            a(f"s_mov_b32 s56, {8192*i}")
            a(f"buffer_load_dwordx4 v4, s[48:51], s56 offen {SC} lds")
            a(f"buffer_load_dwordx4 v4, s[48:51], s56 offen offset:1024 {SC} lds")
            vm.issue(i, 2)
        def dma(i):
            if i >= 20: return
            a(f"s_add_u32 m0, s59, {12288*(i % K3_NS)}")
            a(f"s_mov_b32 s57, {12288*(i % 10) + (8*20*6144 if i < 10 else 0)}")
            for e in range(3):
                a(f"buffer_load_dwordx4 v6, s[52:55], s57 offen offset:{1024*e} {SC} lds")
            vm.issue(i, 3)
        return dma, dma_h
    CS = lambda nt: 24 + 4*nt
    ACC = lambda mt, nt: 36 + 12*mt + 4*nt
    FH = lambda b, mt: 60 + 20*b + 4*mt
    FW = lambda b, nt: 68 + 20*b + 4*nt
    TMP = 100; GC = 120
    MR = lambda mt: 122 + 2*mt
    ST = 20; SA = 20; SB = 248; ONE = 252
    def csload(vm, ph):
        a(f"""
        s_mul_i32 s12, s47, 384
        s_mul_i32 s13, s11, 192
        s_add_u32 s12, s12, s13
        s_add_u32 s12, s12, {WS_CSUM + (3072 if ph == 0 else 0)}
        v_lshl_add_u32 v9, v3, 4, s12
        """)
        for nt in range(3): a(f"global_load_dwordx4 {Q(CS(nt))}, v9, s[42:43] offset:{64*nt} {SC}")
        vm.issue("cs", 3)
    def setup():
        a(f"""
        v_lshrrev_b32 v9, 2, v1
        v_lshrrev_b32 v10, 1, v9
        v_and_b32 v10, 3, v10
        v_and_b32 v11, 3, v2
        v_lshlrev_b32 v11, 3, v11
        s_cmp_lt_u32 s8, 4
        s_cselect_b32 s63, s11, 0
        s_lshl_b32 s12, s10, 1
        s_add_u32 s12, s12, s63
        v_xor_b32 v12, s12, v10
        v_xor_b32 v13, 1, v12
        v_lshl_add_u32 v19, v9, 7, v11
        v_lshl_add_u32 v12, v12, 5, v19
        v_lshl_add_u32 v13, v13, 5, v19
        v_add_u32 v14, 40960, v12
        v_add_u32 v15, 40960, v13
        s_mul_i32 s12, s11, 3072
        s_add_u32 s12, s12, {K3_RING}
        v_lshl_add_u32 v16, v1, 4, s12
        s_lshl_b32 s12, s10, 8
        s_lshl_b32 s13, s63, 7
        s_add_u32 s12, s12, s13
        s_add_u32 s12, s12, {K3_ST}
        v_lshl_add_u32 v17, v2, 3, s12
        v_xor_b32 v7, 0x80, v17
        v_mov_b32 v{GC}, {fhex(-2.302208198)}
        v_mov_b32 v{GC+1}, {fhex(-0.1029432397)}
        """)
    def reads(j):
        st = j >> 1; b = j % 3; kk = j % 20
        ho = kk * 4096; hb = 12
        if ho >= 40960: ho -= 40960; hb = 14
        wo = 12288 * (st % K3_NS) + (j & 1) * 6144
        h = [((j, "h", mt), f"ds_read_b64_tr_b16 {P(FH(b, mt) + 2*h)}, v{hb+mt} offset:{ho + 2048*h}") for mt in range(2) for h in range(2)]
        w = [((j, "w", nt), f"ds_read_b128 {Q(FW(b, nt))}, v16 offset:{wo + 1024*nt}") for nt in range(3)]
        if 10 <= j < 20: w = []
        return h[:2] + w + h[2:]
    WR = lambda j, nt: 128 + 12*(j - 10) + 4*nt
    def mainloop(j0, vm):
        def mf(j):
            b = j % 3
            return [({(j, "h", mt), (j, "w", nt)},
                     f"v_mfma_f32_16x16x32_bf16 {Q(ACC(mt, nt))}, {Q(WR(j, nt) if 10 <= j < 20 else FW(b, nt))}, {Q(FH(b, mt))}, " + ("0" if j == j0 else Q(ACC(mt, nt))))
                    for mt in range(2) for nt in range(3)] + ([] if j0 else [
                    ({(j, "h", 0)}, f"v_mfma_f32_16x16x32_bf16 {Q(SA)}, {Q(ONE)}, {Q(FH(b, 0))}, " + ("0" if j == 0 else Q(SA))),
                    ({(j, "h", 0)}, f"v_mfma_f32_16x16x32_bf16 {Q(SB)}, {Q(FH(b, 0))}, {Q(FH(b, 0))}, " + ("0" if j == 0 else Q(SB)))])
        def pre(j):
            if j % 2 == 0 and j + 2 < j0 + 20:
                stamp(a, (j % 20) // 2 + 1, "p3a" if j < 20 else "p3b")
                vm.wait({j // 2 + 1}); a("s_barrier")
            if j == 10: vm.wait({"wr"})
        pipeline(a, j0, j0 + 20, reads, mf, pre)
    def gelu_tile(acc, cs, mr):
        t = TMP
        for h in (0, 2): a(f"v_pk_fma_f32 {P(acc+h)}, {P(cs+h)}, {P(mr)}, {P(acc+h)} op_sel:[0,0,0] op_sel_hi:[1,0,1] neg_lo:[1,0,0] neg_hi:[1,0,0]")
        for h in (0, 2): a(f"v_pk_mul_f32 {P(acc+h)}, {P(acc+h)}, {P(mr)} op_sel:[0,1] op_sel_hi:[1,1]")
        for r in range(4): a(f"v_cvt_pk_bf16_f32 v{acc+r}, 0, v{acc+r}")
        for h in (0, 2): a(f"v_pk_mul_f32 {P(t+h)}, {P(acc+h)}, {P(acc+h)}")
        for h in (0, 2): a(f"v_pk_fma_f32 {P(t+h)}, {P(t+h)}, {P(GC)}, {P(GC)} op_sel:[0,1,0] op_sel_hi:[1,1,0]")
        for h in (0, 2): a(f"v_pk_mul_f32 {P(t+h)}, {P(t+h)}, {P(acc+h)}")
        for r in range(4): a(f"v_exp_f32 v{t+r}, v{t+r}")
        for r in range(4): a(f"v_add_f32 v{t+r}, 1.0, v{t+r}")
        for r in range(4): a(f"v_rcp_f32 v{t+r}, v{t+r}")
        for h in (0, 2): a(f"v_pk_mul_f32 {P(acc+h)}, {P(acc+h)}, {P(t+h)}")
    def rd_mr():
        for mt in range(2): a(f"ds_read_b64 {P(MR(mt))}, v{(17, 7)[mt]}")

    setup()
    a("s_cmp_ge_u32 s8, 4\ns_cbranch_scc1 K3_Y")
    vm = Cnt(a, "vmcnt", 63); dma, dma_h = mk_dma(vm)
    a(f"s_mul_i32 s12, s10, 6144\nv_subrev_u32 v9, s12, v6")
    for j in range(10, 20):
        a(f"s_mov_b32 s57, {8*20*6144 + 6144*j}")
        for nt in range(3): a(f"buffer_load_dwordx4 {Q(WR(j, nt))}, v9, s[52:55], s57 offen offset:{1024*nt} {SC}")
    vm.issue("wr", 30)
    csload(vm, 0)
    for r in range(4): a(f"v_mov_b32 v{ONE+r}, 0x3f803f80")
    a("s_barrier")
    a("s_barrier")
    stamp(a, 5)
    mainloop(0, vm)
    a("s_barrier")
    stamp(a, 6)
    a(f"""
    s_barrier
    v_and_b32 v9, 3, v1
    v_cmp_eq_u32 vcc, 1, v9
    v_cndmask_b32 v{SA+1}, v{SB}, v{SB+1}, vcc
    v_cmp_eq_u32 vcc, 2, v9
    v_cndmask_b32 v{SA+1}, v{SA+1}, v{SB+2}, vcc
    v_cmp_eq_u32 vcc, 3, v9
    v_cndmask_b32 v{SA+1}, v{SA+1}, v{SB+3}, vcc
    """)
    ln_finish(a, SA, SA+1, 640, TMP)
    a(f"""
    s_mov_b32 exec_lo, 0x00f0000f
    s_mov_b32 exec_hi, 0xf0000f00
    ds_write_b64 v17, {P(SA)}
    s_mov_b64 exec, -1
    s_waitcnt lgkmcnt(0)
    s_barrier
    """)
    rd_mr()
    dma(15)
    vm.wait({"cs"}); a("s_waitcnt lgkmcnt(0)")
    SQ = lambda mt: 104 + 4*mt
    k = 0
    for mt in range(2):
        for nt in range(3):
            acc = ACC(mt, nt)
            gelu_tile(acc, CS(nt), MR(mt))
            for r in range(4): a(f"v_cvt_pk_bf16_f32 v{acc+r}, 0, v{acc+r}")
            if nt == 0:
                a(f"v_pk_add_f32 {P(SQ(mt))}, {P(acc)}, {P(acc+2)}")
                a(f"v_pk_mul_f32 {P(SQ(mt)+2)}, {P(acc)}, {P(acc)}")
                a(f"v_pk_fma_f32 {P(SQ(mt)+2)}, {P(acc+2)}, {P(acc+2)}, {P(SQ(mt)+2)}")
            else:
                for h in (0, 2):
                    a(f"v_pk_add_f32 {P(SQ(mt))}, {P(SQ(mt))}, {P(acc+h)}")
                    a(f"v_pk_fma_f32 {P(SQ(mt)+2)}, {P(acc+h)}, {P(acc+h)}, {P(SQ(mt)+2)}")
            vm.wait({13 + k}); stamp(a, k + 3, "p3b"); a("s_barrier"); dma(16 + k); k += 1
    for mt in range(2):
        a(f"v_add_f32 v{ST+2*mt}, v{SQ(mt)}, v{SQ(mt)+1}")
        a(f"v_add_f32 v{ST+2*mt+1}, v{SQ(mt)+2}, v{SQ(mt)+3}")
    allred_g(a, [ST, ST+1, ST+2, ST+3], TMP)
    a(f"""
    v_and_b32 v9, 16, v1
    v_cmp_eq_u32 vcc, 0, v9
    s_lshl_b32 s12, s46, 13
    s_lshl_b32 s13, s10, 8
    s_add_u32 s12, s12, s13
    s_add_u32 s12, s12, {WS_PST}
    v_cndmask_b32 v{ST}, v{ST+2}, v{ST}, vcc
    v_cndmask_b32 v{ST+1}, v{ST+3}, v{ST+1}, vcc
    v_max_f32 v{ST+1}, 0, v{ST+1}
    s_lshl_b32 s13, s11, 4
    v_and_b32 v9, 31, v1
    v_xor_b32 v9, s13, v9
    v_lshl_add_u32 v9, v9, 3, s12
    s_lshl_b32 s13, s47, 1
    s_add_u32 s13, s13, s11
    s_lshl_b32 s13, s13, 9
    v_add_u32 v10, s13, v9
    s_mov_b32 exec_hi, 0
    global_store_dwordx2 v10, {P(ST)}, s[42:43] sc1
    s_mov_b32 exec_hi, -1
    v_lshrrev_b32 v10, 5, v1
    v_lshl_add_u32 v9, v10, 12, v9
    """)
    vm.issue("pst")
    vm.wait({19}); a("s_barrier")
    stamp(a, 1, "cv2")
    wsetup(a, 112, 0, 16384)
    for u in range(4): wdma(a, 112, u, u)
    a(f"""
    s_mul_i32 s12, s3, {32*112}
    s_add_u32 s12, s12, {K3_TR}
    v_mul_u32_u24 v11, 112, v2
    v_lshl_add_u32 v11, v3, 3, v11
    v_add_u32 v11, s12, v11
    s_lshl_b32 s13, s11, 1
    v_xor_b32 v13, s13, v3
    v_lshrrev_b32 v12, 2, v2
    v_lshl_add_u32 v12, v13, 3, v12
    v_mul_u32_u24 v12, 112, v12
    v_and_b32 v13, 3, v2
    v_lshl_add_u32 v12, v13, 3, v12
    v_add_u32 v12, s12, v12
    s_lshl_b32 s12, s47, 5
    s_add_u32 s12, s12, s46
    s_mul_i32 s12, s12, 12288
    s_mul_i32 s13, s3, 3072
    s_add_u32 s12, s12, s13
    s_add_u32 s12, s12, {WS_Z2}
    v_lshl_add_u32 v10, v1, 4, s12
    """)
    G = 60
    a("s_mov_b32 s58, 0")
    a("K3_POLL:")
    for k in range(8): a(f"global_load_dwordx2 {P(G + 2*k)}, v9, s[42:43] offset:{512*k} sc1")
    a("s_waitcnt vmcnt(0)")
    a(f"v_max_u32 v13, v{G}, v{G+1}")
    for k in range(1, 8): a(f"v_max3_u32 v13, v13, v{G+2*k}, v{G+2*k+1}")
    a(f"""
    v_cmp_eq_u32 vcc, -1, v13
    s_add_u32 s58, s58, 1
    s_cbranch_vccz K3_READY
    s_sleep 1
    s_cmp_lt_u32 s58, {SPIN}
    s_cbranch_scc1 K3_POLL
K3_READY:
    """)
    stamp(a, 2, "cv2")
    for k in (0, 2, 4, 6): a(f"v_pk_add_f32 {P(G+2*k)}, {P(G+2*k)}, {P(G+2*k+2)}")
    a(f"v_pk_add_f32 {P(G)}, {P(G)}, {P(G+4)}\nv_pk_add_f32 {P(G+8)}, {P(G+8)}, {P(G+12)}\nv_pk_add_f32 {P(G)}, {P(G)}, {P(G+8)}")
    a(f"""
    v_mov_b32 v{G+2}, v{G}
    v_mov_b32 v{G+3}, v{G+1}
    v_permlane32_swap_b32 v{G}, v{G+2}
    v_permlane32_swap_b32 v{G+1}, v{G+3}
    v_pk_add_f32 {P(G)}, {P(G)}, {P(G+2)}
    """)
    ln_finish(a, G, G+1, 768, G+4)
    a(f"""
    v_mov_b32 v{G+2}, v{G}
    v_mov_b32 v{G+3}, v{G+1}
    v_permlane16_swap_b32 v{G}, v{G+2}
    v_permlane16_swap_b32 v{G+1}, v{G+3}
    """)
    O = 80
    for nt in range(3):
        for mt in range(2):
            acc = ACC(mt, nt); mr = G + 2*mt
            for h in (0, 2): a(f"v_pk_add_f32 {P(acc+h)}, {P(acc+h)}, {P(mr)} op_sel:[0,0] op_sel_hi:[1,0] neg_lo:[0,1] neg_hi:[0,1]")
            for r in range(4): a(f"v_cvt_pk_bf16_f32 v{acc+r}, 0, v{acc+r}")
            for h in (0, 2): a(f"v_pk_mul_f32 {P(acc+h)}, {P(acc+h)}, {P(mr)} op_sel:[0,1] op_sel_hi:[1,1]")
            a(f"v_cvt_pk_bf16_f32 v{acc}, v{acc}, v{acc+1}")
            a(f"v_cvt_pk_bf16_f32 v{acc+1}, v{acc+2}, v{acc+3}")
            a(f"ds_write_b64 v11, {P(acc)} offset:{16*112*mt + 32*nt}")
        for h in range(2):
            a(f"ds_read_b64_tr_b16 {P(O + 4*nt + 2*h)}, v12 offset:{32*nt + 4*112*h}")
        if nt:
            a(f"s_waitcnt lgkmcnt(4)")
            a(f"global_store_dwordx4 v10, {Q(O + 4*(nt-1))}, s[42:43] offset:{1024*(nt-1)} {SC}")
    a(f"s_waitcnt lgkmcnt(0)")
    a(f"global_store_dwordx4 v10, {Q(O + 8)}, s[42:43] offset:2048 {SC}")
    a(f"""
    s_lshl_b32 s12, s47, 10
    s_add_u32 s12, s12, {C_S2}
    s_lshl_b32 s13, s6, 7
    s_add_u32 s13, s13, s12
    s_waitcnt vmcnt(0)
    """)
    arrive_last(a, "K3A", LDS_FLAG + 20, 13, 10)
    stamp(a, 7); stamp(a, 3, "cv2")
    a("s_barrier")
    for u in range(4): wread(a, 112, u, u)
    for u in range(4):
        a(f"s_waitcnt lgkmcnt({12 - 4*u})")
        wdma(a, 112, 4 + u, u)
    for u in range(4):
        a(f"s_waitcnt vmcnt({12 - 4*u})")
        wread(a, 112, 4 + u, u)
    a("s_waitcnt lgkmcnt(0)")
    stamp(a, 4, "cv2")
    a("s_branch PH4")

    a("K3_Y:")
    vm = Cnt(a, "vmcnt", 63); dma, dma_h = mk_dma(vm)
    for i in range(K3_NS): dma(i)
    csload(vm, 1)
    a("s_cmp_lg_u32 s8, 4\ns_cbranch_scc1 K3_NP")
    poll8(a, "K3O", C_WO, 8, 20, sleep=8)
    a(f"s_lshl_b32 s12, s6, 10\ns_add_u32 s12, s12, {C_S1}")
    poll8(a, "S1", "s12", 20, 20, sleep=OPT.get("sl1", 1))
    a("K3_NP:\ns_barrier")
    stamp(a, 5)
    for i in range(5): dma_h(i)
    for s in range(10):
        stamp(a, s + 1, "p3c")
        vm.wait({s})
        stamp(a, s + 1, "p3a")
        a("s_barrier")
        dma_h(5 + 2*s); dma_h(6 + 2*s)
        if 2 <= s <= 6: dma(s + 8)
        if s == 6:
            a(f"""
            s_lshl_b32 s12, s7, 15
            s_lshl_b32 s13, s6, 20
            s_add_u32 s12, s12, s13
            s_lshl_b32 s13, s3, 13
            s_add_u32 s12, s12, s13
            v_bfe_u32 v9, v1, 4, 1
            v_lshlrev_b32 v9, 12, v9
            v_lshl_add_u32 v9, v2, 7, v9
            v_add_u32 v9, s12, v9
            global_load_dword v127, v9, s[34:35] {OPT.get('ntw', '')}
            s_lshl_b32 s12, s7, 2
            s_add_u32 s12, s12, s3
            s_mul_i32 s12, s12, {60*128}
            s_add_u32 s12, s12, {WS_WO}
            v_min_u32 v9, 59, v1
            v_lshl_add_u32 v9, v9, 7, s12
            global_load_dword v127, v9, s[42:43] sc1
            """)
            vm.issue("t", 2)
            if OPT.get("warm", 0):
                a(f"s_lshl_b32 s12, s47, 10\ns_lshl_b32 s13, s6, 7\ns_add_u32 s12, s12, s13\ns_add_u32 s12, s12, {C_S2}")
                warm(a, 12, 8); vm.issue("t")
    vm.wait({10}); a("s_barrier")
    stamp(a, 6)
    mainloop(20, vm)
    rd_mr()
    stamp(a, 7)
    a("s_waitcnt lgkmcnt(0)")
    for nt in range(3):
        for mt in range(2):
            acc = ACC(mt, nt)
            gelu_tile(acc, CS(nt), MR(mt))
        for mt in range(2):
            acc = ACC(mt, nt); o = Z1R + 4*nt + 2*mt
            a(f"v_cvt_pk_bf16_f32 v{o}, v{acc}, v{acc+1}")
            a(f"v_cvt_pk_bf16_f32 v{o+1}, v{acc+2}, v{acc+3}")
    stamp(a, 1, "cv2")
    wo_setup(a)
    stamp(a, 2, "cv2")
    a("s_barrier")
    for c in range(3): wo(a, c)
    stamp(a, 3, "cv2")
    a(f"""
    s_cmp_lg_u32 s8, 4
    s_cbranch_scc1 PH4
    s_lshl_b32 s12, s47, 10
    s_add_u32 s12, s12, {C_S2}
    """)
    poll8(a, "S2", "s12", 4, 10, sleep=OPT.get("sl2", 1))
    stamp(a, 4, "cv2")

def decode_z2(v):
    v = v.reshape(8, 32, 2, 6, 4, 16, 8)
    return v.transpose(1, 2, 4, 6, 0, 3, 5).reshape(2048, 768)
def decode_p(v):
    v = v.reshape(32, 4, 8, 3, 4, 16, 2, 4)
    v = v.transpose(0, 1, 5, 2, 3, 6, 4, 7).reshape(2048, 8, 6, 16)
    return v[:, :, [0, 1, 2, 4, 5, 3], :].reshape(2048, 768)

K4_NS = 4
SLOT = 24576
RED = 0
XCH = 94208
WOC = [98304, 118784, 139264, 73728, 0, 20480]
K5_H = 40960
LDS_TOTAL = 163840

def wo_setup(a):
    a(f"""
    s_mul_i32 s62, s3, 5120
    s_mul_i32 s12, s47, {24*5120}
    s_add_u32 s12, s12, s62
    v_lshl_add_u32 v4, v1, 4, s12
    """)
    srd(a, 64, 42, WS_WO, 768 * 1280)

def wo(a, c):
    a(f"s_add_u32 m0, s62, {WOC[c]}")
    a(f"s_mov_b32 s56, {20480*c}")
    for e in range(4): a(f"buffer_load_dwordx4 v4, s[64:67], s56 offen offset:{1024*e} {SC} lds")
    a(f"s_add_u32 m0, s62, {WOC[c] + 4096}")
    a(f"s_mov_b32 s56, {20480*c + 4096}")
    a(f"buffer_load_dwordx4 v4, s[64:67], s56 offen {SC} lds")

def gen_k4(a):
    vm = Cnt(a, "vmcnt", 63)
    ACC = lambda mt, p: 32 + 24*mt + 4*p
    FZ = lambda b, p: 80 + 24*b + 4*p
    a(f"""
PH4:
    s_lshr_b32 s60, s8, 2
    s_lshl_b32 s60, s60, 1
    s_add_u32 s60, s60, s11
    s_mul_i32 s12, s60, 6144
    v_lshl_add_u32 v12, v1, 4, s12
    v_add_u32 v13, {2*SLOT}, v12
    s_mul_i32 s13, s10, 3072
    s_add_u32 s61, s12, s13
    s_cmp_eq_u32 s60, 3
    s_cselect_b32 s12, 1, 0
    s_xor_b32 s12, s12, s10
    s_mul_i32 s12, s12, 3072
    s_mul_i32 s13, s60, {16*6144}
    s_add_u32 s12, s12, s13
    s_mul_i32 s13, s47, {32*12288}
    s_add_u32 s12, s12, s13
    v_lshl_add_u32 v6, v1, 4, s12
    s_lshl_b32 s12, s46, 7
    s_lshl_b32 s13, s10, 6
    s_add_u32 s12, s12, s13
    v_lshl_add_u32 v11, v2, 1, s12
    global_load_ushort v16, v11, s[36:37]
    global_load_ushort v18, v11, s[36:37] offset:32
    """)
    srd(a, 52, 42, WS_Z2, 2048 * 768 * 2)
    def dma(i):
        r = [f"s_add_u32 m0, s61, {SLOT*(i % K4_NS)}\ns_mov_b32 s57, {6144*i}\nbuffer_load_dwordx4 v6, s[52:55], s57 offen {SC} lds"]
        r += [f"buffer_load_dwordx4 v6, s[52:55], s57 offen offset:{1024*e} {SC} lds" for e in (1, 2)]
        return r if i < 16 else []
    def reads(i):
        so = SLOT * (i % K4_NS); hi = 0
        if so >= 2*SLOT: so -= 2*SLOT; hi = 1
        return [((i, p), f"ds_read_b128 {Q(FZ(i & 1, p))}, v{12+hi} offset:{so + 1024*p}") for p in range(6)]
    a("s_barrier")
    stamp(a, 8); stamp(a, 5, "cv2")
    for i in range(3):
        for r in dma(i): a(r)
    a(f"""
    s_mul_i32 s12, s10, {2*18432}
    s_add_u32 s12, s12, {RED}
    v_lshl_add_u32 v14, v1, 4, s12
    s_waitcnt vmcnt(6)
    s_barrier
    """)
    for t, r in reads(0): a(r)
    for r in dma(3): a(r)
    a("s_cmp_ge_u32 s8, 4\ns_cbranch_scc1 K4_Y")
    def mainloop(first):
        vm = Cnt(a, "vmcnt", 63)
        for i in (1, 2, 3): vm.issue(i, 3)
        for i in range(16):
            if i < 10: stamp(a, i + 1, "p4a")
            a("s_waitcnt lgkmcnt(0)")
            vm.wait({i + 1})
            if i < 10: stamp(a, i + 1, "p4b")
            a("s_barrier")
            nxt = reads(i + 1) if i < 15 else []
            def issue():
                for r in dma(i + 4): a(r); vm.issue(i + 4)
                if i == 15 and first: wo_setup(a); wo(a, 3)
            if first: issue()
            for p in range(6):
                for mt in range(2):
                    c = "0" if i == 0 else Q(ACC(mt, p))
                    a(f"v_mfma_f32_16x16x32_bf16 {Q(ACC(mt, p))}, {Q(FZ(i & 1, p))}, {Q(WF(mt, i))}, {c}")
                    if nxt: a(nxt.pop(0)[1])
            if not first: issue()
            if not first and i == 12 and OPT.get("warm", 0):
                a(f"s_lshl_b32 s12, s46, 1\ns_add_u32 s12, s12, s10\ns_lshl_b32 s12, s12, 7\ns_add_u32 s12, s12, {C_S3}")
                warm(a, 12, 8); vm.issue("t")
        stamp(a, 9); stamp(a, 1, 't')
    mainloop(True)
    a("s_mul_i32 s13, s11, 6144\nv_add_u32 v12, s13, v14")
    for p in range(6):
        for mt in range(2):
            a(f"ds_write_b128 v12, {Q(ACC(mt, p))} offset:{18432*(p // 3) + 1024*(3*mt + p % 3)}")
    a(f"""
    s_mul_i32 s12, s47, 10240
    s_lshl_b32 s13, s3, 10
    s_add_u32 s12, s12, s13
    v_add_u32 v13, s12, v5
    s_waitcnt lgkmcnt(0)
    s_barrier
    s_barrier
    s_waitcnt vmcnt(0)
    s_barrier
    s_barrier
    """)
    stamp(a, 3, 't')
    for c in (4, 5): wo(a, c)
    a(f"s_lshl_b32 s15, s3, 10\ns_add_u32 s15, s15, {K5_H}")
    for e in range(3):
        if e == 2: a("s_cmp_ge_u32 s3, 2\ns_cbranch_scc1 K5_NOH")
        a(f"s_add_u32 m0, s15, {4096*e}")
        a(f"s_mov_b32 s56, {4096*e}")
        a(f"buffer_load_dwordx4 v13, s[48:51], s56 offen {SC} lds")
    a("K5_NOH:")
    stamp(a, 4, 't')
    a("s_waitcnt vmcnt(0)")
    stamp(a, 10); stamp(a, 5, 't')
    a("s_barrier")
    stamp_out(a, "X")
    a("s_endpgm")
    a("K4_Y:")
    mainloop(False)
    a(f"""
    s_xor_b32 s13, s11, 1
    s_mul_i32 s13, s13, 18432
    s_add_u32 s13, s13, {2*6144}
    v_add_u32 v13, s13, v14
    s_mul_i32 s13, s11, 18432
    v_add_u32 v12, s13, v14
    """)
    for p in range(3, 6):
        for mt in range(2):
            a(f"ds_write_b128 v13, {Q(ACC(mt, p))} offset:{1024*(3*mt + p % 3)}")
    a(f"""
    v_lshlrev_b32 v16, 16, v16
    v_lshlrev_b32 v18, 16, v18
    s_lshl_b32 s12, s46, 2
    s_lshl_b32 s13, s10, 1
    s_add_u32 s12, s12, s13
    s_mul_i32 s12, s12, 24576
    s_mul_i32 s13, s47, 3072
    s_add_u32 s12, s12, s13
    s_add_u32 s12, s12, {WS_P}
    v_lshl_add_u32 v9, v1, 4, s12
    s_lshl_b32 s13, s11, 11
    v_add_u32 v10, s13, v9
    v_add_u32 v8, 24576, v10
    s_mul_i32 s13, s11, 24576
    s_add_u32 s13, s13, 1024
    v_add_u32 v11, s13, v9
    s_lshl_b32 s12, s10, 11
    s_add_u32 s12, s12, {XCH}
    v_lshl_add_u32 v14, v1, 4, s12
    s_lshl_b32 s13, s11, 3
    v_add_u32 v15, s13, v14
    s_lshl_b32 s13, s11, 10
    v_add_u32 v14, s13, v14
    s_waitcnt lgkmcnt(0)
    s_barrier
    """)
    stamp(a, 2, 't')
    order = ((2, 0), (2, 1), (0, 0), (1, 0), (0, 1), (1, 1))
    lg = Cnt(a, "lgkmcnt", 15)
    R = lambda k, j: 128 + 12*k + 4*j
    def rd(k):
        nt, mt = order[k]
        for j in range(3):
            a(f"ds_read_b128 {Q(R(k, j))}, v12 offset:{6144*j + 1024*(3*mt + nt)}"); lg.issue(k)
    for k in range(5): rd(k)
    T = 80; O = 88
    for k, (nt, mt) in enumerate(order):
        acc = ACC(mt, nt); z = Z1R + 4*nt + 2*mt; t = T + 4*(k & 1)
        for h in range(2):
            a(f"v_lshlrev_b32 v{t+2*h}, 16, v{z+h}")
            a(f"v_and_b32 v{t+2*h+1}, 0xffff0000, v{z+h}")
        lg.wait({k})
        if k == 0: rd(5)
        for h in (0, 2): a(f"v_pk_add_f32 {P(R(k,0)+h)}, {P(R(k,0)+h)}, {P(R(k,1)+h)}")
        for h in (0, 2): a(f"v_pk_add_f32 {P(acc+h)}, {P(acc+h)}, {P(R(k,2)+h)}")
        for h in (0, 2): a(f"v_pk_add_f32 {P(acc+h)}, {P(acc+h)}, {P(R(k,0)+h)}")
        for r in range(4): a(f"v_cvt_pk_bf16_f32 v{acc+r}, 0, v{acc+r}")
        for h in (0, 2): a(f"v_pk_add_f32 {P(acc+h)}, {P(acc+h)}, {P(16+2*mt)} op_sel:[0,0] op_sel_hi:[1,0]")
        for r in range(4): a(f"v_cvt_pk_bf16_f32 v{acc+r}, 0, v{acc+r}")
        for h in (0, 2): a(f"v_pk_mul_f32 {P(acc+h)}, {P(acc+h)}, {P(t+h)}")
        o = acc if nt == 2 else O + 4*mt + 2*nt
        a(f"v_cvt_pk_bf16_f32 v{o}, v{acc}, v{acc+1}")
        a(f"v_cvt_pk_bf16_f32 v{o+1}, v{acc+2}, v{acc+3}")
        if nt == 2: a(f"ds_write_b64 v15, {P(o)} offset:{1024*mt}"); lg.issue("x")
        if nt == 1: a(f"global_store_dwordx4 v{(10, 8)[mt]}, {Q(O + 4*mt)}, s[42:43] {SC}")
        if k == 1:
            lg.all(); a(f"s_barrier\nds_read_b128 {Q(O + 8)}, v14"); lg.issue("y")
        if k == 2:
            lg.all(); a(f"global_store_dwordx4 v11, {Q(O + 8)}, s[42:43] {SC}")
    stamp(a, 3, 't')
    a(f"""
    s_lshl_b32 s12, s46, 2
    s_add_u32 s12, s12, s3
    s_mul_i32 s12, s12, 24576
    v_lshl_add_u32 v12, v1, 4, s12
    v_lshlrev_b32 v14, 4, v1
    v_add_u32 v15, 98304, v14
    v_add_u32 v13, 49152, v14
    v_lshrrev_b32 v9, 2, v1
    v_and_b32 v11, 3, v2
    v_lshlrev_b32 v11, 3, v11
    v_lshrrev_b32 v10, 1, v9
    v_and_b32 v10, 3, v10
    v_xor_b32 v10, s3, v10
    v_lshl_add_u32 v16, v9, 7, v11
    v_lshl_add_u32 v16, v10, 5, v16
    v_add_u32 v16, {K5_H}, v16
    s_mul_i32 s12, s46, {64*1280}
    s_mul_i32 s13, s3, {16*1280}
    s_add_u32 s12, s12, s13
    s_mul_i32 s13, s47, 160
    s_add_u32 s12, s12, s13
    v_mul_u32_u24 v17, 1280, v2
    v_add_u32 v17, s12, v17
    v_and_b32 v9, 1, v3
    v_lshlrev_b32 v9, 5, v9
    v_lshrrev_b32 v10, 1, v3
    v_lshl_add_u32 v9, v10, 4, v9
    v_add_u32 v18, v17, v9
    v_lshl_add_u32 v17, v3, 3, v17
    s_lshl_b32 s12, s46, 7
    s_add_u32 s12, s12, {C_S3}
    """)
    srd(a, 52, 42, WS_P, 2048 * 768 * 2)
    a("s_waitcnt vmcnt(0)")
    stamp(a, 4, 't')
    arrive_last(a, "K4A", LDS_FLAG + 24, 12, 8)
    a("s_cmp_lg_u32 s15, 3\ns_cbranch_scc1 S3_OK\nv_mov_b32 v8, s12")
    poll(a, "S3", 8, 8, 9, sleep=1)
    a("s_barrier")
    stamp(a, 10); stamp(a, 5, 't')
    vm = Cnt(a, "vmcnt", 63)
    PF = lambda ks: 128 + 4*ks
    for ks in range(24):
        if ks % 4 == 0: a(f"s_mov_b32 s57, {1024*ks}")
        a(f"buffer_load_dwordx4 {Q(PF(ks))}, v12, s[52:55], s57 offen offset:{1024*(ks % 4)} {SC}")
        vm.issue(ks)
    A5 = lambda nt: 20 + 4*nt
    FW = lambda b, nt: 40 + 20*b + 4*nt
    HF = 100
    def reads5(j):
        o = WOC[j // 4] + (j % 4) * 5120; hi = 0
        if o >= 98304: o -= 98304; hi = 1
        elif o >= 49152: o -= 49152; hi = -1
        return [((j, nt), f"ds_read_b128 {Q(FW(j % 3, nt))}, v{14+hi} offset:{o + 1024*nt}") for nt in range(5)]
    def mf(j):
        return [({(j, nt)}, f"v_mfma_f32_16x16x32_bf16 {Q(A5(nt))}, {Q(FW(j % 3, nt))}, {Q(PF(j))}, " + ("0" if j == 0 else Q(A5(nt)))) for nt in range(5)]
    def pre5(j):
        vm.wait({j})
        if j == 14: a("s_barrier")
    stamp(a, 6, 't')
    a("s_barrier")
    stamp(a, 7, 't')
    pipeline(a, 0, 24, reads5, mf, pre5, [("h", f"ds_read_b64_tr_b16 {P(HF + 2*nt)}, v16 offset:{2048*nt}") for nt in range(5)])
    stamp(a, 8, 't')
    a("s_waitcnt lgkmcnt(0)")
    O = 112
    for nt in range(5):
        acc = A5(nt); t = 40 + 4*nt
        for h in range(2):
            a(f"v_lshlrev_b32 v{t+2*h}, 16, v{HF+2*nt+h}")
            a(f"v_and_b32 v{t+2*h+1}, 0xffff0000, v{HF+2*nt+h}")
        for r in range(4): a(f"v_cvt_pk_bf16_f32 v{acc+r}, 0, v{acc+r}")
        for h in (0, 2): a(f"v_pk_add_f32 {P(acc+h)}, {P(acc+h)}, {P(t+h)}")
        a(f"v_cvt_pk_bf16_f32 v{O+2*nt}, v{acc}, v{acc+1}")
        a(f"v_cvt_pk_bf16_f32 v{O+2*nt+1}, v{acc+2}, v{acc+3}")
        if nt & 1:
            o = O + 2*nt - 2
            a(f"v_permlane16_swap_b32 v{o}, v{o+2}\nv_permlane16_swap_b32 v{o+1}, v{o+3}")
            a(f"global_store_dwordx4 v18, {Q(o)}, s[44:45] offset:{32*(nt-1)}")
    a(f"global_store_dwordx2 v17, {P(O+8)}, s[44:45] offset:128")
    stamp_out(a, "Y")
    a("K_END:\ns_endpgm")
```

```python
from asmgen import Asm
from layout import *

LOG2E = "0x3fb8aa3b"
NLOG2E = "0xbfb8aa3b"
INV2PI = "0x3e22f983"

KW_STRIDE = 16640
BSCR = 8448
KC0 = 66560; KC_STRIDE = 3200
U0 = 79360; U_STRIDE = 4608
XU0 = 97792; XU_STRIDE = 8192
FLAG0 = LDS_FLAG
NG0 = 2

def cmul(a, sets):
    for d, x, y, t in sets:
        a(f"v_pk_mul_f32 {P(t)}, {P(x)}, {P(y)} op_sel:[0,0] op_sel_hi:[0,1]")
    for d, x, y, t in sets:
        a(f"v_pk_fma_f32 {P(d)}, {P(x)}, {P(y)}, {P(t)} op_sel:[1,1,0] op_sel_hi:[1,0,1] neg_lo:[1,0,0]")

def kgen(a, ns, erow, vwr, vrd, SB, PKS, ACC, AF, BF, unpack, maxsrc, mid=None, fill=None):
    AR, Z1, W, ZZ, CUR, R2, R4, R6, PW, T = [lambda s, k=k: SB[s] + 2 * k for k in range(10)]
    S = range(ns); nks = 4 * ns
    unpack(AR, CUR)
    for s in S: a(f"v_mul_f32 v{AR(s)}, {LOG2E}, v{AR(s)}")
    for s in S: a(f"v_exp_f32 v{AR(s)}, v{AR(s)}")
    m = maxsrc(CUR)
    a(f"v_max3_f32 v13, abs(v{m[0]}), abs(v{m[1]}), abs(v{m[2]})")
    a(f"v_max3_f32 v14, abs(v{m[3]}), abs(v{m[4]}), abs(v{m[5]})")
    a("v_max_u32 v13, v13, v14")
    for s in S: a(f"v_cvt_pk_bf16_f32 v{AR(s)}, 0, v{AR(s)}")
    a("v_max_u32_dpp v13, v13, v13 row_ror:8 row_mask:0xf bank_mask:0xf")
    for s in S: a(f"v_pk_mul_f32 {P(AR(s))}, {P(AR(s))}, v[12:13] op_sel:[0,0] op_sel_hi:[1,0]")
    a("v_max_u32_dpp v13, v13, v13 row_ror:4 row_mask:0xf bank_mask:0xf")
    for s in S: a(f"v_mul_f32 v{AR(s)}, {NLOG2E}, v{AR(s)}")
    a("v_max_u32_dpp v13, v13, v13 row_ror:2 row_mask:0xf bank_mask:0xf")
    for s in S: a(f"v_mul_f32 v{AR(s)+1}, {INV2PI}, v{AR(s)+1}")
    a("v_max_u32_dpp v13, v13, v13 row_ror:1 row_mask:0xf bank_mask:0xf")
    def anchor(dst, p, conj=False):
        for s in S:
            if p == 1:
                a(f"v_exp_f32 v{PW(s)}, v{AR(s)}")
                a(f"v_fract_f32 v{T(s)+1}, v{AR(s)+1}")
            else:
                a(f"v_mul_f32 v{T(s)}, {fhex(p)}, v{AR(s)}")
                a(f"v_mul_f32 v{T(s)+1}, {fhex(p)}, v{AR(s)+1}")
        if p != 1:
            for s in S:
                a(f"v_exp_f32 v{PW(s)}, v{T(s)}")
                a(f"v_fract_f32 v{T(s)+1}, v{T(s)+1}")
        for s in S:
            a(f"v_cos_f32 v{dst(s)}, v{T(s)+1}")
            a(f"v_sin_f32 v{dst(s)+1}, v{T(s)+1}")
        for s in S:
            a(f"v_pk_mul_f32 {P(dst(s))}, {P(dst(s))}, {P(PW(s))} op_sel:[0,0] op_sel_hi:[1,0]" + (" neg_hi:[1,0]" if conj else ""))
    anchor(Z1, 1)
    a("""
    v_readlane_b32 s48, v13, 0
    v_readlane_b32 s49, v13, 16
    v_readlane_b32 s50, v13, 32
    v_readlane_b32 s51, v13, 48
    """)
    anchor(ZZ, 256)
    a("""
    s_max_u32 s48, s48, s49
    s_max_u32 s50, s50, s51
    s_max_u32 s48, s48, s50
    s_and_b32 s48, s48, 0x7f800000
    s_max_u32 s48, s48, 0x01000000
    s_min_u32 s48, s48, 0x7e000000
    s_sub_u32 s49, 0x7f000000, s48
    """)
    anchor(W, 8, conj=True)
    for s in S:
        a(f"v_mul_f32 v{CUR(s)}, s49, v{CUR(s)}")
        a(f"v_mul_f32 v{CUR(s)+1}, s49, -v{CUR(s)+1}")
    cnt = [0]
    def row(slot, reg):
        pk = PKS[cnt[0] & 1]; cnt[0] += 1
        for s in S:
            if reg is None: a(f"v_mov_b32 v{pk+s}, 0x3c00")
            else: a(f"v_cvt_pk_f16_f32 v{pk+s}, v{reg(s)}, v{reg(s)+1}")
        if ns == 2: a(f"ds_write_b64 {vwr}, {P(pk)} offset:{slot*erow}")
        else: a(f"ds_write_addtid_b32 v{pk} offset:{slot*erow}")
        if fill and cnt[0] % 4 == 1: a(fill.pop(0))
    def cm(d, x, y): cmul(a, [(d(s), x(s), y(s), T(s)) for s in S])
    TMP = AR
    row(0, None); row(1, Z1)
    cm(R2, Z1, Z1); row(2, R2)
    cm(TMP, R2, Z1); row(3, TMP)
    cm(R4, R2, R2); row(4, R4)
    cm(TMP, R4, Z1); row(5, TMP)
    cm(R6, R4, R2); row(6, R6)
    cm(TMP, R6, Z1); row(7, TMP)
    row(8, ZZ)
    cm(TMP, ZZ, R2); row(9, TMP)
    cm(TMP, ZZ, R4); row(10, TMP)
    cm(TMP, ZZ, R6); row(11, TMP)
    cm(PW, ZZ, ZZ); row(12, PW)
    cm(TMP, PW, R4); row(13, TMP)
    cm(PW, PW, ZZ); row(14, PW)
    cm(TMP, PW, R4); row(15, TMP)
    for ks in range(nks): a(f"ds_read_b128 {Q(AF + 4*ks)}, {vrd} offset:{64*ks}")
    for i in range(5):
        cm(PW, PW, ZZ); row(i, PW)
    for ks in range(nks): a(f"ds_read_b128 {Q(AF + 4*nks + 4*ks)}, {vrd} offset:{64*ks}")
    for j in range(16):
        row(j, CUR); cm(CUR, CUR, W)
    for ks in range(nks): a(f"ds_read_b128 {Q(BF + 4*ks)}, {vrd} offset:{64*ks}")
    def kmfma(nt, ks):
        for mt in range(2):
            acc = ACC + 8 * nt + 4 * mt
            c = "0" if ks == 0 else Q(acc)
            a(f"v_mfma_f32_16x16x32_f16 {Q(acc)}, {Q(AF + 4*nks*mt + 4*ks)}, {Q(BF + 4*ks)}, {c}")
    for j in range(16):
        row(j, CUR)
        if j == 3: a("s_waitcnt lgkmcnt(4)")
        if 3 <= j < 3 + nks: kmfma(0, j - 3)
        if j < 15: cm(CUR, CUR, W)
    for ks in range(nks): a(f"ds_read_b128 {Q(BF + 4*ks)}, {vrd} offset:{64*ks}")
    extra = mid() if mid else 0
    for ks in range(nks):
        a(f"s_waitcnt lgkmcnt({nks - 1 - ks + extra})")
        kmfma(1, ks)

def dt_code(a):
    a(f"""
    s_waitcnt lgkmcnt(0)
    s_lshl_b32 s14, s13, 16
    s_and_b32 s13, s13, 0xffff0000
    s_bitcmp1_b32 s10, 0
    s_cselect_b32 s13, s13, s14
    v_mov_b32 v12, {LOG2E}
    v_mul_f32 v12, s13, v12
    v_exp_f32 v12, v12
    v_cvt_pk_bf16_f32 v12, 0, v12
    """)

def wait_init(a, tag, vtmp):
    a(f"v_mov_b32 v{vtmp}, 0")
    poll(a, tag + "I", vtmp, 1, vtmp + 1, base="s[40:41]", sleep=4)

def slab(a, lds_off, FR, ct0, mul, per, nks, dsrd, stores=True):
    for c in range(4):
        for h in range(2):
            a(f"ds_read_b64_tr_b16 {P(FR + 4*c + 2*h)}, v8 offset:{lds_off + 32*c + 2048*h}")
    for c in range(4):
        a(f"""
        s_add_u32 s53, s{ct0}, {c}
        s_mul_i32 s54, s53, {mul}
        s_lshr_b32 s54, s54, 8
        s_mul_i32 s55, s54, {nks - 1}
        s_add_u32 s55, s55, s52
        s_mul_i32 s55, s55, {per}
        s_add_u32 s55, s55, s53
        s_lshl_b32 s55, s55, 10
        s_waitcnt lgkmcnt({6 - 2*c})
        buffer_store_dwordx4 {Q(FR + 4*c)}, v9, s[{dsrd}:{dsrd+3}], s55 offen {SC}
        """)

def slab_addr(a, stride):
    a(f"""
    v_lshrrev_b32 v7, 3, v1
    v_mul_u32_u24 v7, {stride}, v7
    v_and_b32 v8, 7, v1
    v_lshl_add_u32 v7, v8, 4, v7
    v_lshrrev_b32 v8, 2, v1
    v_lshlrev_b32 v8, 7, v8
    v_and_b32 v9, 3, v1
    v_lshl_add_u32 v8, v9, 3, v8
    s_mul_i32 s56, s8, 12288
    v_add_u32 v8, s56, v8
    v_lshlrev_b32 v9, 4, v1
    """)

def gen_k1(a):
    a(f"""
    s_lshl_b32 s9, s8, 2
    s_add_u32 s9, s9, {FLAG0}
    v_mov_b32 v2, s9
    v_mov_b32 v3, 0
    ds_write_b32 v2, v3
    s_sub_u32 s9, s7, 8
    s_cmp_ge_u32 s9, 4
    s_cbranch_scc1 K1_NOPF
    s_cmp_eq_u32 s2, 88
    s_cbranch_scc1 K1_INIT
    s_getpc_b64 s[4:5]
K1_PC:
    v_lshlrev_b32 v2, 7, v0
    v_min_u32 v2, CODE_END-K1_PC-4, v2
    global_load_dword v255, v2, s[4:5]
    s_branch K1_NOPF
K1_INIT:
    v_lshlrev_b32 v2, 4, v0
    v_add_u32 v2, {WS_STAT1}, v2
    v_mov_b32 v4, 0
    v_mov_b32 v5, 0
    v_mov_b32 v6, 0
    v_mov_b32 v7, 0
    s_waitcnt lgkmcnt(0)
    global_store_dwordx4 v2, v[4:7], s[42:43] sc1
    v_add_u32 v2, 0x2000, v2
    global_store_dwordx4 v2, v[4:7], s[42:43] sc1
    v_add_u32 v2, 0x2000, v2
    global_store_dwordx4 v2, v[4:7], s[42:43] sc1
    v_add_u32 v2, 0x2000, v2
    global_store_dwordx4 v2, v[4:7], s[42:43] sc1
    v_add_u32 v2, 0x2000, v2
    global_store_dwordx4 v2, v[4:7], s[42:43] sc1
    s_waitcnt vmcnt(0)
    s_barrier
    s_cmp_lg_u32 s8, 0
    s_cbranch_scc1 K1_NOPF
    v_mov_b32 v5, 1
    s_mov_b64 exec, 1
    global_store_dword v4, v5, s[40:41] sc1
    s_mov_b64 exec, -1
K1_NOPF:
    s_waitcnt lgkmcnt(0)
    s_cmp_lt_u32 s7, 12
    s_cbranch_scc1 K1_HELPER
    s_mul_i32 s9, s6, 20
    s_add_u32 s9, s9, s7
    s_sub_u32 s9, s9, 12
    s_lshl_b32 s10, s9, 2
    s_add_u32 s10, s10, s3
    s_mul_i32 s11, s10, 384
    v_lshl_add_u32 v14, v1, 2, s11
    s_add_u32 s11, s11, 256
    v_lshl_add_u32 v15, v1, 1, s11
    s_lshl_b32 s12, s10, 1
    s_and_b32 s12, s12, -4
    s_load_dword s13, s[26:27], s12
    global_load_dword v20, v14, s[22:23] {OPT.get('nt','nt')}
    global_load_ushort v21, v15, s[22:23] {OPT.get('nt','nt')}
    global_load_dword v22, v14, s[24:25] {OPT.get('nt','nt')}
    global_load_ushort v23, v15, s[24:25] {OPT.get('nt','nt')}
    s_mul_i32 s60, s3, {KW_STRIDE}
    v_and_b32 v10, 15, v1
    v_lshrrev_b32 v11, 4, v1
    s_cmp_ge_u32 s8, 4
    s_cbranch_scc1 K1_BW
    """)
    a(f"""
    global_load_dword v16, v14, s[18:19] {OPT.get('nt','nt')}
    global_load_dword v18, v14, s[20:21] {OPT.get('nt','nt')}
    s_sub_u32 s48, s7, 12
    s_lshl_b32 s48, s48, 7
    v_lshrrev_b32 v2, 1, v0
    v_add_u32 v2, s48, v2
    v_min_u32 v2, 0x7ff, v2
    v_mul_u32_u24 v2, 1280, v2
    v_and_b32 v3, 1, v0
    v_lshl_add_u32 v2, v3, 7, v2
    s_mul_i32 s48, s6, 160
    s_and_b32 s48, s48, -128
    v_add_u32 v2, s48, v2
    global_load_dword v255, v2, s[16:17] {OPT.get('ntx','')}
    s_barrier
    s_mul_i32 s61, s3, {KC_STRIDE}
    s_add_u32 s61, s61, {KC0 + 96}
    s_mul_i32 s62, s3, {U_STRIDE}
    s_add_u32 s62, s62, {U0}
    s_lshl_b32 s63, s3, 13
    s_add_u32 s63, s63, {XU0}
    v_lshl_add_u32 v2, v1, 3, s60
    v_mul_u32_u24 v4, 528, v10
    v_lshl_add_u32 v4, v11, 4, v4
    v_add_u32 v4, s60, v4
    v_mov_b32 v12, 0
    v_mov_b32 v13, 0
    v_lshl_add_u32 v5, v1, 3, s62
    ds_write_b64 v5, v[12:13]
    s_sub_u32 s48, s61, 96
    v_lshl_add_u32 v5, v1, 2, s48
    ds_write_b32 v5, v12
    v_max_u32 v12, 1, v11
    v_sub_u32 v12, 6, v12
    v_lshlrev_b32 v5, v12, v10
    v_lshlrev_b32 v13, 4, v11
    v_lshlrev_b32 v6, 9, v11
    v_cmp_gt_u32 vcc, 2, v11
    v_cndmask_b32 v13, v6, v13, vcc
    v_add3_u32 v5, v5, v13, s61
    v_mov_b32 v13, 0x100
    v_cmp_eq_u32 vcc, 3, v11
    v_cndmask_b32 v13, 8, v13, vcc
    v_lshlrev_b32 v12, v12, 16
    v_add_u32 v7, v5, v12
    v_add_u32 v8, v7, v13
    v_lshl_add_u32 v9, v10, 2, v6
    v_add_u32 v6, v5, v13
    s_add_u32 s48, s61, 2048
    v_add_u32 v9, s48, v9
    """)
    VA, VB, VX, VO = 200, 201, 202, 203
    a(f"""
    v_add_u32 v12, 1, v10
    v_and_b32 v12, 3, v12
    v_mul_u32_u24 v13, 4162, v12
    v_lshlrev_b32 v12, 3, v11
    v_sub_u32 v12, v12, v10
    v_lshl_add_u32 v13, v12, 1, v13
    s_add_u32 s48, s60, 30
    v_add_u32 v{VA}, s48, v13
    v_lshlrev_b32 v12, 5, v10
    v_lshl_add_u32 v12, v11, 4, v12
    s_add_u32 s48, s62, 32
    v_add_u32 v{VB}, s48, v12
    v_lshlrev_b32 v12, 2, v10
    v_add_u32 v12, v12, v11
    v_lshl_add_u32 v{VX}, v12, 4, s63
    v_and_b32 v12, 1, v11
    v_lshrrev_b32 v13, 2, v10
    v_lshl_add_u32 v12, v12, 2, v13
    v_mul_u32_u24 v12, 81920, v12
    v_and_b32 v13, 3, v10
    v_lshl_add_u32 v12, v13, 5, v12
    v_lshrrev_b32 v13, 1, v11
    v_lshl_add_u32 v12, v13, 4, v12
    s_lshl_b32 s48, s10, 7
    v_add_u32 v{VO}, s48, v12
    s_sub_u32 s48, s61, 96
    v_lshl_add_u32 v204, v1, 5, s48
    v_cmp_eq_u32 vcc, 34, v1
    s_add_u32 s48, s61, 1024
    v_lshl_add_u32 v206, v1, 3, s48
    v_cndmask_b32 v205, 0, 4, vcc
    v_sub_u32 v205, v204, v205
    v_cmp_eq_u32 vcc, 63, v1
    v_lshlrev_b32 v208, 4, v1
    s_add_u32 s48, s60, {BSCR}
    v_add_u32 v211, s48, v208
    s_add_u32 s48, s60, 3056
    v_cndmask_b32 v207, 0, 4, vcc
    v_sub_u32 v207, v206, v207
    v_sub_u32 v208, s48, v208
    v_lshlrev_b32 v209, 3, v1
    s_add_u32 s48, s60, 3576
    v_sub_u32 v209, s48, v209
    v_lshlrev_b32 v210, 5, v1
    s_add_u32 s48, s60, 2016
    v_sub_u32 v210, s48, v210
    s_lshl_b32 s48, s3, 2
    s_add_u32 s48, s48, {FLAG0}
    v_mov_b32 v3, s48
    """)
    dt_code(a)
    a("s_waitcnt vmcnt(1)")
    stamp(a, 1)
    def unpackA(AR, CUR):
        for dst, raw in ((AR, 16), (lambda s: AR(s) + 1, 18), (CUR, 20), (lambda s: CUR(s) + 1, 22)):
            a(f"v_lshlrev_b32 v{dst(0)}, 16, v{raw}")
            a(f"v_and_b32 v{dst(1)}, 0xffff0000, v{raw}")
        a("v_lshlrev_b32 v21, 16, v21\nv_lshlrev_b32 v23, 16, v23")
    ACC = 68
    def midA():
        a("ds_read_b32 v17, v3")
        return 1
    if OPT.get("krep"): a("s_mov_b32 s73, 0\nKA_REP:")
    kgen(a, 2, 528, "v2", "v4", [24, 44], [64, 66], ACC, 84, 148, unpackA,
         lambda CUR: [CUR(0), CUR(0)+1, CUR(1), CUR(1)+1, 21, 23], midA)
    if OPT.get("krep"):
        a("s_cmp_lg_u32 s73, 0\ns_cbranch_scc1 KA_DN"); stamp(a, 8); a("s_mov_b32 s73, 1\ns_nop 7\ns_barrier\ns_branch KA_REP\nKA_DN:"); stamp(a, 9)
    a(f"""
    v_mul_f32 v15, s48, v12
    v_add_f32 v15, v15, v15
    s_waitcnt lgkmcnt(0)
K1_PW:
    v_readfirstlane_b32 s50, v17
    s_cmp_lg_u32 s50, 0
    s_cbranch_scc1 K1_PR
    ds_read_b32 v17, v3
    s_waitcnt lgkmcnt(0)
    s_branch K1_PW
K1_PR:
    """)
    for k in range(4): a(f"ds_read_b128 {Q(180 + 4*k)}, v211 offset:{1024*k}")
    for k in range(4):
        a(f"s_waitcnt lgkmcnt({3-k})")
        for h in (0, 2): a(f"v_pk_add_f32 {P(ACC + 4*k + h)}, {P(ACC + 4*k + h)}, {P(180 + 4*k + h)}")
    a(f"""
    ds_write_b64 v5, {P(ACC)}
    ds_write_b64 v6, {P(ACC+2)}
    ds_write_b64 v7, {P(ACC+8)}
    ds_write_b64 v8, {P(ACC+10)}
    s_mov_b32 exec_hi, 0
    ds_write2_b32 v9, v{ACC+4}, v{ACC+5} offset0:0 offset1:32
    ds_write2_b32 v9, v{ACC+6}, v{ACC+7} offset0:64 offset1:96
    ds_write2_b32 v9, v{ACC+12}, v{ACC+13} offset0:16 offset1:48
    ds_write2_b32 v9, v{ACC+14}, v{ACC+15} offset0:80 offset1:112
    s_mov_b64 exec, -1
    ds_read_b64 v[40:41], v206 offset:1024
    ds_read_b32 v42, v206 offset:1032
    ds_read_b64 v[44:45], v206 offset:512
    ds_read_b32 v46, v206 offset:520
    ds_read_b64 v[48:49], v206
    ds_read_b32 v50, v206 offset:8
    ds_read_b32 v51, v207 offset:12
    ds_read_b128 v[24:27], v204
    ds_read_b128 v[28:31], v204 offset:16
    ds_read_b32 v32, v204 offset:32
    ds_read2_b32 v[34:35], v205 offset0:9 offset1:10
    """)
    def emit_region(e, n, addr, off0, regs):
        cur = [None] * (n // 2)
        for sg in range(4):
            for d in range(n // 2):
                want = (e[sg + n - 1 - 2 * d], e[sg + n - 2 - 2 * d])
                if cur[d] != want:
                    a(f"v_cvt_pk_f16_f32 v{regs + d}, v{want[0]}, v{want[1]}")
                    cur[d] = want
            if n == 4:
                a(f"ds_write_b64 {addr}, {P(regs)} offset:{off0 + 4160*sg}")
            else:
                for h in range(n // 8):
                    a(f"ds_write_b128 {addr}, {Q(regs + 4*h)} offset:{off0 + 4160*sg + 16*h}")
            if n <= 8 and len(set(e)) > 4:
                regs += n // 2; cur = [None] * (n // 2)
    a("s_waitcnt lgkmcnt(9)")
    emit_region([40]*5 + [41]*7 + [42]*7, 16, "v210", 0, 84)
    a("s_waitcnt lgkmcnt(15)")
    emit_region([44]*3 + [45]*3 + [46]*5, 8, "v208", 0, 92)
    a("s_waitcnt lgkmcnt(12)")
    emit_region([48, 48, 49, 50, 50, 50, 51], 4, "v209", 0, 96)
    a("s_mov_b32 exec_hi, 7")
    emit_region([24, 25, 26, 27, 28, 29, 30, 31, 32, 34, 35], 8, "v208", 1072, 100)
    a("s_mov_b64 exec, -1")
    stamp(a, 2)
    CA = 24; AA = 56; BB = 88; XR = 120
    lg = Cnt(a, "lgkmcnt", 15)
    def rdA(q, s, h): return (("A", q), f"ds_read_b64 {P(AA + 4*q + 2*h)}, v{VA} offset:{512*(7 - q) + 64*(7 - s) + 8*h}")
    def rdB(d, s): return (("B", d), f"ds_read_b128 {Q(BB + 4*d)}, v{VB} offset:{512*d + 64*(7 - s)}")
    def rdX(d): return (("X", d), f"ds_read_b128 {Q(XR + 4*d)}, v{VX} offset:{1024*d}")
    def emit(r): a(r[1]); lg.issue(r[0])
    a("s_waitcnt lgkmcnt(0)\ns_setprio 2")
    for q in range(7, 1, -1):
        emit(rdA(q, 0, 0)); emit(rdA(q, 0, 1))
    a("s_barrier")
    stamp(a, 3)
    for d in range(3): emit(rdB(d, 0))
    fifo = [rdB(d, 0) for d in range(3, 8)] + [rdA(q, 0, h) for q in (1, 0) for h in (0, 1)]
    touched = set()
    for s in range(8):
        for q in range(7, -1, -1):
            for d in range(0, 8 - q):
                assert not any(t[0] in (("A", q), ("B", d)) for t in fifo), (s, q, d)
                lg.wait({("A", q), ("B", d)})
                c = q + d
                cin = Q(CA + 4*c) if c in touched else "0"
                touched.add(c)
                a(f"v_mfma_f32_16x16x32_f16 {Q(CA + 4*c)}, {Q(AA + 4*q)}, {Q(BB + 4*d)}, {cin}")
                if d == 7 - q and s < 7: fifo += [rdA(q, s + 1, 0), rdA(q, s + 1, 1)]
                if s == 2 and q == 3 and d == 0: a("s_barrier")
                if s == 7 and q == 4 and d == 0: fifo += [rdX(k) for k in range(8)]
                if q == 0 and s < 7: emit(rdB(d, s + 1))
                elif fifo: emit(fifo.pop(0))
    assert not fifo
    a("v_mov_b32 v14, v15")
    lg.all()
    stamp(a, 1, "cv")
    for c in range(8):
        acc = CA + 4*c; xu = XR + 4*c; t = 56 + 8 * (c & 1)
        a(f"v_pk_mul_f32 {P(acc)}, {P(acc)}, v[14:15]")
        a(f"v_pk_mul_f32 {P(acc+2)}, {P(acc+2)}, v[14:15]")
        for r in range(4): a(f"v_lshlrev_b32 v{t+r}, 16, v{xu+r}")
        for r in range(4): a(f"v_cvt_pk_bf16_f32 v{acc+r}, 0, v{acc+r}")
        a(f"v_pk_add_f32 {P(acc)}, {P(acc)}, {P(t)}")
        a(f"v_pk_add_f32 {P(acc+2)}, {P(acc+2)}, {P(t+2)}")
        for r in range(4): a(f"v_and_b32 v{xu+r}, 0xffff0000, v{xu+r}")
        for r in range(4): a(f"v_cvt_pk_bf16_f32 v{acc+r}, 0, v{acc+r}")
        a(f"v_pk_add_f32 {P(acc)}, {P(acc)}, {P(xu)}")
        a(f"v_pk_add_f32 {P(acc+2)}, {P(acc+2)}, {P(xu+2)}")
        o = 72 + 2*c
        a(f"v_cvt_pk_bf16_f32 v{o}, v{acc}, v{acc+1}")
        a(f"v_cvt_pk_bf16_f32 v{o+1}, v{acc+2}, v{acc+3}")
        if c & 1:
            a(f"v_permlane16_swap_b32 v{o-2}, v{o}\nv_permlane16_swap_b32 v{o-1}, v{o+1}")
            a(f"global_store_dwordx4 v{VO}, {Q(o-2)}, s[42:43] {SC}")
            if c < 7: a(f"v_add_u32 v{VO}, {8*81920}, v{VO}")
    a("s_setprio 0")
    stamp(a, 3, "cv")
    a("s_barrier")
    a(f"s_lshl_b32 s9, s6, 7\ns_add_u32 s9, s9, {C_S1}\ns_waitcnt vmcnt(0)")
    stamp(a, 4, "cv")
    arrive_last(a, "K1A", FLAG0 + 16, 9, 20, rep=True)
    stamp(a, 4)
    a("s_branch PH3")

    XG = 160
    a(f"""
K1_BW:
    global_load_ushort v16, v15, s[18:19] {OPT.get('nt','nt')}
    global_load_ushort v18, v15, s[20:21] {OPT.get('nt','nt')}
    s_barrier
    v_subrev_u32 v2, 256, v0
    v_mul_u32_u24 v3, 10240, v2
    s_lshl_b32 s11, s9, 3
    v_add_u32 v3, s11, v3
    v_add_u32 v5, 5120, v3
    s_load_dwordx2 s[64:65], s[28:29], s11
    """)
    gath = [f"global_load_dwordx2 {P(XG + 2*i)}, v{(3, 5)[i >> 2]}, s[16:17] offset:{1280*(i & 3)}" for i in range(8)]
    for i in range(NG0): a(gath.pop(0))
    a(f"""
    s_add_u32 s60, s60, {BSCR}
    s_mov_b32 m0, s60
    v_mul_u32_u24 v4, 272, v10
    v_lshl_add_u32 v4, v11, 4, v4
    v_add_u32 v4, s60, v4
    v_lshl_add_u32 v9, v1, 4, s60
    v_lshlrev_b32 v6, 5, v2
    v_add_u32 v7, {WS_STAT1}, v6
    v_add_u32 v6, {XU0}, v6
    v_lshlrev_b32 v8, 4, v2
    v_add_u32 v8, {U0 + 512}, v8
    """)
    dt_code(a)
    a(f"s_waitcnt vmcnt({NG0})")
    def unpackB(AR, CUR):
        for dst, raw in ((AR(0), 16), (AR(0) + 1, 18), (CUR(0), 21), (CUR(0) + 1, 23), (17, 20), (19, 22)):
            a(f"v_lshlrev_b32 v{dst}, 16, v{raw}")
    ACC = 48
    if OPT.get("krep"): stamp(a, 7); a("s_mov_b32 s73, 0\nKB_REP:")
    kgen(a, 1, 272, None, "v4", [24], [44, 45], ACC, 64, 96, unpackB, lambda CUR: [CUR(0), CUR(0)+1, 17, 19, 20, 22], fill=gath)
    if OPT.get("krep"):
        a("s_cmp_lg_u32 s73, 0\ns_cbranch_scc1 KB_DN"); stamp(a, 8); a("s_mov_b32 s73, 1\ns_nop 7\ns_barrier\ns_branch KB_REP\nKB_DN:"); stamp(a, 9)
    for k in range(4): a(f"ds_write_b128 v9, {Q(ACC + 4*k)} offset:{1024*k}")
    a(f"""
    s_lshl_b32 s48, s3, 2
    s_add_u32 s48, s48, {FLAG0}
    v_mov_b32 v3, s48
    v_mov_b32 v5, 1
    ds_write_b32 v3, v5
    s_lshl_b32 s66, s65, 16
    s_and_b32 s67, s65, 0xffff0000
    s_and_b32 s65, s64, 0xffff0000
    s_lshl_b32 s64, s64, 16
    """)
    stamp(a, 1)
    wait_init(a, "K1B", 10)
    if OPT.get("st2"): stamp(a, 3)
    XF = lambda i, c: 64 + 4*i + c
    UF = lambda i, c: 96 + 4*i + c
    MR = lambda i: 40 + 2*i
    ldst = f"global_load_dwordx4 v[32:35], v7, s[42:43] sc1\nglobal_load_dwordx4 v[36:39], v7, s[42:43] offset:16 sc1"
    a(ldst)
    for i in range(8):
        for h in range(2):
            a(f"v_lshlrev_b32 v{XF(i, 2*h)}, 16, v{XG + 2*i + h}")
            a(f"v_and_b32 v{XF(i, 2*h+1)}, 0xffff0000, v{XG + 2*i + h}")
    a(f"""
    s_mov_b32 s15, 0
K1_POLL:
    s_waitcnt vmcnt(0)
    v_min3_u32 v10, v32, v33, v34
    v_min3_u32 v11, v35, v36, v37
    v_min3_u32 v10, v10, v38, v39
    v_min_u32 v10, v10, v11
    v_cmp_eq_u32 vcc, 0, v10
    s_add_u32 s15, s15, 1
    s_cbranch_vccz K1_READY
    s_cmp_ge_u32 s15, {SPIN}
    s_cbranch_scc1 K1_READY
    s_sleep 4
    {ldst}
    s_branch K1_POLL
K1_READY:
    """)
    stamp(a, 2)
    for i in range(8):
        a(f"v_lshlrev_b32 v{MR(i)+1}, 16, v{32+i}")
        a(f"v_and_b32 v{MR(i)}, 0xffff0000, v{32+i}")
        a(f"v_rcp_f32 v{MR(i)+1}, v{MR(i)+1}")
    for i in range(8):
        for h in range(2):
            a(f"v_pk_add_f32 {P(UF(i, 2*h))}, {P(XF(i, 2*h))}, {P(MR(i))} op_sel:[0,0] op_sel_hi:[1,0] neg_lo:[0,1] neg_hi:[0,1]")
        for c in range(4): a(f"v_cvt_pk_bf16_f32 v{UF(i,c)}, 0, v{UF(i,c)}")
        for h in range(2):
            a(f"v_pk_mul_f32 {P(UF(i, 2*h))}, {P(UF(i, 2*h))}, {P(MR(i))} op_sel:[0,1] op_sel_hi:[1,1]")
        for c in range(4): a(f"v_cvt_pk_bf16_f32 v{UF(i,c)}, 0, v{UF(i,c)}")
    for c in range(4):
        for i in range(0, 8, 2):
            a(f"v_cvt_pk_f16_f32 v{16 + 4*c + i//2}, v{UF(i,c)}, v{UF(i+1,c)}")
        a(f"ds_write_b128 v8, {Q(16 + 4*c)} offset:{U_STRIDE*c}")
    a("s_waitcnt lgkmcnt(0)")
    if not OPT.get("st2"): stamp(a, 3)
    a("s_barrier")
    for i in range(8):
        for h in range(2):
            a(f"v_pk_mul_f32 {P(UF(i, 2*h))}, {P(UF(i, 2*h))}, s[{64+2*h}:{65+2*h}]")
    for c in range(4):
        for i in range(8):
            a(f"v_cvt_pk_bf16_f32 v{128 + 8*c + i}, v{UF(i,c)}, v{XF(i,c)}")
        a(f"ds_write_b128 v6, {Q(128 + 8*c)} offset:{XU_STRIDE*c}")
        a(f"ds_write_b128 v6, {Q(132 + 8*c)} offset:{XU_STRIDE*c + 16}")
    a("s_waitcnt lgkmcnt(0)")
    a("s_barrier")
    a("s_branch K1_HW")

    a(f"""
K1_HELPER:
    s_lshl_b32 s9, s7, 3
    s_add_u32 s9, s9, s6
    s_cmp_ge_u32 s7, 8
    s_cbranch_scc1 K1_H2
    v_lshrrev_b32 v2, 4, v0
    s_lshl_b32 s10, s9, 5
    v_add_u32 v3, s10, v2
    v_mul_u32_u24 v3, 1280, v3
    v_and_b32 v4, 15, v0
    v_lshl_add_u32 v3, v4, 4, v3
    """)
    for j in range(5): a(f"global_load_dwordx4 {Q(16 + 4*j)}, v3, s[16:17] offset:{256*j} {OPT.get('ntx','')}")
    a(f"""
    s_mov_b32 s11, 0x3f803f80
    v_lshlrev_b32 v2, 2, v2
    v_add_u32 v2, 0x18000, v2
    v_mov_b32 v10, 0
    v_mov_b32 v11, 0
    v_mov_b32 v12, 0
    v_mov_b32 v13, 0
    """)
    slab_addr(a, 1280)
    a(f"""
    s_lshl_b32 s10, s9, 2
    s_add_u32 s10, s10, s8
    s_cmp_ge_u32 s8, 4
    s_cselect_b32 s10, 240, s10
    s_min_u32 s10, s10, 240
    s_mul_i32 s52, s10, 205
    s_lshr_b32 s52, s52, 11
    s_mul_i32 s60, s52, 10
    s_sub_u32 s60, s10, s60
    s_mul_i32 s12, s52, 43
    s_lshr_b32 s12, s12, 7
    s_mul_i32 s13, s12, 3
    s_sub_u32 s13, s52, s13
    s_lshl_b32 s13, s13, 2
    s_mul_i32 s12, s12, {96*1280}
    s_lshl_b32 s14, s60, 7
    s_add_u32 s12, s12, s14
    s_lshr_b32 s58, 0x320, s13
    s_and_b32 s58, s58, 15
    s_mul_i32 s58, s58, {16*1280}
    s_add_u32 s58, s58, s12
    s_lshr_b32 s59, 0x451, s13
    s_and_b32 s59, s59, 15
    s_mul_i32 s59, s59, {16*1280}
    s_add_u32 s59, s59, s12
    s_lshl_b32 s57, s60, 2
    """)
    srd(a, 68, 38, 0, 768 * 1280)
    srd(a, 64, 42, WS_WO, 768 * 1280)
    for j in range(5):
        a(f"s_waitcnt vmcnt({4-j})")
        for r in range(4):
            a(f"v_dot2_f32_bf16 v{10 + (r & 1)}, v{16 + 4*j + r}, s11, v{10 + (r & 1)}")
            a(f"v_dot2_f32_bf16 v{12 + (r & 1)}, v{16 + 4*j + r}, v{16 + 4*j + r}, v{12 + (r & 1)}")
    stamp(a, 1)
    a("v_add_f32 v10, v10, v11\nv_add_f32 v12, v12, v13")
    for sh in (8, 4, 2, 1):
        for r in (10, 12): a(f"v_add_f32_dpp v{r}, v{r}, v{r} row_ror:{sh} row_mask:0xf bank_mask:0xf")
    ln_finish(a, 10, 12, 640, 11, rcp=False)
    a(f"""
    v_cvt_pk_bf16_f32 v12, v12, v10
    ds_write_b32 v2, v12
    s_cmp_lg_u32 s8, 4
    s_cbranch_scc1 K1_NI
    """)
    wait_init(a, "K1H", 10)
    a(f"""
K1_NI:
    s_waitcnt lgkmcnt(0)
    s_barrier
    s_cmp_lg_u32 s8, 4
    s_cbranch_scc1 K1_WO
    v_lshlrev_b32 v2, 2, v1
    v_add_u32 v3, 0x18000, v2
    ds_read_b32 v12, v3
    s_lshl_b32 s12, s9, 7
    s_add_u32 s12, s12, {WS_STAT1}
    v_add_u32 v2, s12, v2
    s_waitcnt lgkmcnt(0)
    s_mov_b32 exec_hi, 0
    global_store_dword v2, v12, s[42:43] sc1
    s_mov_b32 exec_hi, -1
    """)
    stamp(a, 2)
    a(f"""
K1_WO:
    s_barrier
    s_lshl_b32 s12, s7, 17
    s_lshl_b32 s13, s6, 20
    s_add_u32 s12, s12, s13
    v_lshrrev_b32 v2, 4, v0
    v_lshlrev_b32 v2, 12, v2
    v_lshl_add_u32 v2, v4, 7, v2
    v_add_u32 v2, s12, v2
    global_load_dword v255, v2, s[34:35] offset:2048 nt
    s_cmp_ge_u32 s10, 240
    s_cbranch_scc1 K1_PF
    """)
    for e in range(4):
        a(f"s_add_u32 m0, s56, {1024*e}")
        a(f"s_add_u32 s13, s{58 + (e >> 1)}, {8*1280*(e & 1)}")
        a(f"buffer_load_dwordx4 v7, s[68:71], s13 offen {OPT.get('nt','nt')} lds")
    a("s_waitcnt vmcnt(0)")
    slab(a, 0, 16, 57, 52, 5, 24, 64)
    a(f"""
    s_branch K1_PF
K1_H2:
    s_cmp_eq_u32 s7, 11
    s_cbranch_scc1 K1_H3
    s_sub_u32 s10, s9, 64
    s_lshl_b32 s57, s10, 2
    s_mul_i32 s12, s8, {32*3072}
    s_lshl_b32 s13, s10, 7
    s_add_u32 s12, s12, s13
    """)
    slab_addr(a, 3072)
    srd(a, 68, 32, 0, 640 * 3072)
    srd(a, 64, 42, WS_WI, 640 * 3072)
    for r in range(3):
        for e in range(4):
            a(f"s_add_u32 m0, s56, {4096*r + 1024*e}")
            a(f"s_add_u32 s13, s12, {256*3072*r + 8*3072*e}")
            a(f"buffer_load_dwordx4 v7, s[68:71], s13 offen {OPT.get('nt','nt')} lds")
    a("s_mov_b32 s11, 0x3f803f80")
    for c in range(4): a(f"v_mov_b32 v{10+c}, 0")
    for r in range(3):
        if r == 2: a("s_cmp_ge_u32 s8, 4\ns_cbranch_scc1 K1_CS")
        a(f"s_waitcnt vmcnt(8)")
        a(f"s_add_u32 s52, s8, {8*r}")
        slab(a, 4096*r, 16 + 16*r, 57, 43, 6, 20, 64)
        for k in range(4):
            for c in range(4):
                a(f"v_dot2_f32_bf16 v{10+c}, v{16 + 16*r + 4*c + k}, s11, v{10+c}")
    a("K1_CS:\ns_nop 2")
    allred_g(a, [10, 11, 12, 13], 64)
    a(f"""
    v_lshrrev_b32 v2, 4, v1
    v_cmp_eq_u32 vcc, 1, v2
    v_cndmask_b32 v10, v10, v11, vcc
    v_cmp_eq_u32 vcc, 2, v2
    v_cndmask_b32 v10, v10, v12, vcc
    v_cmp_eq_u32 vcc, 3, v2
    v_cndmask_b32 v10, v10, v13, vcc
    v_lshlrev_b32 v5, 2, v0
    v_add_u32 v5, 0x18000, v5
    ds_write_b32 v5, v10
    s_waitcnt lgkmcnt(0)
    s_barrier
    s_cmp_lg_u32 s8, 0
    s_cbranch_scc1 K1_PF
    """)
    for i in range(8): a(f"ds_read_b32 v{64+i}, v5 offset:{256*i}")
    a("s_waitcnt lgkmcnt(0)")
    for i in range(1, 8): a(f"v_add_f32 v64, v64, v{64+i}")
    a(f"""
    s_lshl_b32 s10, s10, 8
    s_add_u32 s10, s10, {WS_CSUM}
    v_lshl_add_u32 v5, v1, 2, s10
    global_store_dword v5, v64, s[42:43] {SC}
    s_branch K1_PF
K1_H3:
    v_lshlrev_b32 v3, 4, v0
    s_lshl_b32 s10, s6, 15
    s_add_u32 s10, s10, {WS_PST}
    v_add_u32 v2, s10, v3
    v_mov_b32 v4, -1
    v_mov_b32 v5, -1
    v_mov_b32 v6, -1
    v_mov_b32 v7, -1
    """)
    for i in range(4):
        a(f"global_store_dwordx4 v2, v[4:7], s[42:43] {SC}")
        if i < 3: a("v_add_u32 v2, 0x2000, v2")
    a(f"""
K1_PF:
    s_cmp_lg_u32 s8, 4
    s_cbranch_scc1 K1_PG
    """)
    wait_init(a, "K1P", 10)
    a(f"""
K1_PG:
    s_waitcnt vmcnt(0)
    s_barrier
    s_cmp_lt_u32 s8, 4
    s_cbranch_scc1 K1_HX
    s_cmp_lg_u32 s8, 4
    s_cbranch_scc1 K1_HW
    s_cmp_lt_u32 s7, 8
    s_mov_b32 s9, {C_WI}
    s_cselect_b32 s9, {C_WO}, s9
    s_lshl_b32 s12, s6, 7
    s_add_u32 s9, s9, s12
    """)
    arrive(a, 9, 10)
    stamp(a, 3)
    a("K1_HW:")
    stamp(a, 1, "cv")
    wsetup(a, 4, 130560, 8192)
    wdma(a, 4, 0, 0); wdma(a, 4, 1, 1)
    for u in range(8):
        a(f"s_waitcnt vmcnt({4 if u < 7 else 0})")
        wread(a, 4, u, u & 1)
        if u < 6:
            a("s_waitcnt lgkmcnt(0)")
            wdma(a, 4, u + 2, u & 1)
    stamp(a, 2, "cv")
    a("s_cmp_lg_u32 s8, 4\ns_cbranch_scc1 K1_NW")
    poll8(a, "K1W", C_WI, 4, 10, sleep=8)
    a("K1_NW:")
    stamp(a, 3, "cv")
    a(f"""
    s_waitcnt lgkmcnt(0)
    s_barrier
    s_cmp_ge_u32 s7, 12
    s_cbranch_scc1 PH3
    """)
    srd(a, 64, 42, WS_WI, 320 * 3072)
    a(f"""
    s_lshl_b32 s10, s7, 15
    s_sub_u32 s10, s10, 0x8000
    v_lshl_add_u32 v2, v0, 7, s10
    """)
    for r in range(3):
        a(f"s_mov_b32 s12, {0x60000*r}\nbuffer_load_dword v127, v2, s[64:67], s12 offen sc1")
    stamp(a, 4)
    a("s_branch PH3\nK1_HX:\ns_barrier")
```

```python
import struct
WS_HT = 0
WS_STAT1 = 0x280000
WS_CNT = 0x282000
C_S1 = WS_CNT + 192*128
C_WI = WS_CNT + 8*128
C_WO = WS_CNT + 16*128
C_S2 = WS_CNT + 64*128
C_S3 = WS_CNT + 128*128
WS_CSUM = 0x28c000
WS_PST = 0x290000
WS_Z2 = 0x300000
WS_P = 0x600000
WS_WI = 0x900000
WS_WO = WS_WI + 640*3072
WS_STAMP = 0x1000000
LDS_FLAG = 163840 - 64
SC = "sc1"
SPIN = "0x20000"
OPT = {}
def fhex(x): return "0x%08x" % struct.unpack("<I", struct.pack("<f", x))[0]
def P(r): return f"v[{r}:{r+1}]"
def Q(r): return f"v[{r}:{r+3}]"

class Cnt:
    def __init__(self, a, name, mx): self.a = a; self.name = name; self.mx = mx; self.q = []
    def issue(self, tag, n=1): self.q.extend([tag] * n)
    def wait(self, tags):
        last = max((i for i, t in enumerate(self.q) if t in tags), default=-1)
        if last < 0: return
        n = min(len(self.q) - 1 - last, self.mx)
        self.a(f"s_waitcnt {self.name}({n})")
        del self.q[:len(self.q) - n]
    def all(self):
        self.a(f"s_waitcnt {self.name}(0)"); self.q = []

NSTAMP = 12
def stamp(a, k, grp="main"):
    if not OPT.get("stamp"): return
    if k not in (0, NSTAMP - 1) and OPT.get("sg", "main") != grp: return
    a(f"s_memrealtime s[{76+2*k}:{77+2*k}]")

def stamp_out(a, tag):
    if not OPT.get("stamp"): return
    a("s_waitcnt vmcnt(0)")
    stamp(a, NSTAMP - 1)
    a("s_waitcnt lgkmcnt(0)")
    for i in range(NSTAMP): a(f"v_mov_b32 v{4+i}, s{76+2*i}")
    a(f"""
    s_lshl_b32 s74, s2, 7
    s_lshl_b32 s75, s8, 4
    s_add_u32 s74, s74, s75
    s_add_u32 s74, s74, {WS_STAMP}
    v_mov_b32 v2, s74
    s_cmp_lg_u32 s3, 0
    s_cbranch_scc1 ST_{tag}
    s_mov_b64 exec, 1
    global_store_dwordx4 v2, v[4:7], s[42:43]
    global_store_dwordx4 v2, v[8:11], s[42:43] offset:16
    global_store_dwordx4 v2, v[12:15], s[42:43] offset:32
ST_{tag}:
    """)

def entry(a, name):
    a(f"{name}:")
    if OPT.get("stamp"):
        for k in range(1, NSTAMP): a(f"s_mov_b32 s{76+2*k}, 0")
        stamp(a, 0)
    a(f"""
    s_cmp_ge_u32 s2, 256
    s_cbranch_scc1 K_END
    s_load_dwordx16 s[16:31], s[0:1], 0
    s_load_dwordx8 s[32:39], s[0:1], 64
    s_load_dwordx4 s[40:43], s[0:1], 104
    s_load_dwordx2 s[44:45], s[0:1], 96
    v_and_b32 v1, 63, v0
    v_lshrrev_b32 v2, 6, v0
    s_and_b32 s6, s2, 7
    s_lshr_b32 s7, s2, 3
    v_readfirstlane_b32 s8, v2
    s_lshl_b32 s46, s6, 2
    s_lshr_b32 s9, s7, 3
    s_add_u32 s46, s46, s9
    s_and_b32 s47, s7, 7
    s_and_b32 s3, s8, 3
    """)

def srd(a, r, base, off, nbytes):
    if off:
        a(f"s_add_u32 s{r}, s{base}, {off}\ns_addc_u32 s{r+1}, s{base+1}, 0")
    else:
        a(f"s_mov_b32 s{r}, s{base}\ns_mov_b32 s{r+1}, s{base+1}")
    a(f"s_mov_b32 s{r+2}, {nbytes}\ns_mov_b32 s{r+3}, 0x20000")

def allred_g(a, regs, tmp):
    for swap in ("v_permlane32_swap_b32", "v_permlane16_swap_b32"):
        for k, r in enumerate(regs): a(f"v_mov_b32 v{tmp+k}, v{r}")
        for k, r in enumerate(regs): a(f"{swap} v{r}, v{tmp+k}")
        for k, r in enumerate(regs): a(f"v_add_f32 v{r}, v{r}, v{tmp+k}")

def ln_finish(a, s, q, n, t, rcp=True):
    a(f"v_mul_f32 v{s}, {fhex(1/n)}, v{s}")
    a(f"v_mul_f32 v{t}, v{s}, v{s}")
    a(f"v_mul_f32 v{q}, {fhex(1/n)}, v{q}")
    a(f"v_sub_f32 v{q}, v{q}, v{t}")
    a(f"v_max_f32 v{q}, 0, v{q}")
    a(f"v_cvt_pk_bf16_f32 v{q}, 0, v{q}")
    a(f"v_add_f32 v{q}, {fhex(1e-5)}, v{q}")
    a(f"v_cvt_pk_bf16_f32 v{q}, 0, v{q}")
    a(f"v_sqrt_f32 v{q}, v{q}")
    if rcp:
        a(f"v_cvt_pk_bf16_f32 v{s}, 0, v{s}")
        a(f"v_cvt_pk_bf16_f32 v{q}, 0, v{q}")
        a(f"v_rcp_f32 v{q}, v{q}")

def arrive(a, sreg, vt):
    a(f"""
    v_mov_b32 v{vt}, s{sreg}
    v_mov_b32 v{vt+1}, 1
    s_mov_b64 exec, 1
    global_atomic_add v{vt}, v{vt+1}, s[42:43] sc1
    s_mov_b64 exec, -1
    """)

def arrive_last(a, tag, ldsaddr, sreg, vt, rep=False):
    a(f"""
    v_mov_b32 v{vt}, {ldsaddr}
    v_mov_b32 v{vt+1}, 1
    s_mov_b64 exec, 1
    ds_add_rtn_u32 v{vt+2}, v{vt}, v{vt+1}
    s_mov_b64 exec, {"0xff" if rep else "1"}
    v_lshl_add_u32 v{vt}, v1, 10, s{sreg}
    s_waitcnt lgkmcnt(0)
    v_readfirstlane_b32 s15, v{vt+2}
    s_cmp_lg_u32 s15, 3
    s_cbranch_scc1 {tag}_NL
    global_atomic_add v{vt}, v{vt+1}, s[42:43] sc1
{tag}_NL:
    s_mov_b64 exec, -1
    """)

def warm(a, sreg, vt, rep=False):
    a(f"""
    v_lshl_add_u32 v{vt}, v1, 10, s{sreg}
    v_mov_b32 v{vt+1}, 0
    s_mov_b64 exec, {"0xff" if rep else "1"}
    global_atomic_add v{vt}, v{vt+1}, s[42:43] sc1
    s_mov_b64 exec, -1
    """)

def poll(a, tag, vaddr, want, vt, base="s[42:43]", sleep=2):
    a(f"""
    s_mov_b32 s15, 0
{tag}_PL:
    global_load_dword v{vt}, v{vaddr}, {base} sc1
    s_waitcnt vmcnt(0)
    v_cmp_gt_u32 vcc, {want}, v{vt}
    s_add_u32 s15, s15, 1
    s_cbranch_vccz {tag}_OK
    s_sleep {sleep}
    s_cmp_lt_u32 s15, {SPIN}
    s_cbranch_scc1 {tag}_PL
{tag}_OK:
    """)

def poll8(a, tag, off_expr, want, vt, sleep=2):
    a(f"v_and_b32 v{vt}, 7, v1\nv_lshlrev_b32 v{vt}, 7, v{vt}\nv_add_u32 v{vt}, {off_expr}, v{vt}")
    poll(a, tag, vt, want, vt + 1, sleep=sleep)

WF = lambda mt, ks: 128 + 64*mt + 4*ks
def wsetup(a, va, lds_base, per_wave):
    a(f"""
    s_lshl_b32 s73, s46, 1
    s_lshr_b32 s13, s3, 1
    s_add_u32 s73, s73, s13
    s_lshl_b32 s73, s73, 17
    s_lshr_b32 s13, s8, 2
    s_lshl_b32 s13, s13, 1
    s_and_b32 s9, s8, 1
    s_add_u32 s13, s13, s9
    s_lshl_b32 s13, s13, 10
    s_add_u32 s73, s73, s13
    s_mul_i32 s72, s3, {per_wave}
    s_add_u32 s72, s72, {lds_base}
    v_lshrrev_b32 v{va}, 3, v1
    v_lshrrev_b32 v{va+1}, 4, v1
    v_and_b32 v{va+2}, 7, v1
    v_xor_b32 v{va+1}, v{va+1}, v{va+2}
    v_lshlrev_b32 v{va}, 12, v{va}
    v_lshl_add_u32 v{va}, v{va+1}, 4, v{va}
    v_xor_b32 v{va+1}, 64, v{va}
    v_add_u32 v{va+1}, {8*4096 - 1024}, v{va+1}
    v_and_b32 v{va+3}, 15, v1
    v_lshrrev_b32 v{va+2}, 1, v{va+3}
    v_lshlrev_b32 v{va+2}, 4, v{va+2}
    v_lshl_add_u32 v{va+2}, v{va+3}, 7, v{va+2}
    v_and_b32 v{va+3}, 48, v1
    v_xor_b32 v{va+2}, v{va+2}, v{va+3}
    v_add_u32 v{va+2}, s72, v{va+2}
    v_xor_b32 v{va+3}, 64, v{va+2}
    """)
    srd(a, 68, 34, 0, 2048 * 4096)

def wdma(a, va, u, slot):
    for mt in range(2):
        a(f"s_add_u32 m0, s72, {4096*slot + 2048*mt}")
        a(f"s_add_u32 s13, s73, {16*4096*mt + 128*u}")
        a(f"buffer_load_dwordx4 v{va}, s[68:71], s13 offen lds")
        a(f"buffer_load_dwordx4 v{va+1}, s[68:71], s13 offen offset:1024 lds")

def wread(a, va, u, slot):
    for ks in range(2):
        for mt in range(2):
            a(f"ds_read_b128 {Q(WF(mt, 2*u + ks))}, v{va+2+ks} offset:{4096*slot + 2048*mt}")
```

```python
import re

TRANS = ("v_exp_f32", "v_log_f32", "v_rcp_f32", "v_rsq_f32", "v_sqrt_f32", "v_sin_f32", "v_cos_f32", "v_rcp_iflag_f32")

def _regs(tok):
    tok = tok.strip()
    tok = re.sub(r"^-|^abs\(|\)$|^\||\|$", "", tok)
    tok = tok.lstrip("-").replace("abs(", "").replace(")", "").replace("|", "")
    m = re.fullmatch(r"([vsa])(\d+)", tok)
    if m: return {tok}
    m = re.fullmatch(r"([vsa])\[(\d+):(\d+)\]", tok)
    if m: return {f"{m.group(1)}{i}" for i in range(int(m.group(2)), int(m.group(3)) + 1)}
    if tok in ("vcc", "vcc_lo", "vcc_hi"): return {"vcc"}
    if tok in ("exec", "exec_lo", "exec_hi"): return {"exec"}
    if tok == "m0": return {"m0"}
    return set()

class Ins:
    def __init__(self, text):
        self.text = text
        t = text.split(";")[0].strip()
        self.label = t.endswith(":")
        self.directive = t.startswith(".")
        self.mn = ""
        self.dst = set(); self.src = set()
        self.srcAB = set(); self.srcC = set()
        if self.label or self.directive or not t:
            return
        parts = t.split(None, 1)
        mn = self.mn = parts[0]
        rest = parts[1] if len(parts) > 1 else ""
        ops = []; depth = 0; cur = ""
        for ch in rest:
            if ch == "[": depth += 1
            if ch == "]": depth -= 1
            if ch == "," and depth == 0: ops.append(cur); cur = ""
            else: cur += ch
        if cur.strip(): ops.append(cur)
        ops = [o.strip() for o in ops]
        mods = ""
        if ops:
            last = ops[-1].split(None, 1)
            ops[-1] = last[0]
            mods = last[1] if len(last) > 1 else ""
        self.ops = ops; self.mods = mods
        R = [_regs(o) for o in ops]
        self.valu = mn.startswith("v_") and not mn.startswith("v_mfma")
        self.mfma = mn.startswith("v_mfma")
        self.salu = mn.startswith("s_") and not mn.startswith(("s_load", "s_waitcnt", "s_nop", "s_barrier", "s_branch", "s_cbranch", "s_endpgm", "s_sleep", "s_memtime", "s_memrealtime", "s_setprio", "s_buffer_load"))
        self.ds = mn.startswith("ds_")
        self.vmem = mn.startswith(("buffer_", "global_", "flat_"))
        self.trans = mn.replace("_e32", "").replace("_e64", "") in TRANS
        self.dpp = ("row_" in mods or "quad_perm" in mods or "wave_" in mods or "_dpp" in mn)
        self.lds_dma = self.vmem and (re.search(r"\blds\b", mods) is not None or "load_lds" in mn)
        un = lambda l: set().union(*l) if l else set()
        if self.mfma:
            self.dst = R[0]; self.srcAB = R[1] | R[2]; self.srcC = R[3]; self.src = self.srcAB | self.srcC
            self.passes = 8 if "32x32" in mn else 4
        elif self.valu:
            if mn.startswith("v_cmp"):
                self.dst = R[0]; self.src = un(R[1:])
                if mn.startswith("v_cmpx"): self.dst |= {"exec"}
            elif mn.startswith(("v_add_co", "v_sub_co", "v_subrev_co", "v_addc_co", "v_subb_co", "v_mad_u64", "v_div_scale")):
                self.dst = R[0] | R[1]; self.src = un(R[2:])
            elif mn.startswith("v_permlane") and "swap" in mn:
                self.dst = R[0] | R[1]; self.src = R[0] | R[1]
            elif mn.startswith("v_swap"):
                self.dst = R[0] | R[1]; self.src = R[0] | R[1]
            else:
                self.dst = R[0]; self.src = un(R[1:])
                if mn.startswith(("v_fmac", "v_pk_fmac", "v_dot2c", "v_writelane")) or self.dpp: self.src |= R[0]
        elif self.ds:
            if mn.startswith(("ds_read", "ds_bpermute", "ds_permute", "ds_swizzle")):
                self.dst = R[0]; self.src = un(R[1:])
            else:
                self.src = un(R)
            if "addtid" in mn: self.src |= {"m0"}
        elif self.vmem:
            if self.lds_dma:
                self.src = un(R) | {"m0"}
            elif "load" in mn:
                self.dst = R[0]; self.src = un(R[1:])
            else:
                self.src = un(R)
                self.store_data = R[0] if mn.startswith("buffer_") else R[1]
                self.wide = mn.endswith(("x3", "x4"))
        elif mn.startswith("s_"):
            if mn.startswith(("s_cmp", "s_cbranch", "s_branch", "s_waitcnt", "s_nop", "s_barrier", "s_endpgm", "s_sleep", "s_setprio", "s_bitcmp")):
                self.src = un(R)
            else:
                self.dst = R[0] if R else set(); self.src = un(R[1:])
                if "saveexec" in mn: self.dst |= {"exec"}; self.src |= {"exec"}

    def states(self):
        if self.label or self.directive or not self.mn: return 0
        if self.mn == "s_nop": return int(self.ops[0], 0) + 1
        return 1

def need(p, c):
    n = 0
    vd = {r for r in p.dst if r[0] in "va" and r != "vcc"}
    sd = {r for r in p.dst if r[0] == "s" or r == "vcc"}
    if p.valu:
        if p.trans and c.valu and not c.trans and (vd & c.src): n = max(n, 1)
        if p.trans and (c.mfma) and (vd & c.src): n = max(n, 2)
        if c.mfma and (vd & c.src): n = max(n, 2)
        if c.valu and c.dpp and (vd & c.src): n = max(n, 2)
        if c.valu and c.mn.startswith("v_permlane") and (vd & c.src): n = max(n, 2)
        if c.valu and c.mn.startswith(("v_readlane", "v_readfirstlane")) and (vd & c.src): n = max(n, 1)
        if sd:
            if c.valu and (sd & c.src):
                n = max(n, 4 if c.mn.startswith(("v_readlane", "v_writelane")) else 2)
            if c.valu and "vcc" in sd and c.mn.startswith(("v_cndmask", "v_addc", "v_subb")): n = max(n, 2)
            if c.vmem and (sd & c.src): n = max(n, 5)
            if (c.salu or c.mn.startswith(("s_load", "s_cbranch_vcc"))) and ((sd & c.src) or (c.mn.startswith("s_cbranch_vcc") and "vcc" in sd)): n = max(n, 1)
        if "exec" in p.dst:
            if c.valu and c.dpp: n = max(n, 5)
            if c.mfma or (c.valu and c.mn.startswith(("v_readlane", "v_readfirstlane", "v_writelane", "v_permlane"))): n = max(n, 4)
        if "op_sel" in p.mods and not p.mn.startswith("v_pk") and c.valu and (vd & (c.src | c.dst)): n = max(n, 1)
        if p.mn.startswith("v_dot"):
            if (c.valu or c.mfma or c.ds or c.vmem) and (vd & (c.src | c.dst)):
                same = c.mn == p.mn and len(c.ops) > 3 and not (vd & (_regs(c.ops[1]) | _regs(c.ops[2])))
                if not same: n = max(n, 3)
    if p.mfma:
        ps = p.passes
        if c.mfma:
            if vd & c.srcAB: n = max(n, {4: 8, 8: 12}[ps])
            if vd & c.srcC and not (c.srcC == vd and c.passes == ps): n = max(n, {4: 6, 8: 10}[ps])
            if (vd & c.dst) and not (c.srcC == vd): n = max(n, {4: 8, 8: 12}[ps])
        elif (c.valu or c.ds or c.vmem) and (vd & (c.src | c.dst)): n = max(n, {4: 8, 8: 12}[ps])
        if c.valu and (p.srcC & c.dst): n = max(n, {4: 3, 8: 7}[ps])
    if p.salu and "m0" in p.dst and (c.lds_dma or (c.ds and "addtid" in c.mn)): n = max(n, 1)
    if p.vmem and getattr(p, "wide", False) and (p.store_data & c.dst): n = max(n, 2 if c.valu else 1)
    return n

class Asm:
    def __init__(self):
        self.lines = []
    def __call__(self, s):
        for l in s.split("\n"):
            l = l.strip()
            if l: self.lines.append(l)
    def pad(self):
        out = []
        hist = []
        for l in self.lines:
            i = Ins(l)
            if i.label or i.directive or not i.mn:
                out.append(i); continue
            req = 0; dist = 0
            for p in reversed(hist):
                r = need(p, i) - dist
                req = max(req, r)
                dist += p.states()
                if dist > 20: break
            if req > 0:
                nop = Ins(f"s_nop {req - 1}")
                out.append(nop); hist.append(nop)
            out.append(i); hist.append(i)
            hist = hist[-24:]
        return "\n".join((x.text if (x.label or x.directive) else "    " + x.text) for x in out) + "\n"


import subprocess, tempfile, os
E64_OK = ("v_mov_b32", "v_add_f32", "v_mul_f32", "v_sub_f32", "v_max_f32", "v_lshlrev_b32", "v_lshrrev_b32", "v_and_b32", "v_add_u32",
          "v_exp_f32", "v_rcp_f32", "v_sin_f32", "v_cos_f32", "v_fract_f32", "v_sqrt_f32", "v_xor_b32", "v_sub_u32", "v_max_u32", "v_min_u32")

def align_runs(text, minrun=5):
    with tempfile.TemporaryDirectory() as d:
        sp = os.path.join(d, "a.s"); op = os.path.join(d, "a.o")
        open(sp, "w").write(text)
        r = subprocess.run(["clang", "-x", "assembler", "-target", "amdgcn-amd-amdhsa", "-mcpu=gfx950", "-c", sp, "-o", op], capture_output=True, text=True)
        assert r.returncode == 0, r.stderr
        dis = subprocess.run(["llvm-objdump", "-d", "--mcpu=gfx950", op], capture_output=True, text=True).stdout
    ins = []
    for l in dis.split("\n"):
        m = re.search(r"^\s+(\S+).*// ([0-9A-F]+): ((?:[0-9A-F]{8} ?)+)", l)
        if m: ins.append((m.group(1), int(m.group(2), 16), 4 * len(m.group(3).split())))
    lines = text.split("\n")
    idx = []
    k = 0
    intext = False
    for n, l in enumerate(lines):
        t = l.split(";")[0].strip()
        if t == ".text": intext = True
        if t.startswith(".section"): intext = False
        if not intext or not t: continue
        if t.startswith(".p2align"):
            idx.append((n, -1))
            while k < len(ins) and ins[k][1] % 256 != 0 and ins[k][0] in ("s_nop", "s_code_end", "v_cndmask_b32_e32"): k += 1
            continue
        if t.startswith(".") or t.endswith(":"): continue
        mn = t.split()[0]
        assert ins[k][0].startswith(mn.replace("_e64", "").replace("_e32", "")), (l, ins[k])
        idx.append((n, ins[k][2])); k += 1
    off = 0; fixes = 0
    for p, (n, sz) in enumerate(idx):
        if sz < 0: off = 0; continue
        if sz == 8 and off % 8 == 4 and p > 0 and idx[p-1][1] == 4:
            run = 0
            while p + run < len(idx) and idx[p + run][1] == 8: run += 1
            pl = lines[idx[p-1][0]].strip(); pm = pl.split()[0]
            if pm in E64_OK and "dpp" not in pl and "row_" not in pl and run >= 2:
                lines[idx[p-1][0]] = "    " + pl.replace(pm, pm + "_e64", 1); off += 4; fixes += 1
            elif run >= minrun:
                lines[n] = "    s_nop 0\n" + lines[n]; off += 4; fixes += 1
        off += sz
    return "\n".join(lines)
```

```python
import struct
WS_HT = 0
WS_STAT1 = 0x280000
WS_CNT = 0x282000
WS_CSUM = 0x284000
WS_PST = 0x288000
WS_Z1 = 0x300000
WS_Z2 = 0x600000
WS_P = 0x900000
WS_WI = 0xC00000
WS_WO = 0xE00000
WS_STAMP = 0x1000000
SC = "sc1"
def fhex(x): return "0x%08x" % struct.unpack("<I", struct.pack("<f", x))[0]
def P(r): return f"v[{r}:{r+1}]"
def Q(r): return f"v[{r}:{r+3}]"

class Cnt:
    def __init__(self, a, name, mx): self.a = a; self.name = name; self.mx = mx; self.q = []
    def issue(self, tag, n=1): self.q.extend([tag] * n)
    def wait(self, tags):
        last = max((i for i, t in enumerate(self.q) if t in tags), default=-1)
        if last < 0: return
        n = min(len(self.q) - 1 - last, self.mx)
        self.a(f"s_waitcnt {self.name}({n})")
        del self.q[:len(self.q) - n]
    def all(self):
        self.a(f"s_waitcnt {self.name}(0)"); self.q = []

def entry(a, name, stamp, prefetch_code=False):
    a(f"{name}_kernel:")
    if stamp: a("s_memrealtime s[90:91]")
    a(f"""
    s_cmp_ge_u32 s2, 256
    s_cbranch_scc1 {name.upper()}_END
    s_load_dwordx16 s[16:31], s[0:1], 0
    s_load_dwordx8 s[32:39], s[0:1], 64
    s_load_dwordx4 s[40:43], s[0:1], 104
    s_load_dwordx2 s[44:45], s[0:1], 96
    """)
    if prefetch_code:
        a(f"""
        s_getpc_b64 s[4:5]
{name.upper()}_PC:
        v_lshlrev_b32 v2, 7, v0
        v_min_u32 v2, CODE_END-{name.upper()}_PC-4, v2
        global_load_dword v255, v2, s[4:5]
        """)
    a("""
    v_and_b32 v1, 63, v0
    v_lshrrev_b32 v2, 6, v0
    s_and_b32 s6, s2, 7
    s_lshr_b32 s7, s2, 3
    v_readfirstlane_b32 s8, v2
    s_and_b32 s3, s8, 3
    """)

def srd(a, r, base, off, nbytes):
    if off:
        a(f"s_add_u32 s{r}, s{base}, {off}\ns_addc_u32 s{r+1}, s{base+1}, 0")
    else:
        a(f"s_mov_b32 s{r}, s{base}\ns_mov_b32 s{r+1}, s{base+1}")
    a(f"s_mov_b32 s{r+2}, {nbytes}\ns_mov_b32 s{r+3}, 0x20000")

def allred_g(a, regs, tmp):
    for swap in ("v_permlane32_swap_b32", "v_permlane16_swap_b32"):
        for k, r in enumerate(regs): a(f"v_mov_b32 v{tmp+k}, v{r}")
        for k, r in enumerate(regs): a(f"{swap} v{r}, v{tmp+k}")
        for k, r in enumerate(regs): a(f"v_add_f32 v{r}, v{r}, v{tmp+k}")

def ln_finish(a, s, q, n, t, rcp=True):
    a(f"v_mul_f32 v{s}, {fhex(1/n)}, v{s}")
    a(f"v_mul_f32 v{t}, v{s}, v{s}")
    a(f"v_mul_f32 v{q}, {fhex(1/n)}, v{q}")
    a(f"v_sub_f32 v{q}, v{q}, v{t}")
    a(f"v_max_f32 v{q}, 0, v{q}")
    a(f"v_cvt_pk_bf16_f32 v{q}, 0, v{q}")
    a(f"v_add_f32 v{q}, {fhex(1e-5)}, v{q}")
    a(f"v_cvt_pk_bf16_f32 v{q}, 0, v{q}")
    a(f"v_sqrt_f32 v{q}, v{q}")
    if rcp:
        a(f"v_cvt_pk_bf16_f32 v{s}, 0, v{s}")
        a(f"v_cvt_pk_bf16_f32 v{q}, 0, v{q}")
        a(f"v_rcp_f32 v{q}, v{q}")

def stamp_out(a, tag, kidx, tid=0, slot=0, ws="s[42:43]"):
    a("s_waitcnt vmcnt(0)")
    a("s_memrealtime s[100:101]")
    a("s_waitcnt lgkmcnt(0)")
    for i, r in enumerate((90, 92, 94, 96, 98, 100)):
        a(f"v_mov_b32 v{2+i}, s{r}")
    a(f"s_lshl_b32 s88, s2, 5")
    a(f"s_add_u32 s88, s88, {WS_STAMP + (kidx*4 + slot)*8192}")
    a("v_mov_b32 v10, s88")
    a(f"v_cmp_eq_u32 vcc, {tid}, v0")
    a("s_and_saveexec_b64 s[86:87], vcc")
    a(f"s_cbranch_execz ST_{tag}")
    a(f"global_store_dwordx4 v10, v[2:5], {ws}")
    a(f"global_store_dwordx2 v10, v[6:7], {ws} offset:16")
    a(f"ST_{tag}:")
    a("s_mov_b64 exec, s[86:87]")
```

```python
import sys
from asmgen import Asm, align_runs
import layout
from layout import *
import gen_k1, gen_gemm
NAME = "sequential_preLN__ssm_conv_s4d__mixer_gmlp__prompt_kernel"
HEADER = open("sequential_preLN__ssm_conv_s4d__mixer_gmlp__prompt.s.ref").read().split("; Override launch")[0]

def build():
    s = HEADER
    s += f"; @launch grid=(256,1,1) block=(512,1,1) lds={gen_gemm.LDS_TOTAL}\n"
    s += '.amdgcn_target "amdgcn-amd-amdhsa--gfx950"\n.text\n'
    a = Asm()
    entry(a, NAME); gen_k1.gen_k1(a)
    gen_gemm.gen_k3(a); gen_gemm.gen_k4(a)
    s += f".globl {NAME}\n.p2align 8\n.type {NAME},@function\n" + a.pad()
    s += "CODE_END:\n    s_endpgm\n"
    s += f""".section .rodata,"a"
.p2align 6
.amdhsa_kernel {NAME}
  .amdhsa_next_free_vgpr 256
  .amdhsa_next_free_sgpr 102
  .amdhsa_accum_offset 256
  .amdhsa_group_segment_fixed_size 0
  .amdhsa_kernarg_size 120
  .amdhsa_user_sgpr_count 2
  .amdhsa_user_sgpr_kernarg_segment_ptr 1
  .amdhsa_system_sgpr_workgroup_id_x 1
.end_amdhsa_kernel
"""
    return align_runs(s, OPT.get('minrun', 5)) if OPT.get('al', 0) else s

if __name__ == "__main__":
    out = sys.argv[1]
    if "stamp" in sys.argv: OPT["stamp"] = 1
    for x in sys.argv:
        if x.startswith("o:"):
            k, v = x[2:].split("=")
            OPT[k] = int(v) if v.lstrip("-").isdigit() else v
    open(out, "w").write(build())
```

```python
import struct
WS_HT = 0
WS_STAT1 = 0x280000
WS_CNT = 0x282000
C_S1 = WS_CNT + 192*128
C_WI = WS_CNT + 8*128
C_WO = WS_CNT + 16*128
C_S2 = WS_CNT + 64*128
C_S3 = WS_CNT + 128*128
WS_CSUM = 0x28c000
WS_PST = 0x290000
WS_Z2 = 0x300000
WS_P = 0x600000
WS_WI = 0x900000
WS_WO = WS_WI + 640*3072
WS_STAMP = 0x1000000
LDS_FLAG = 163840 - 64
SC = "sc1"
SPIN = "0x20000"
OPT = {}
def fhex(x): return "0x%08x" % struct.unpack("<I", struct.pack("<f", x))[0]
def P(r): return f"v[{r}:{r+1}]"
def Q(r): return f"v[{r}:{r+3}]"

class Cnt:
    def __init__(self, a, name, mx): self.a = a; self.name = name; self.mx = mx; self.q = []
    def issue(self, tag, n=1): self.q.extend([tag] * n)
    def wait(self, tags):
        last = max((i for i, t in enumerate(self.q) if t in tags), default=-1)
        if last < 0: return
        n = min(len(self.q) - 1 - last, self.mx)
        self.a(f"s_waitcnt {self.name}({n})")
        del self.q[:len(self.q) - n]
    def all(self):
        self.a(f"s_waitcnt {self.name}(0)"); self.q = []

NSTAMP = 12
def stamp(a, k, grp="main"):
    if not OPT.get("stamp"): return
    if k not in (0, NSTAMP - 1) and OPT.get("sg", "main") != grp: return
    a(f"s_memrealtime s[{76+2*k}:{77+2*k}]")

def stamp_out(a, tag):
    if not OPT.get("stamp"): return
    a("s_waitcnt vmcnt(0)")
    stamp(a, NSTAMP - 1)
    a("s_waitcnt lgkmcnt(0)")
    for i in range(NSTAMP): a(f"v_mov_b32 v{4+i}, s{76+2*i}")
    if OPT.get("dbg"):
        if tag == OPT["dbg"]:
            for i in range(1, NSTAMP): a(f"v_subrev_u32 v{4+i}, s76, v{4+i}")
            a(f"""
            v_mov_b32 v2, 16
            s_cmp_lg_u32 s3, 0
            s_cbranch_scc1 ST_{tag}
            s_cmp_lg_u32 s2, 200
            s_cbranch_scc1 ST_{tag}
            s_mov_b64 exec, 1
            global_store_dwordx4 v2, v[4:7], s[40:41]
            global_store_dwordx4 v2, v[8:11], s[40:41] offset:16
            global_store_dwordx4 v2, v[12:15], s[40:41] offset:32
ST_{tag}:
            """)
        return
    a(f"""
    s_lshl_b32 s74, s2, 7
    s_lshl_b32 s75, s8, 4
    s_add_u32 s74, s74, s75
    s_add_u32 s74, s74, {WS_STAMP}
    v_mov_b32 v2, s74
    s_cmp_lg_u32 s3, 0
    s_cbranch_scc1 ST_{tag}
    s_mov_b64 exec, 1
    global_store_dwordx4 v2, v[4:7], s[42:43]
    global_store_dwordx4 v2, v[8:11], s[42:43] offset:16
    global_store_dwordx4 v2, v[12:15], s[42:43] offset:32
ST_{tag}:
    """)

def entry(a, name):
    a(f"{name}:")
    if OPT.get("stamp"):
        for k in range(1, NSTAMP): a(f"s_mov_b32 s{76+2*k}, 0")
        stamp(a, 0)
    a(f"""
    s_cmp_ge_u32 s2, 256
    s_cbranch_scc1 K_END
    s_load_dwordx16 s[16:31], s[0:1], 0
    s_load_dwordx8 s[32:39], s[0:1], 64
    s_load_dwordx4 s[40:43], s[0:1], 104
    s_load_dwordx2 s[44:45], s[0:1], 96
    v_and_b32 v1, 63, v0
    v_lshrrev_b32 v2, 6, v0
    s_and_b32 s6, s2, 7
    s_lshr_b32 s7, s2, 3
    v_readfirstlane_b32 s8, v2
    s_lshl_b32 s46, s6, 2
    s_lshr_b32 s9, s7, 3
    s_add_u32 s46, s46, s9
    s_and_b32 s47, s7, 7
    s_and_b32 s3, s8, 3
    """)

def srd(a, r, base, off, nbytes):
    if off:
        a(f"s_add_u32 s{r}, s{base}, {off}\ns_addc_u32 s{r+1}, s{base+1}, 0")
    else:
        a(f"s_mov_b32 s{r}, s{base}\ns_mov_b32 s{r+1}, s{base+1}")
    a(f"s_mov_b32 s{r+2}, {nbytes}\ns_mov_b32 s{r+3}, 0x20000")

def allred_g(a, regs, tmp):
    for swap in ("v_permlane32_swap_b32", "v_permlane16_swap_b32"):
        for k, r in enumerate(regs): a(f"v_mov_b32 v{tmp+k}, v{r}")
        for k, r in enumerate(regs): a(f"{swap} v{r}, v{tmp+k}")
        for k, r in enumerate(regs): a(f"v_add_f32 v{r}, v{r}, v{tmp+k}")

def ln_finish(a, s, q, n, t, rcp=True):
    a(f"v_mul_f32 v{s}, {fhex(1/n)}, v{s}")
    a(f"v_mul_f32 v{t}, v{s}, v{s}")
    a(f"v_mul_f32 v{q}, {fhex(1/n)}, v{q}")
    a(f"v_sub_f32 v{q}, v{q}, v{t}")
    a(f"v_max_f32 v{q}, 0, v{q}")
    a(f"v_cvt_pk_bf16_f32 v{q}, 0, v{q}")
    a(f"v_add_f32 v{q}, {fhex(1e-5)}, v{q}")
    a(f"v_cvt_pk_bf16_f32 v{q}, 0, v{q}")
    a(f"v_sqrt_f32 v{q}, v{q}")
    if rcp:
        a(f"v_cvt_pk_bf16_f32 v{s}, 0, v{s}")
        a(f"v_cvt_pk_bf16_f32 v{q}, 0, v{q}")
        a(f"v_rcp_f32 v{q}, v{q}")

def arrive(a, sreg, vt):
    a(f"""
    v_mov_b32 v{vt}, s{sreg}
    v_mov_b32 v{vt+1}, 1
    s_mov_b64 exec, 1
    global_atomic_add v{vt}, v{vt+1}, s[42:43] sc1
    s_mov_b64 exec, -1
    """)

def arrive_last(a, tag, ldsaddr, sreg, vt, rep=False):
    a(f"""
    v_mov_b32 v{vt}, {ldsaddr}
    v_mov_b32 v{vt+1}, 1
    s_mov_b64 exec, 1
    ds_add_rtn_u32 v{vt+2}, v{vt}, v{vt+1}
    s_mov_b64 exec, {"0xff" if rep else "1"}
    v_lshl_add_u32 v{vt}, v1, 10, s{sreg}
    s_waitcnt lgkmcnt(0)
    v_readfirstlane_b32 s15, v{vt+2}
    s_cmp_lg_u32 s15, 3
    s_cbranch_scc1 {tag}_NL
    global_atomic_add v{vt}, v{vt+1}, s[42:43] sc1
{tag}_NL:
    s_mov_b64 exec, -1
    """)

def warm(a, sreg, vt, rep=False):
    a(f"""
    v_lshl_add_u32 v{vt}, v1, 10, s{sreg}
    v_mov_b32 v{vt+1}, 0
    s_mov_b64 exec, {"0xff" if rep else "1"}
    global_atomic_add v{vt}, v{vt+1}, s[42:43] sc1
    s_mov_b64 exec, -1
    """)

def poll(a, tag, vaddr, want, vt, base="s[42:43]", sleep=2):
    a(f"""
    s_mov_b32 s15, 0
{tag}_PL:
    global_load_dword v{vt}, v{vaddr}, {base} sc1
    s_waitcnt vmcnt(0)
    v_cmp_gt_u32 vcc, {want}, v{vt}
    s_add_u32 s15, s15, 1
    s_cbranch_vccz {tag}_OK
    s_sleep {sleep}
    s_cmp_lt_u32 s15, {SPIN}
    s_cbranch_scc1 {tag}_PL
{tag}_OK:
    """)

def poll8(a, tag, off_expr, want, vt, sleep=2):
    a(f"v_and_b32 v{vt}, 7, v1\nv_lshlrev_b32 v{vt}, 7, v{vt}\nv_add_u32 v{vt}, {off_expr}, v{vt}")
    poll(a, tag, vt, want, vt + 1, sleep=sleep)

WF = lambda mt, ks: 128 + 64*mt + 4*ks
def wsetup(a, va, lds_base, per_wave):
    a(f"""
    s_lshl_b32 s73, s46, 1
    s_lshr_b32 s13, s3, 1
    s_add_u32 s73, s73, s13
    s_lshl_b32 s73, s73, 17
    s_lshr_b32 s13, s8, 2
    s_lshl_b32 s13, s13, 1
    s_and_b32 s9, s8, 1
    s_add_u32 s13, s13, s9
    s_lshl_b32 s13, s13, 10
    s_add_u32 s73, s73, s13
    s_mul_i32 s72, s3, {per_wave}
    s_add_u32 s72, s72, {lds_base}
    v_lshrrev_b32 v{va}, 3, v1
    v_lshrrev_b32 v{va+1}, 4, v1
    v_and_b32 v{va+2}, 7, v1
    v_xor_b32 v{va+1}, v{va+1}, v{va+2}
    v_lshlrev_b32 v{va}, 12, v{va}
    v_lshl_add_u32 v{va}, v{va+1}, 4, v{va}
    v_xor_b32 v{va+1}, 64, v{va}
    v_add_u32 v{va+1}, {8*4096 - 1024}, v{va+1}
    v_and_b32 v{va+3}, 15, v1
    v_lshrrev_b32 v{va+2}, 1, v{va+3}
    v_lshlrev_b32 v{va+2}, 4, v{va+2}
    v_lshl_add_u32 v{va+2}, v{va+3}, 7, v{va+2}
    v_and_b32 v{va+3}, 48, v1
    v_xor_b32 v{va+2}, v{va+2}, v{va+3}
    v_add_u32 v{va+2}, s72, v{va+2}
    v_xor_b32 v{va+3}, 64, v{va+2}
    """)
    srd(a, 68, 34, 0, 2048 * 4096)

def wdma(a, va, u, slot):
    for mt in range(2):
        a(f"s_add_u32 m0, s72, {4096*slot + 2048*mt}")
        a(f"s_add_u32 s13, s73, {16*4096*mt + 128*u}")
        a(f"buffer_load_dwordx4 v{va}, s[68:71], s13 offen lds")
        a(f"buffer_load_dwordx4 v{va+1}, s[68:71], s13 offen offset:1024 lds")

def wread(a, va, u, slot):
    for ks in range(2):
        for mt in range(2):
            a(f"ds_read_b128 {Q(WF(mt, 2*u + ks))}, v{va+2+ks} offset:{4096*slot + 2048*mt}")
```

```python
import numpy as np
from layout import *

def pipeline(a, j0, j1, reads, mfmas, pre, tail_reads=None):
    lg = Cnt(a, "lgkmcnt", 15)
    def emit(r): a(r[1]); lg.issue(r[0])
    for j in (j0, j0 + 1):
        for r in reads(j): emit(r)
    for j in range(j0, j1):
        pre(j)
        nxt = reads(j + 2) if j + 2 < j1 else (list(tail_reads) if (tail_reads and j == j1 - 1) else [])
        ms = mfmas(j)
        extra = len(nxt) - len(ms)
        for k, (tags, text) in enumerate(ms):
            lg.wait(tags)
            a(text)
            if nxt: emit(nxt.pop(0))
            if extra > 0 and k >= len(ms) - extra and nxt: emit(nxt.pop(0))
    return lg

K3_NS = 5
K3_TR = 81920
K3_ST = K3_TR + 4 * 32 * 112
K3_RING = 163328 - K3_NS * 12288
K3_CS = K3_ST + 512
assert K3_ST % 256 == 0 and K3_CS + 1024 <= K3_RING

Z1R = 20

def gen_k3(a):
    def common():
        a("""
        v_and_b32 v2, 15, v1
        v_lshrrev_b32 v3, 4, v1
        s_lshr_b32 s10, s3, 1
        s_and_b32 s11, s3, 1
        """)
        a(f"""
        v_lshrrev_b32 v9, 3, v1
        v_and_b32 v10, 7, v1
        v_and_b32 v11, 6, v9
        v_xor_b32 v10, v10, v11
        v_lshlrev_b32 v9, 7, v9
        v_lshl_add_u32 v5, v10, 4, v9
        s_mul_i32 s12, s46, 81920
        v_add_u32 v5, s12, v5
        s_lshl_b32 s12, s3, 11
        v_add_u32 v4, s12, v5
        s_mul_i32 s59, s3, 3072
        s_mul_i32 s12, s47, {20*6144}
        s_add_u32 s12, s12, s59
        v_lshl_add_u32 v6, v1, 4, s12
        s_lshl_b32 s14, s3, 11
        s_add_u32 s59, s59, {K3_RING}
        """)
        srd(a, 48, 42, WS_HT, 640 * 4096)
        srd(a, 52, 42, WS_WI, 640 * 3072)
    def mk_dma(vm):
        def dma_h(i):
            if i >= 10: return
            a(f"s_add_u32 m0, s14, {8192*i}")
            a(f"s_mov_b32 s56, {8192*i}")
            a(f"buffer_load_dwordx4 v4, s[48:51], s56 offen {SC} lds")
            a(f"buffer_load_dwordx4 v4, s[48:51], s56 offen offset:1024 {SC} lds")
            vm.issue(i, 2)
        def dma(i):
            if i >= 20: return
            a(f"s_add_u32 m0, s59, {12288*((i + 2) % K3_NS)}")
            a(f"s_mov_b32 s57, {12288*(i % 10) + (8*20*6144 if i < 10 else 0)}")
            for e in range(3):
                a(f"buffer_load_dwordx4 v6, s[52:55], s57 offen offset:{1024*e} {SC} lds")
            vm.issue(i, 3)
        return dma, dma_h
    CS = lambda nt: 24 + 4*nt
    ACC = lambda mt, nt: 36 + 12*mt + 4*nt
    FH = lambda b, mt: 60 + 20*b + 4*mt
    FW = lambda b, nt: 68 + 20*b + 4*nt
    TMP = 100; GC = 120
    MR = lambda mt: 122 + 2*mt
    ST = 20; SA = 20; SB = 124; ONE = 8
    def csload(vm, ph, C0=24, T0=36):
        a(f"""
        s_mul_i32 s12, s47, {24*320}
        s_mul_i32 s13, s11, {12*320}
        s_add_u32 s12, s12, s13
        s_add_u32 s12, s12, {WS_CSUM + (192*320 if ph == 0 else 0)}
        v_mul_u32_u24 v9, 320, v3
        v_lshl_add_u32 v9, v2, 4, v9
        v_add_u32 v9, s12, v9
        """)
        for r in range(12): a(f"v_mov_b32 v{T0+r}, 0")
        for nt in range(3): a(f"global_load_dwordx4 {Q(C0 + 4*nt)}, v9, s[42:43] offset:{1280*nt} {SC}")
        a("s_mov_b32 exec_lo, 0x000f000f\ns_mov_b32 exec_hi, 0x000f000f")
        for nt in range(3): a(f"global_load_dwordx4 {Q(T0 + 4*nt)}, v9, s[42:43] offset:{1280*nt + 256} {SC}")
        a("s_mov_b64 exec, -1")
        vm.issue("cs", 6)
    def csred(vm, C0=24, T0=36):
        vm.wait({"cs"})
        for r in range(12): a(f"v_add_f32 v{C0+r}, v{C0+r}, v{T0+r}")
        for sh in (8, 4, 2, 1):
            for r in range(12): a(f"v_add_f32_dpp v{C0+r}, v{C0+r}, v{C0+r} row_ror:{sh} row_mask:0xf bank_mask:0xf")
    def setup(isx):
        a(f"""
        v_lshrrev_b32 v9, 2, v1
        v_lshrrev_b32 v10, 1, v9
        v_and_b32 v10, 3, v10
        v_and_b32 v11, 3, v2
        v_lshlrev_b32 v11, 3, v11
        s_mov_b32 s63, {"s11" if isx else "0"}
        s_lshl_b32 s12, s10, 1
        s_add_u32 s12, s12, s63
        v_xor_b32 v12, s12, v10
        v_xor_b32 v13, 1, v12
        v_lshl_add_u32 v19, v9, 7, v11
        v_lshl_add_u32 v12, v12, 5, v19
        v_lshl_add_u32 v13, v13, 5, v19
        v_add_u32 v14, 40960, v12
        v_add_u32 v15, 40960, v13
        s_mul_i32 s12, s11, 3072
        s_add_u32 s12, s12, {K3_RING}
        v_lshl_add_u32 v16, v1, 4, s12
        s_lshl_b32 s12, s10, 8
        s_lshl_b32 s13, s63, 7
        s_add_u32 s12, s12, s13
        s_add_u32 s12, s12, {K3_ST}
        v_lshl_add_u32 v17, v2, 3, s12
        v_xor_b32 v7, 0x80, v17
        v_mov_b32 v{GC}, {fhex(-2.302208198)}
        v_mov_b32 v{GC+1}, {fhex(-0.1029432397)}
        """)
    def reads(j):
        st = j >> 1; b = j % 3; kk = j % 20
        ho = kk * 4096; hb = 12
        if ho >= 40960: ho -= 40960; hb = 14
        wo = 12288 * ((st + 2) % K3_NS) + (j & 1) * 6144
        h = [((j, "h", mt), f"ds_read_b64_tr_b16 {P(FH(b, mt) + 2*h)}, v{hb+mt} offset:{ho + 2048*h}") for mt in range(2) for h in range(2)]
        w = [((j, "w", nt), f"ds_read_b128 {Q(FW(b, nt))}, v16 offset:{wo + 1024*nt}") for nt in range(3)]
        return h[:2] + w + h[2:]
    WR = lambda j, nt: 128 + 12*(j - 10) + 4*nt
    NWR = OPT.get("nwr", 10)
    def wrl(vm, j):
        a(f"s_mov_b32 s57, {8*20*6144 + 6144*j}")
        for nt in range(3): a(f"buffer_load_dwordx4 {Q(WR(j, nt))}, v126, s[52:55], s57 offen offset:{1024*nt} {SC}")
        vm.issue(("wr", j), 3)
    def mainloop(j0, vm):
        def mf(j):
            b = j % 3
            return [({(j, "h", mt), (j, "w", nt)},
                     f"v_mfma_f32_16x16x32_bf16 {Q(ACC(mt, nt))}, {Q(FW(b, nt))}, {Q(FH(b, mt))}, " + ("0" if j == j0 else Q(ACC(mt, nt))))
                    for mt in range(2) for nt in range(3)] + ([] if j0 else [
                    ({(j, "h", 0)}, f"v_mfma_f32_16x16x32_bf16 {Q(SA)}, {Q(ONE)}, {Q(FH(b, 0))}, " + ("0" if j == 0 else Q(SA))),
                    ({(j, "h", 0)}, f"v_mfma_f32_16x16x32_bf16 {Q(SB)}, {Q(FH(b, 0))}, {Q(FH(b, 0))}, " + ("0" if j == 0 else Q(SB)))])
        def pre(j):
            if j in (0, 2, 4, 6, 8, 10, 12, 14, 16):
                stamp(a, (j % 20) // 2 + 1, "p3a" if j < 20 else "p3b")
                a("s_barrier")
        pipeline(a, j0, j0 + 20, reads, mf, pre)
    def gelu_tile(acc, cs, mr, t=100):
        for h in (0, 2): a(f"v_pk_fma_f32 {P(acc+h)}, {P(cs+h)}, {P(mr)}, {P(acc+h)} op_sel:[0,0,0] op_sel_hi:[1,0,1] neg_lo:[1,0,0] neg_hi:[1,0,0]")
        for h in (0, 2): a(f"v_pk_mul_f32 {P(acc+h)}, {P(acc+h)}, {P(mr)} op_sel:[0,1] op_sel_hi:[1,1]")
        for r in range(4): a(f"v_cvt_pk_bf16_f32 v{acc+r}, 0, v{acc+r}")
        for h in (0, 2): a(f"v_pk_mul_f32 {P(t+h)}, {P(acc+h)}, {P(acc+h)}")
        for h in (0, 2): a(f"v_pk_fma_f32 {P(t+h)}, {P(t+h)}, {P(GC)}, {P(GC)} op_sel:[0,1,0] op_sel_hi:[1,1,0]")
        for h in (0, 2): a(f"v_pk_mul_f32 {P(t+h)}, {P(t+h)}, {P(acc+h)}")
        for r in range(4): a(f"v_exp_f32 v{t+r}, v{t+r}")
        for r in range(4): a(f"v_add_f32 v{t+r}, 1.0, v{t+r}")
        for r in range(4): a(f"v_rcp_f32 v{t+r}, v{t+r}")
        for h in (0, 2): a(f"v_pk_mul_f32 {P(acc+h)}, {P(acc+h)}, {P(t+h)}")
    def rd_mr():
        for mt in range(2): a(f"ds_read_b64 {P(MR(mt))}, v{(17, 7)[mt]}")

    a("PH3X:")
    common(); setup(True)
    vm = Cnt(a, "vmcnt", 63); dma, dma_h = mk_dma(vm)
    a(f"""
    s_barrier
    """)
    csload(vm, 0)
    csred(vm)
    a(f"""
    s_lshl_b32 s12, s46, 13
    s_lshl_b32 s13, s10, 8
    s_add_u32 s12, s12, s13
    s_add_u32 s12, s12, {WS_PST}
    s_lshl_b32 s13, s11, 4
    v_and_b32 v19, 31, v1
    v_xor_b32 v19, s13, v19
    v_lshl_add_u32 v19, v19, 3, s12
    s_lshl_b32 s13, s47, 1
    s_add_u32 s13, s13, s11
    s_lshl_b32 s13, s13, 9
    v_add_u32 v18, s13, v19
    v_lshrrev_b32 v10, 5, v1
    v_lshl_add_u32 v19, v10, 12, v19
    v_and_b32 v122, 3, v1
    """)
    for r in range(4): a(f"v_mov_b32 v{ONE+r}, 0x3f803f80")
    stamp(a, 10, "p3a")
    a("s_setprio 3\ns_barrier\ns_barrier")
    stamp(a, 5)
    mainloop(0, vm)
    stamp(a, 6)
    a(f"""
    v_cmp_eq_u32 vcc, 1, v122
    v_cndmask_b32 v{SA+1}, v{SB}, v{SB+1}, vcc
    v_cmp_eq_u32 vcc, 2, v122
    v_cndmask_b32 v{SA+1}, v{SA+1}, v{SB+2}, vcc
    v_cmp_eq_u32 vcc, 3, v122
    v_cndmask_b32 v{SA+1}, v{SA+1}, v{SB+3}, vcc
    """)
    ln_finish(a, SA, SA+1, 640, TMP)
    a(f"""
    s_mov_b32 exec_lo, 0x00f0000f
    s_mov_b32 exec_hi, 0xf0000f00
    ds_write_b64 v17, {P(SA)}
    s_mov_b64 exec, -1
    s_waitcnt lgkmcnt(0)
    s_barrier
    """)
    rd_mr()
    a("s_waitcnt lgkmcnt(0)")
    SQ = lambda mt: 104 + 4*mt
    for mt in range(2):
        for nt in range(3):
            acc = ACC(mt, nt)
            gelu_tile(acc, CS(nt), MR(mt))
            for r in range(4): a(f"v_cvt_pk_bf16_f32 v{acc+r}, 0, v{acc+r}")
            if nt == 0:
                a(f"v_pk_add_f32 {P(SQ(mt))}, {P(acc)}, {P(acc+2)}")
                a(f"v_pk_mul_f32 {P(SQ(mt)+2)}, {P(acc)}, {P(acc)}")
                a(f"v_pk_fma_f32 {P(SQ(mt)+2)}, {P(acc+2)}, {P(acc+2)}, {P(SQ(mt)+2)}")
            else:
                for h in (0, 2):
                    a(f"v_pk_add_f32 {P(SQ(mt))}, {P(SQ(mt))}, {P(acc+h)}")
                    a(f"v_pk_fma_f32 {P(SQ(mt)+2)}, {P(acc+h)}, {P(acc+h)}, {P(SQ(mt)+2)}")
    for mt in range(2):
        a(f"v_add_f32 v{ST+2*mt}, v{SQ(mt)}, v{SQ(mt)+1}")
        a(f"v_add_f32 v{ST+2*mt+1}, v{SQ(mt)+2}, v{SQ(mt)+3}")
    a(f"""
    v_permlane16_swap_b32 v{ST}, v{ST+2}
    v_permlane16_swap_b32 v{ST+1}, v{ST+3}
    v_pk_add_f32 {P(ST)}, {P(ST)}, {P(ST+2)}
    v_mov_b32 v{ST+2}, v{ST}
    v_mov_b32 v{ST+3}, v{ST+1}
    v_permlane32_swap_b32 v{ST}, v{ST+2}
    v_permlane32_swap_b32 v{ST+1}, v{ST+3}
    v_pk_add_f32 {P(ST)}, {P(ST)}, {P(ST+2)}
    v_max_f32 v{ST+1}, 0, v{ST+1}
    s_mov_b32 exec_hi, 0
    global_store_dwordx2 v18, {P(ST)}, s[42:43] sc1
    s_mov_b32 exec_hi, -1
    """)
    vm.issue("pst")
    stamp(a, 1, "cv2")
    a("s_barrier")
    a(f"""
    s_mul_i32 s12, s3, {32*112}
    s_add_u32 s12, s12, {K3_TR}
    v_mul_u32_u24 v11, 112, v2
    v_lshl_add_u32 v11, v3, 3, v11
    v_add_u32 v11, s12, v11
    s_lshl_b32 s13, s11, 1
    v_xor_b32 v13, s13, v3
    v_lshrrev_b32 v12, 2, v2
    v_lshl_add_u32 v12, v13, 3, v12
    v_mul_u32_u24 v12, 112, v12
    v_and_b32 v13, 3, v2
    v_lshl_add_u32 v12, v13, 3, v12
    v_add_u32 v12, s12, v12
    s_lshl_b32 s12, s47, 5
    s_add_u32 s12, s12, s46
    s_mul_i32 s12, s12, 12288
    s_mul_i32 s13, s3, 3072
    s_add_u32 s12, s12, s13
    s_add_u32 s12, s12, {WS_Z2}
    v_lshl_add_u32 v10, v1, 4, s12
    """)
    G = 60
    def pstl():
        for k in range(8): a(f"global_load_dwordx2 {P(G + 2*k)}, v19, s[42:43] offset:{512*k} sc1")
    wsetup(a, 112, 0, 16384)
    a("s_barrier")
    pstl()
    a("s_mov_b32 s58, 0")
    a("K3_POLL:")
    a("s_waitcnt vmcnt(0)")
    a(f"v_max_u32 v13, v{G}, v{G+1}")
    for k in range(1, 8): a(f"v_max3_u32 v13, v13, v{G+2*k}, v{G+2*k+1}")
    a(f"""
    v_cmp_eq_u32 vcc, -1, v13
    s_add_u32 s58, s58, 1
    s_cbranch_vccz K3_READY
    s_cmp_ge_u32 s58, {SPIN}
    s_cbranch_scc1 K3_READY
    s_sleep 1
    """)
    pstl()
    a("s_branch K3_POLL\nK3_READY:")
    stamp(a, 2, "cv2")
    for d, e in ((0, 2), (4, 6), (8, 10), (12, 14), (0, 4), (8, 12), (0, 8)):
        for h in range(2): a(f"v_add_f32 v{G+d+h}, v{G+d+h}, v{G+e+h}")
    a(f"""
    v_mov_b32 v{G+2}, v{G}
    v_mov_b32 v{G+3}, v{G+1}
    v_permlane32_swap_b32 v{G}, v{G+2}
    v_permlane32_swap_b32 v{G+1}, v{G+3}
    v_add_f32 v{G}, v{G}, v{G+2}
    v_add_f32 v{G+1}, v{G+1}, v{G+3}
    """)
    ln_finish(a, G, G+1, 768, G+4)
    a(f"""
    v_mov_b32 v{G+2}, v{G}
    v_mov_b32 v{G+3}, v{G+1}
    v_permlane16_swap_b32 v{G}, v{G+2}
    v_permlane16_swap_b32 v{G+1}, v{G+3}
    """)
    O = 80
    for nt in range(3):
        for mt in range(2):
            acc = ACC(mt, nt); mr = G + 2*mt
            for r in range(4): a(f"v_sub_f32 v{acc+r}, v{acc+r}, v{mr}")
            for r in range(4): a(f"v_cvt_pk_bf16_f32 v{acc+r}, 0, v{acc+r}")
            for r in range(4): a(f"v_mul_f32 v{acc+r}, v{acc+r}, v{mr+1}")
            a(f"v_cvt_pk_bf16_f32 v{acc}, v{acc}, v{acc+1}")
            a(f"v_cvt_pk_bf16_f32 v{acc+1}, v{acc+2}, v{acc+3}")
            a(f"ds_write_b64 v11, {P(acc)} offset:{16*112*mt + 32*nt}")
        for h in range(2):
            a(f"ds_read_b64_tr_b16 {P(O + 4*nt + 2*h)}, v12 offset:{32*nt + 4*112*h}")
        if nt:
            a(f"s_waitcnt lgkmcnt(4)")
            a(f"global_store_dwordx4 v10, {Q(O + 4*(nt-1))}, s[42:43] offset:{1024*(nt-1)} {SC}")
    a(f"s_waitcnt lgkmcnt(0)")
    a(f"global_store_dwordx4 v10, {Q(O + 8)}, s[42:43] offset:2048 {SC}")
    a(f"""
    s_lshl_b32 s12, s47, 10
    s_add_u32 s12, s12, {C_S2}
    s_lshl_b32 s58, s4, 7
    s_add_u32 s58, s58, s12
    s_waitcnt vmcnt(0)
    """)
    arrive_last(a, "K3A", LDS_FLAG + 20, 58, 10)
    stamp(a, 7); stamp(a, 3, "cv2")
    a("s_setprio 0")
    a("s_barrier")
    for u in range(4): wdma(a, 112, 4 + u, u)
    for u in range(4):
        a(f"s_waitcnt vmcnt({12 - 4*u})"); wread(a, 112, 4 + u, u)
    a(f"""
    s_waitcnt lgkmcnt(0)
    s_cmp_lg_u32 s8, 0
    s_cbranch_scc1 PH4
    s_lshl_b32 s12, s47, 10
    s_add_u32 s12, s12, {C_S2}
    """)
    poll8(a, "S2", "s12", 32 >> LG(), 10, sleep=OPT.get("sl2", 1), n=1 << LG())
    padto(a, "p2", "B")
    stamp(a, 4, "cv2")
    a("s_branch PH4")

    a("PH3Y:")
    common(); setup(False)
    vm = Cnt(a, "vmcnt", 63); dma, dma_h = mk_dma(vm)
    stamp(a, 10, "bs")
    a("s_barrier")
    csload(vm, 1)
    for i in range(5): dma(i)
    csred(vm)
    a(f"s_lshl_b32 s12, s3, 8\ns_add_u32 s12, s12, {K3_CS}\nv_lshl_add_u32 v18, v3, 4, s12")
    for nt in range(3): a(f"ds_write_b128 v18, {Q(24 + 4*nt)} offset:{64*nt}")
    a(f"""
    s_lshl_b32 s12, s10, 12
    v_add_u32 v12, s12, v12
    v_add_u32 v13, s12, v13
    v_xor_b32 v14, 64, v12
    v_xor_b32 v15, 64, v13
    v_lshl_add_u32 v16, v1, 4, s59
    """)
    a("s_cmp_lg_u32 s8, 4\ns_cbranch_scc1 K3_NP")
    a(f"""
    s_lshl_b32 s12, s6, 10
    s_add_u32 s12, s12, {C_S1}
    v_and_b32 v20, 7, v1
    v_lshlrev_b32 v20, 7, v20
    v_add_u32 v21, s12, v20
    v_mov_b32 v22, 20
    s_mov_b64 exec, 0xff00
    v_add_u32 v21, {C_WO}, v20
    v_mov_b32 v22, 8
    s_mov_b64 exec, -1
    """)
    poll(a, "S1", 21, "v22", 20, sleep=OPT.get("sl1", 1))
    padto(a, "p1", "A")
    a("K3_NP:\ns_barrier")
    stamp(a, 5)
    for i in range(4): dma_h(i)
    for s in range(11):
        vm.wait({s} if s < 10 else set())
        if s: stamp(a, s, "p3a")
        a("s_barrier")
        if s >= 2: dma(s + 3)
        dma_h(s + 4)
        if s == 10: dma(14)
        if s in (OPT.get("zs", 8), OPT.get("z0", 2)):
            a(f"""
            s_lshr_b32 s12, s7, {LG()}
            s_lshl_b32 s12, s12, 2
            s_add_u32 s12, s12, s3
            s_mul_i32 s12, s12, {(15 << (LG() - 2))*128}
            s_mul_i32 s13, s47, 122880
            s_add_u32 s12, s12, s13
            s_add_u32 s12, s12, {WS_WI + (61440 if s == OPT.get('zs', 8) else 0)}
            v_min_u32 v9, {(15 << (LG() - 2)) - 1}, v1
            v_lshl_add_u32 v9, v9, 7, s12
            global_load_dword v127, v9, s[42:43] sc1
            """)
            vm.issue("t", 1)
    stamp(a, 6)
    AY = lambda lt, nt: (44, 56, 20, 32)[lt] + 4*nt
    YH = lambda b, lt: 68 + 28*b + 4*lt
    YW = lambda b, nt: 84 + 28*b + 4*nt
    lg = Cnt(a, "lgkmcnt", 15)
    def yreads(st):
        b = st & 1; ho = 8192 * ((st - 10) % 5); wo_ = 12288 * ((st + 2) % K3_NS)
        h = [((st, "h", lt), f"ds_read_b64_tr_b16 {P(YH(b, lt) + 2*hf)}, v{12+lt} offset:{ho + 2048*hf}") for lt in range(4) for hf in range(2)]
        w = [((st, "w", nt), f"ds_read_b128 {Q(YW(b, nt))}, v16 offset:{wo_ + 1024*nt}") for nt in range(3)]
        return w + h
    vm.wait({10})
    for t, r in yreads(10): a(r); lg.issue(t)
    a("s_barrier")
    for st in range(10, 20):
        stamp(a, st - 9, "p3b")
        lg.wait({(st, "w", 2)})
        dma(st + 5)
        if st == OPT.get("qs", 14): a("s_barrier")
        if st == 14:
            for lt in range(4): a(f"v_add_u32 v{12+lt}, 40960, v{12+lt}")
        nxt = []
        if st < 19: vm.wait({st + 1}); nxt = yreads(st + 1)
        for lt in range(4):
            for nt in range(3):
                lg.wait({(st, "h", lt)})
                a(f"v_mfma_f32_16x16x32_bf16 {Q(AY(lt, nt))}, {Q(YW(st & 1, nt))}, {Q(YH(st & 1, lt))}, " + ("0" if st == 10 else Q(AY(lt, nt))))
                if nxt: t, r = nxt.pop(0); a(r); lg.issue(t)
    stamp(a, 7); stamp(a, 1, "cv2")
    rd_mr()
    a(f"""
    s_lshl_b32 s12, s3, 2
    s_add_u32 s12, s12, {LDS_FLAG + 32}
    v_mov_b32 v8, s12
    v_xor_b32 v9, 8, v8
    v_mov_b32 v10, 1
    s_mul_i32 s12, s10, -12288
    s_add_u32 s12, s12, 6144
    v_add_u32 v11, s12, v16
    v_mov_b32 v{GC}, {fhex(-2.302208198)}
    v_mov_b32 v{GC+1}, {fhex(-0.1029432397)}
    """)
    for lt in (2, 3):
        for nt in range(3): a(f"ds_write_b128 v16, {Q(AY(lt, nt))} offset:{12288*(lt - 2) + 1024*nt}")
    a("ds_write_b32 v8, v10")
    for nt in range(3): a(f"ds_read_b128 {Q(68 + 4*nt)}, v18 offset:{64*nt}")
    a("""
K3_YW:
    ds_read_b32 v10, v9
    s_waitcnt lgkmcnt(0)
    v_readfirstlane_b32 s12, v10
    s_cmp_eq_u32 s12, 0
    s_cbranch_scc1 K3_YW
    """)
    for lt in range(2):
        for nt in range(3): a(f"ds_read_b128 {Q(92 + 12*lt + 4*nt)}, v11 offset:{12288*lt + 1024*nt}")
    for mt in range(2):
        for nt in range(3):
            acc = AY(mt, nt); o = Z1R + 4*nt + 2*mt
            if (mt, nt) == (0, 0): a("s_waitcnt lgkmcnt(5)")
            if (mt, nt) == (0, 1): a("s_waitcnt lgkmcnt(0)")
            if 3*mt + nt == OPT.get("tb", 1): stamp(a, 2, "cv2"); a("s_barrier")
            for h in (0, 2): a(f"v_pk_add_f32 {P(acc+h)}, {P(acc+h)}, {P(92 + 12*mt + 4*nt + h)}")
            gelu_tile(acc, 68 + 4*nt, MR(mt), 116)
            a(f"v_cvt_pk_bf16_f32 v{o}, v{acc}, v{acc+1}")
            a(f"v_cvt_pk_bf16_f32 v{o+1}, v{acc+2}, v{acc+3}")
    stamp(a, 4, "cv2")
    if OPT.get("wot", 0):
        a(f"""
        s_lshl_b32 s12, s7, 2
        s_add_u32 s12, s12, s3
        s_mul_i32 s12, s12, {60*128}
        s_add_u32 s12, s12, {WS_WO}
        v_min_u32 v9, 59, v1
        v_lshl_add_u32 v9, v9, 7, s12
        global_load_dword v19, v9, s[42:43] sc1
        """)

def decode_z2(v):
    v = v.reshape(8, 32, 2, 6, 4, 16, 8)
    return v.transpose(1, 2, 4, 6, 0, 3, 5).reshape(2048, 768)
def decode_p(v):
    v = v.reshape(32, 4, 8, 3, 4, 16, 2, 4)
    v = v.transpose(0, 1, 5, 2, 3, 6, 4, 7).reshape(2048, 8, 6, 16)
    return v[:, :, [0, 1, 2, 4, 5, 3], :].reshape(2048, 768)

K4_NS = 4
SLOT = 24576
RED = 0
XCH = 94208
WOC = [98304, 118784, 139264, 73728, 0, 20480]
K5_H = 40960
LDS_TOTAL = 163840

def wo_setup(a):
    a(f"""
    s_mul_i32 s62, s3, 5120
    s_mul_i32 s12, s47, {24*5120}
    s_add_u32 s12, s12, s62
    v_lshl_add_u32 v4, v1, 4, s12
    """)
    srd(a, 64, 42, WS_WO, 768 * 1280)

def wo(a, c, parts=(0, 1)):
    for part in parts:
        a(f"s_add_u32 m0, s62, {WOC[c] + 3072*part}")
        a(f"s_mov_b32 s56, {20480*c + 3072*part}")
        for e in range(3 - part): a(f"buffer_load_dwordx4 v4, s[64:67], s56 offen offset:{1024*e} {SC} lds")

def gen_k4(a):
    vm = Cnt(a, "vmcnt", 63)
    ACC = lambda mt, p: 32 + 24*mt + 4*p
    FZ = lambda b, p: 80 + 24*b + 4*p
    a(f"""
PH4:
    s_lshr_b32 s60, s8, 2
    s_lshl_b32 s60, s60, 1
    s_add_u32 s60, s60, s11
    s_mul_i32 s12, s60, 6144
    v_lshl_add_u32 v12, v1, 4, s12
    v_add_u32 v13, {2*SLOT}, v12
    s_mul_i32 s13, s10, 3072
    s_add_u32 s61, s12, s13
    s_cmp_eq_u32 s60, 3
    s_cselect_b32 s12, 1, 0
    s_xor_b32 s12, s12, s10
    s_mul_i32 s12, s12, 3072
    s_mul_i32 s13, s60, {16*6144}
    s_add_u32 s12, s12, s13
    s_mul_i32 s13, s47, {32*12288}
    s_add_u32 s12, s12, s13
    v_lshl_add_u32 v6, v1, 4, s12
    s_lshl_b32 s12, s46, 7
    s_lshl_b32 s13, s10, 6
    s_add_u32 s12, s12, s13
    v_lshl_add_u32 v11, v2, 1, s12
    global_load_ushort v16, v11, s[36:37]
    global_load_ushort v18, v11, s[36:37] offset:32
    """)
    srd(a, 52, 42, WS_Z2, 2048 * 768 * 2)
    def dma(i):
        r = [f"s_add_u32 m0, s61, {SLOT*(i % K4_NS)}\ns_mov_b32 s57, {6144*i}\nbuffer_load_dwordx4 v6, s[52:55], s57 offen {SC} lds"]
        r += [f"buffer_load_dwordx4 v6, s[52:55], s57 offen offset:{1024*e} {SC} lds" for e in (1, 2)]
        return r if i < 16 else []
    def reads(i):
        so = SLOT * (i % K4_NS); hi = 0
        if so >= 2*SLOT: so -= 2*SLOT; hi = 1
        return [((i, p), f"ds_read_b128 {Q(FZ(i & 1, p))}, v{12+hi} offset:{so + 1024*p}") for p in range(6)]
    a("s_barrier")
    stamp(a, 8); stamp(a, 5, "cv2")
    for i in range(3):
        for r in dma(i): a(r)
    a(f"""
    s_mul_i32 s12, s10, {2*18432}
    s_add_u32 s12, s12, {RED}
    v_lshl_add_u32 v14, v1, 4, s12
    """)
    wo_setup(a)
    a("s_waitcnt vmcnt(6)\ns_barrier")
    for t, r in reads(0): a(r)
    for r in dma(3): a(r)
    a("s_cmp_ge_u32 s8, 4\ns_cbranch_scc1 K4_Y")
    def mainloop(first, sends):
        vm = Cnt(a, "vmcnt", 63)
        for i in (1, 2, 3): vm.issue(i, 3)
        for i in range(16):
            if i >= 6: stamp(a, i - 5, "p4a")
            a("s_waitcnt lgkmcnt(0)")
            vm.wait({i + 1})
            if i == 15 and first: a("s_setprio 2")
            a("s_barrier")
            nxt = reads(i + 1) if i < 15 else []
            def issue():
                for r in dma(i + 4): a(r); vm.issue(i + 4)
                if 12 <= i < 15: wo(a, i - 12, (0,) if first else (1,)); vm.issue("o", 3 if first else 2)
            if first: issue()
            k = 0
            for p in ((3, 4, 5, 0, 1, 2) if i == 15 else range(6)):
                for mt in range(2):
                    c = "0" if i == 0 else Q(ACC(mt, p))
                    a(f"v_mfma_f32_16x16x32_bf16 {Q(ACC(mt, p))}, {Q(FZ(i & 1, p))}, {Q(WF(mt, i))}, {c}")
                    if nxt: a(nxt.pop(0)[1])
                    k += 1
                    if i == 15 and k > 8 and not first: a(sends.pop(0))
            if not first: issue()
        stamp(a, 9); stamp(a, 1, 't')
        for r in sends: a(r)
    a(f"""
    s_mul_i32 s13, s11, 6144
    v_add_u32 v7, s13, v14
    s_mul_i32 s12, s47, 10240
    s_lshl_b32 s13, s3, 10
    s_add_u32 s12, s12, s13
    v_add_u32 v8, s12, v5
    """)
    mainloop(True, [f"ds_write_b128 v7, {Q(ACC(mt, p))} offset:{18432*(p // 3) + 1024*(3*mt + p % 3)}" for p in (3, 4, 5, 0, 1, 2) for mt in range(2)])
    a("s_waitcnt lgkmcnt(0)\ns_setprio 0\ns_barrier")
    wo(a, 3)
    a("s_barrier\ns_barrier")
    stamp(a, 3, 't')
    for c in (4, 5): wo(a, c)
    a(f"s_lshl_b32 s15, s3, 10\ns_add_u32 s15, s15, {K5_H}")
    for e in range(3):
        if e == 2: a("s_cmp_ge_u32 s3, 2\ns_cbranch_scc1 K5_NOH")
        a(f"s_add_u32 m0, s15, {4096*e}")
        a(f"s_mov_b32 s56, {4096*e}")
        a(f"buffer_load_dwordx4 v8, s[48:51], s56 offen {SC} lds")
    a("K5_NOH:")
    stamp(a, 4, 't')
    a("s_waitcnt vmcnt(17)\ns_barrier\ns_waitcnt vmcnt(0)")
    stamp(a, 10); stamp(a, 5, 't')
    a("s_barrier")
    stamp_out(a, "X")
    a("s_endpgm")
    a(f"""
K4_Y:
    s_xor_b32 s13, s11, 1
    s_mul_i32 s13, s13, 18432
    s_add_u32 s13, s13, {2*6144}
    v_add_u32 v7, s13, v14
    s_mul_i32 s13, s11, 18432
    v_add_u32 v9, s13, v14
    v_lshlrev_b32 v16, 16, v16
    v_lshlrev_b32 v18, 16, v18
    s_lshl_b32 s12, s46, 2
    s_lshl_b32 s13, s10, 1
    s_add_u32 s12, s12, s13
    s_mul_i32 s12, s12, 24576
    s_mul_i32 s13, s47, 3072
    s_add_u32 s12, s12, s13
    s_add_u32 s12, s12, {WS_P}
    v_lshl_add_u32 v11, v1, 4, s12
    s_lshl_b32 s13, s11, 11
    v_add_u32 v10, s13, v11
    v_add_u32 v8, 24576, v10
    s_mul_i32 s13, s11, 24576
    s_add_u32 s13, s13, 1024
    v_add_u32 v11, s13, v11
    s_lshl_b32 s12, s10, 11
    s_add_u32 s12, s12, {XCH}
    v_lshl_add_u32 v14, v1, 4, s12
    s_lshl_b32 s13, s11, 3
    v_add_u32 v15, s13, v14
    s_lshl_b32 s13, s11, 10
    v_add_u32 v14, s13, v14
    """)
    mainloop(False, [f"ds_write_b128 v7, {Q(ACC(mt, p))} offset:{1024*(3*mt + p % 3)}" for p in (3, 4, 5) for mt in range(2)])
    a("s_waitcnt lgkmcnt(0)\ns_barrier")
    stamp(a, 2, 't')
    order = ((2, 0), (2, 1), (0, 0), (1, 0), (0, 1), (1, 1))
    lg = Cnt(a, "lgkmcnt", 15)
    R = lambda k, j: 128 + 12*k + 4*j
    def rd(k):
        nt, mt = order[k]
        for j in range(3):
            a(f"ds_read_b128 {Q(R(k, j))}, v9 offset:{6144*j + 1024*(3*mt + nt)}"); lg.issue(k)
    for k in range(5): rd(k)
    T = 80; O = 88
    for k, (nt, mt) in enumerate(order):
        acc = ACC(mt, nt); z = Z1R + 4*nt + 2*mt; t = T + 4*(k & 1)
        for h in range(2):
            a(f"v_lshlrev_b32 v{t+2*h}, 16, v{z+h}")
            a(f"v_and_b32 v{t+2*h+1}, 0xffff0000, v{z+h}")
        lg.wait({k})
        if k == 0: rd(5)
        for h in (0, 2): a(f"v_pk_add_f32 {P(R(k,0)+h)}, {P(R(k,0)+h)}, {P(R(k,1)+h)}")
        for h in (0, 2): a(f"v_pk_add_f32 {P(acc+h)}, {P(acc+h)}, {P(R(k,2)+h)}")
        for h in (0, 2): a(f"v_pk_add_f32 {P(acc+h)}, {P(acc+h)}, {P(R(k,0)+h)}")
        for r in range(4): a(f"v_cvt_pk_bf16_f32 v{acc+r}, 0, v{acc+r}")
        for h in (0, 2): a(f"v_pk_add_f32 {P(acc+h)}, {P(acc+h)}, {P(16+2*mt)} op_sel:[0,0] op_sel_hi:[1,0]")
        for r in range(4): a(f"v_cvt_pk_bf16_f32 v{acc+r}, 0, v{acc+r}")
        for h in (0, 2): a(f"v_pk_mul_f32 {P(acc+h)}, {P(acc+h)}, {P(t+h)}")
        o = acc if nt == 2 else O + 4*mt + 2*nt
        a(f"v_cvt_pk_bf16_f32 v{o}, v{acc}, v{acc+1}")
        a(f"v_cvt_pk_bf16_f32 v{o+1}, v{acc+2}, v{acc+3}")
        if nt == 2: a(f"ds_write_b64 v15, {P(o)} offset:{1024*mt}"); lg.issue("x")
        if nt == 1: a(f"global_store_dwordx4 v{(10, 8)[mt]}, {Q(O + 4*mt)}, s[42:43] {SC}")
        if k == 1:
            lg.all(); a(f"s_barrier\nds_read_b128 {Q(O + 8)}, v14"); lg.issue("y")
        if k == 2:
            lg.all(); a(f"global_store_dwordx4 v11, {Q(O + 8)}, s[42:43] {SC}")
    stamp(a, 3, 't')
    a("s_barrier")
    a(f"""
    s_lshl_b32 s12, s46, 2
    s_add_u32 s12, s12, s3
    s_mul_i32 s12, s12, 24576
    v_lshl_add_u32 v12, v1, 4, s12
    v_lshlrev_b32 v14, 4, v1
    v_add_u32 v15, 98304, v14
    v_add_u32 v13, 49152, v14
    v_lshrrev_b32 v9, 2, v1
    v_and_b32 v11, 3, v2
    v_lshlrev_b32 v11, 3, v11
    v_lshrrev_b32 v10, 1, v9
    v_and_b32 v10, 3, v10
    v_xor_b32 v10, s3, v10
    v_lshl_add_u32 v16, v9, 7, v11
    v_lshl_add_u32 v16, v10, 5, v16
    v_add_u32 v16, {K5_H}, v16
    s_mul_i32 s12, s46, {64*1280}
    s_mul_i32 s13, s3, {16*1280}
    s_add_u32 s12, s12, s13
    s_mul_i32 s13, s47, 160
    s_add_u32 s12, s12, s13
    v_mul_u32_u24 v17, 1280, v2
    v_add_u32 v17, s12, v17
    v_and_b32 v9, 1, v3
    v_lshlrev_b32 v9, 5, v9
    v_lshrrev_b32 v10, 1, v3
    v_lshl_add_u32 v9, v10, 4, v9
    v_add_u32 v18, v17, v9
    v_lshl_add_u32 v17, v3, 3, v17
    s_lshl_b32 s12, s46, 7
    s_add_u32 s12, s12, {C_S3}
    """)
    srd(a, 52, 42, WS_P, 2048 * 768 * 2)
    a("s_waitcnt vmcnt(0)")
    stamp(a, 4, 't')
    arrive_last(a, "K4A", LDS_FLAG + 24, 12, 8)
    a("s_cmp_lg_u32 s15, 3\ns_cbranch_scc1 S3_OK\nv_mov_b32 v8, s12")
    poll(a, "S3", 8, 8, 9, sleep=1)
    a("s_barrier")
    stamp(a, 10); stamp(a, 5, 't')
    vm = Cnt(a, "vmcnt", 63)
    PF = lambda ks: 128 + 4*ks
    def pl(ks):
        if ks >= 24: return
        if ks % 4 == 0: a(f"s_mov_b32 s57, {1024*ks}")
        a(f"buffer_load_dwordx4 {Q(PF(ks))}, v12, s[52:55], s57 offen offset:{1024*(ks % 4)} {SC}")
        vm.issue(ks)
    NP = OPT.get("np", 12)
    for ks in range(NP): pl(ks)
    A5 = lambda nt: 20 + 4*nt
    FW = lambda b, nt: 40 + 20*b + 4*nt
    HF = 100
    def reads5(j):
        o = WOC[j // 4] + (j % 4) * 5120; hi = 0
        if o >= 98304: o -= 98304; hi = 1
        elif o >= 49152: o -= 49152; hi = -1
        return [((j, nt), f"ds_read_b128 {Q(FW(j % 3, nt))}, v{14+hi} offset:{o + 1024*nt}") for nt in range(5)]
    def mf(j):
        return [({(j, nt)}, f"v_mfma_f32_16x16x32_bf16 {Q(A5(nt))}, {Q(FW(j % 3, nt))}, {Q(PF(j))}, " + ("0" if j == 0 else Q(A5(nt)))) for nt in range(5)]
    def pre5(j):
        pl(NP + j)
        vm.wait({j})
        if j == 10: a("s_barrier")
        if j == 0: stamp(a, 7, 't')
    stamp(a, 6, 't')
    pipeline(a, 0, 24, reads5, mf, pre5, [("h", f"ds_read_b64_tr_b16 {P(HF + 2*nt)}, v16 offset:{2048*nt}") for nt in range(5)])
    stamp(a, 8, 't')
    a("s_waitcnt lgkmcnt(0)")
    O = 112
    for nt in range(5):
        acc = A5(nt); t = 40 + 4*nt
        for h in range(2):
            a(f"v_lshlrev_b32 v{t+2*h}, 16, v{HF+2*nt+h}")
            a(f"v_and_b32 v{t+2*h+1}, 0xffff0000, v{HF+2*nt+h}")
        for r in range(4): a(f"v_cvt_pk_bf16_f32 v{acc+r}, 0, v{acc+r}")
        for h in (0, 2): a(f"v_pk_add_f32 {P(acc+h)}, {P(acc+h)}, {P(t+h)}")
        a(f"v_cvt_pk_bf16_f32 v{O+2*nt}, v{acc}, v{acc+1}")
        a(f"v_cvt_pk_bf16_f32 v{O+2*nt+1}, v{acc+2}, v{acc+3}")
        if nt & 1:
            o = O + 2*nt - 2
            a(f"v_permlane16_swap_b32 v{o}, v{o+2}\nv_permlane16_swap_b32 v{o+1}, v{o+3}")
            a(f"global_store_dwordx4 v18, {Q(o)}, s[44:45] offset:{32*(nt-1)}")
    a(f"global_store_dwordx2 v17, {P(O+8)}, s[44:45] offset:128")
    padto(a, "pe", "E")
    stamp_out(a, "Y")
    a("K_END:\ns_endpgm")
```

```python
from asmgen import Asm
from layout import *

LOG2E = "0x3fb8aa3b"
NLOG2E = "0xbfb8aa3b"
INV2PI = "0x3e22f983"

CP = 2752
TB = (1088, 1176, 1264)
KW_STRIDE = 4 * CP
U0 = 4 * KW_STRIDE; U_STRIDE = 4608
X0 = U0 + 4 * U_STRIDE
BS0 = X0 + 16384; BS_STRIDE = 4352
KC0 = BS0 + 4 * BS_STRIDE; KC_STRIDE = 3200
AS0 = KC0 + 4 * KC_STRIDE; AS_STRIDE = 8448
WST = 163328 - 65536
WS2 = 16384
assert BS0 <= WST and AS0 + 4 * AS_STRIDE <= LDS_FLAG and WST % 128 == 0 and KC0 % 16 == 0 and KC0 - 32768 < 65536
FLAG0 = LDS_FLAG
NG0 = 2

def cmul(a, sets):
    for d, x, y, t in sets:
        a(f"v_pk_mul_f32 {P(t)}, {P(x)}, {P(y)} op_sel:[0,0] op_sel_hi:[0,1]")
    for d, x, y, t in sets:
        a(f"v_pk_fma_f32 {P(d)}, {P(x)}, {P(y)}, {P(t)} op_sel:[1,1,0] op_sel_hi:[1,0,1] neg_lo:[1,0,0]")

def kgen(a, ns, erow, vwr, vrd, SB, PKS, ACC, AF, BF, unpack, maxsrc, mid=None, fill=None):
    AR, Z1, W, ZZ, CUR, R2, R4, R6, PW, T = [lambda s, k=k: SB[s] + 2 * k for k in range(10)]
    S = range(ns); nks = 4 * ns
    unpack(AR, CUR)
    for s in S: a(f"v_mul_f32 v{AR(s)}, {LOG2E}, v{AR(s)}")
    for s in S: a(f"v_exp_f32 v{AR(s)}, v{AR(s)}")
    m = maxsrc(CUR)
    a(f"v_max3_f32 v13, abs(v{m[0]}), abs(v{m[1]}), abs(v{m[2]})")
    a(f"v_max3_f32 v14, abs(v{m[3]}), abs(v{m[4]}), abs(v{m[5]})")
    a("v_max_u32 v13, v13, v14")
    for s in S: a(f"v_cvt_pk_bf16_f32 v{AR(s)}, 0, v{AR(s)}")
    a("v_max_u32_dpp v13, v13, v13 row_ror:8 row_mask:0xf bank_mask:0xf")
    for s in S: a(f"v_pk_mul_f32 {P(AR(s))}, {P(AR(s))}, v[12:13] op_sel:[0,0] op_sel_hi:[1,0]")
    a("v_max_u32_dpp v13, v13, v13 row_ror:4 row_mask:0xf bank_mask:0xf")
    for s in S: a(f"v_mul_f32 v{AR(s)}, {NLOG2E}, v{AR(s)}")
    a("v_max_u32_dpp v13, v13, v13 row_ror:2 row_mask:0xf bank_mask:0xf")
    for s in S: a(f"v_mul_f32 v{AR(s)+1}, {INV2PI}, v{AR(s)+1}")
    a("v_max_u32_dpp v13, v13, v13 row_ror:1 row_mask:0xf bank_mask:0xf")
    def anchor(dst, p, conj=False):
        for s in S:
            if p == 1:
                a(f"v_exp_f32 v{PW(s)}, v{AR(s)}")
                a(f"v_fract_f32 v{T(s)+1}, v{AR(s)+1}")
            else:
                a(f"v_mul_f32 v{T(s)}, {fhex(p)}, v{AR(s)}")
                a(f"v_mul_f32 v{T(s)+1}, {fhex(p)}, v{AR(s)+1}")
        if p != 1:
            for s in S:
                a(f"v_exp_f32 v{PW(s)}, v{T(s)}")
                a(f"v_fract_f32 v{T(s)+1}, v{T(s)+1}")
        for s in S:
            a(f"v_cos_f32 v{dst(s)}, v{T(s)+1}")
            a(f"v_sin_f32 v{dst(s)+1}, v{T(s)+1}")
        for s in S:
            a(f"v_pk_mul_f32 {P(dst(s))}, {P(dst(s))}, {P(PW(s))} op_sel:[0,0] op_sel_hi:[1,0]" + (" neg_hi:[1,0]" if conj else ""))
    anchor(Z1, 1)
    a("""
    v_readlane_b32 s48, v13, 0
    v_readlane_b32 s49, v13, 16
    v_readlane_b32 s50, v13, 32
    v_readlane_b32 s51, v13, 48
    """)
    anchor(ZZ, 256)
    a("""
    s_max_u32 s48, s48, s49
    s_max_u32 s50, s50, s51
    s_max_u32 s48, s48, s50
    s_and_b32 s48, s48, 0x7f800000
    s_max_u32 s48, s48, 0x01000000
    s_min_u32 s48, s48, 0x7e000000
    s_sub_u32 s49, 0x7f000000, s48
    """)
    anchor(W, 8, conj=True)
    for s in S:
        a(f"v_mul_f32 v{CUR(s)}, s49, v{CUR(s)}")
        a(f"v_mul_f32 v{CUR(s)+1}, s49, -v{CUR(s)+1}")
    cnt = [0]
    def row(slot, reg):
        pk = PKS[cnt[0] & 1]; cnt[0] += 1
        for s in S:
            if reg is None: a(f"v_mov_b32 v{pk+s}, 0x3c00")
            else: a(f"v_cvt_pk_f16_f32 v{pk+s}, v{reg(s)}, v{reg(s)+1}")
        if ns == 2: a(f"ds_write_b64 {vwr}, {P(pk)} offset:{slot*erow}")
        else: a(f"ds_write_addtid_b32 v{pk} offset:{slot*erow + 32768}")
        if fill and cnt[0] % 4 == 1: a(fill.pop(0))
    def cm(d, x, y): cmul(a, [(d(s), x(s), y(s), T(s)) for s in S])
    TMP = AR
    row(0, None); row(1, Z1)
    cm(R2, Z1, Z1); row(2, R2)
    cm(TMP, R2, Z1); row(3, TMP)
    cm(R4, R2, R2); row(4, R4)
    cm(TMP, R4, Z1); row(5, TMP)
    cm(R6, R4, R2); row(6, R6)
    cm(TMP, R6, Z1); row(7, TMP)
    row(8, ZZ)
    cm(TMP, ZZ, R2); row(9, TMP)
    cm(TMP, ZZ, R4); row(10, TMP)
    cm(TMP, ZZ, R6); row(11, TMP)
    cm(PW, ZZ, ZZ); row(12, PW)
    cm(TMP, PW, R4); row(13, TMP)
    cm(PW, PW, ZZ); row(14, PW)
    cm(TMP, PW, R4); row(15, TMP)
    for ks in range(nks): a(f"ds_read_b128 {Q(AF + 4*ks)}, {vrd} offset:{64*ks}")
    for i in range(5):
        cm(PW, PW, ZZ); row(i, PW)
    for ks in range(nks): a(f"ds_read_b128 {Q(AF + 4*nks + 4*ks)}, {vrd} offset:{64*ks}")
    for j in range(16):
        row(j, CUR); cm(CUR, CUR, W)
    for ks in range(nks): a(f"ds_read_b128 {Q(BF + 4*ks)}, {vrd} offset:{64*ks}")
    def kmfma(nt, ks):
        for mt in range(2):
            acc = ACC + 8 * nt + 4 * mt
            c = "0" if ks == 0 else Q(acc)
            a(f"v_mfma_f32_16x16x32_f16 {Q(acc)}, {Q(AF + 4*nks*mt + 4*ks)}, {Q(BF + 4*ks)}, {c}")
    for j in range(16):
        row(j, CUR)
        if j == 3: a("s_waitcnt lgkmcnt(4)")
        if 3 <= j < 3 + nks: kmfma(0, j - 3)
        if j < 15: cm(CUR, CUR, W)
    for ks in range(nks): a(f"ds_read_b128 {Q(BF + 4*ks)}, {vrd} offset:{64*ks}")
    extra = mid() if mid else 0
    for ks in range(nks):
        a(f"s_waitcnt lgkmcnt({nks - 1 - ks + extra})")
        kmfma(1, ks)

def dt_code(a):
    a(f"""
    s_waitcnt lgkmcnt(0)
    s_lshl_b32 s14, s13, 16
    s_and_b32 s13, s13, 0xffff0000
    s_bitcmp1_b32 s10, 0
    s_cselect_b32 s13, s13, s14
    v_mov_b32 v12, {LOG2E}
    v_mul_f32 v12, s13, v12
    v_exp_f32 v12, v12
    v_cvt_pk_bf16_f32 v12, 0, v12
    """)

def wait_init(a, tag, vtmp):
    a(f"v_mov_b32 v{vtmp}, 0")
    poll(a, tag + "I", vtmp, 1, vtmp + 1, base="s[40:41]", sleep=4)

def slab(a, lds_off, FR, ct0, mul, per, nks, dsrd, stores=True):
    for c in range(4):
        for h in range(2):
            a(f"ds_read_b64_tr_b16 {P(FR + 4*c + 2*h)}, v8 offset:{lds_off + 32*c + 2048*h}")
    for c in range(4):
        a(f"""
        s_add_u32 s53, s{ct0}, {c}
        s_mul_i32 s54, s53, {mul}
        s_lshr_b32 s54, s54, 8
        s_mul_i32 s55, s54, {nks - 1}
        s_add_u32 s55, s55, s52
        s_mul_i32 s55, s55, {per}
        s_add_u32 s55, s55, s53
        s_lshl_b32 s55, s55, 10
        s_waitcnt lgkmcnt({6 - 2*c})
        buffer_store_dwordx4 {Q(FR + 4*c)}, v9, s[{dsrd}:{dsrd+3}], s55 offen {SC}
        """)

def slab_addr(a, stride):
    a(f"""
    v_lshrrev_b32 v7, 3, v1
    v_mul_u32_u24 v7, {stride}, v7
    v_and_b32 v8, 7, v1
    v_lshl_add_u32 v7, v8, 4, v7
    v_lshrrev_b32 v8, 2, v1
    v_lshlrev_b32 v8, 7, v8
    v_and_b32 v9, 3, v1
    v_lshl_add_u32 v8, v9, 3, v8
    s_mul_i32 s56, s8, 12288
    v_add_u32 v8, s56, v8
    v_lshlrev_b32 v9, 4, v1
    """)

def gen_k1(a):
    a(f"""
    s_lshl_b32 s9, s8, 2
    s_add_u32 s9, s9, {FLAG0}
    v_mov_b32 v2, s9
    v_mov_b32 v3, 0
    ds_write_b32 v2, v3
    ds_write_b32 v2, v3 offset:32
    s_sub_u32 s9, s7, 8
    s_cmp_ge_u32 s9, 4
    s_cbranch_scc1 K1_NOPF
    s_cmp_eq_u32 s2, 95
    s_cbranch_scc1 K1_INIT
    s_getpc_b64 s[10:11]
K1_PC:
    v_lshlrev_b32 v2, 7, v0
    v_min_u32 v2, CODE_END-K1_PC-4, v2
    global_load_dword v255, v2, s[10:11]
    s_branch K1_NOPF
K1_INIT:
    v_lshlrev_b32 v2, 4, v0
    v_add_u32 v2, {WS_STAT1}, v2
    v_mov_b32 v4, 0
    v_mov_b32 v5, 0
    v_mov_b32 v6, 0
    v_mov_b32 v7, 0
    s_waitcnt lgkmcnt(0)
    global_store_dwordx4 v2, v[4:7], s[42:43] sc1
    v_add_u32 v2, 0x2000, v2
    global_store_dwordx4 v2, v[4:7], s[42:43] sc1
    v_add_u32 v2, 0x2000, v2
    global_store_dwordx4 v2, v[4:7], s[42:43] sc1
    v_add_u32 v2, 0x2000, v2
    global_store_dwordx4 v2, v[4:7], s[42:43] sc1
    v_add_u32 v2, 0x2000, v2
    global_store_dwordx4 v2, v[4:7], s[42:43] sc1
    s_waitcnt vmcnt(0)
    s_barrier
    s_cmp_lg_u32 s8, 0
    s_cbranch_scc1 K1_NOPF
    v_mov_b32 v5, 1
    s_mov_b64 exec, 1
    global_store_dword v4, v5, s[40:41] sc1
    s_mov_b64 exec, -1
K1_NOPF:
    s_waitcnt lgkmcnt(0)
    s_cmp_lt_u32 s7, 12
    s_cbranch_scc1 K1_HELPER
    s_mul_i32 s9, s6, 20
    s_add_u32 s9, s9, s7
    s_sub_u32 s9, s9, 12
    s_lshl_b32 s10, s9, 2
    s_add_u32 s10, s10, s3
    s_mul_i32 s11, s10, 384
    v_lshl_add_u32 v14, v1, 2, s11
    s_add_u32 s11, s11, 256
    v_lshl_add_u32 v15, v1, 1, s11
    s_lshl_b32 s12, s10, 1
    s_and_b32 s12, s12, -4
    s_load_dword s13, s[26:27], s12
    global_load_dword v20, v14, s[22:23] {OPT.get('nt','nt')}
    global_load_ushort v21, v15, s[22:23] {OPT.get('nt','nt')}
    global_load_dword v22, v14, s[24:25] {OPT.get('nt','nt')}
    global_load_ushort v23, v15, s[24:25] {OPT.get('nt','nt')}
    s_mul_i32 s59, s3, {BS_STRIDE}
    s_add_u32 s59, s59, {BS0}
    v_and_b32 v10, 15, v1
    v_lshrrev_b32 v11, 4, v1
    s_cmp_ge_u32 s8, 4
    s_cbranch_scc1 K1_BW
    """)
    a(f"""
    global_load_dword v16, v14, s[18:19] {OPT.get('nt','nt')}
    global_load_dword v18, v14, s[20:21] {OPT.get('nt','nt')}
    s_sub_u32 s48, s7, 12
    s_lshl_b32 s48, s48, 7
    v_lshrrev_b32 v2, 1, v0
    v_add_u32 v2, s48, v2
    v_min_u32 v2, 0x7ff, v2
    v_mul_u32_u24 v2, 1280, v2
    v_and_b32 v3, 1, v0
    v_lshl_add_u32 v2, v3, 7, v2
    s_mul_i32 s48, s6, 160
    s_and_b32 s48, s48, -128
    v_add_u32 v2, s48, v2
    global_load_dword v255, v2, s[16:17] {OPT.get('ntx','')}
    s_barrier
    s_mul_i32 s61, s3, {KC_STRIDE}
    s_add_u32 s61, s61, {KC0 + 96}
    s_mul_i32 s62, s3, {U_STRIDE}
    s_add_u32 s62, s62, {U0}
    s_lshl_b32 s63, s3, 12
    s_add_u32 s63, s63, {X0}
    s_load_dword s58, s[28:29], s12
    s_mul_i32 s60, s3, {AS_STRIDE}
    s_add_u32 s60, s60, {AS0}
    v_lshl_add_u32 v2, v1, 3, s60
    v_mul_u32_u24 v4, 528, v10
    v_lshl_add_u32 v4, v11, 4, v4
    v_add_u32 v4, s60, v4
    s_mul_i32 s60, s3, {KW_STRIDE}
    v_mov_b32 v12, 0
    v_mov_b32 v13, 0
    v_mov_b32 v14, 0
    v_mov_b32 v15, 0
    v_lshl_add_u32 v5, v1, 4, s60
    ds_write_b128 v5, v[12:15]
    ds_write_b128 v5, v[12:15] offset:{2*TB[0]}
    ds_write_b128 v5, v[12:15] offset:{2*TB[0] + CP}
    ds_write_b128 v5, v[12:15] offset:{2*TB[0] + 2*CP}
    ds_write_b128 v5, v[12:15] offset:{2*TB[0] + 3*CP}
    v_lshl_add_u32 v5, v1, 3, s62
    ds_write_b64 v5, v[12:13]
    s_sub_u32 s48, s61, 96
    v_lshl_add_u32 v5, v1, 2, s48
    ds_write_b32 v5, v12
    v_max_u32 v12, 1, v11
    v_sub_u32 v12, 6, v12
    v_lshlrev_b32 v5, v12, v10
    v_lshlrev_b32 v13, 4, v11
    v_lshlrev_b32 v6, 9, v11
    v_cmp_gt_u32 vcc, 2, v11
    v_cndmask_b32 v13, v6, v13, vcc
    v_add3_u32 v5, v5, v13, s61
    v_mov_b32 v13, 0x100
    v_cmp_eq_u32 vcc, 3, v11
    v_cndmask_b32 v13, 8, v13, vcc
    v_lshlrev_b32 v12, v12, 16
    v_add_u32 v7, v5, v12
    v_add_u32 v8, v7, v13
    v_lshl_add_u32 v9, v10, 2, v6
    v_add_u32 v6, v5, v13
    s_add_u32 s48, s61, 2048
    v_add_u32 v9, s48, v9
    """)
    VA, VB, VX, VO, VT, VU, BAND = 200, 201, 202, 203, 224, 225, 212
    a(f"""
    v_add_u32 v12, 1, v10
    v_and_b32 v12, 3, v12
    v_mul_u32_u24 v13, {CP + 2}, v12
    v_lshlrev_b32 v12, 3, v11
    v_sub_u32 v12, v12, v10
    v_lshl_add_u32 v13, v12, 1, v13
    s_add_u32 s48, s60, 30
    v_add_u32 v{VA}, s48, v13
    v_lshlrev_b32 v13, 3, v11
    v_sub_u32 v{VT}, v{VA}, v13
    v_sub_u32 v24, 48, v12
    v_lshlrev_b32 v12, 5, v10
    v_lshl_add_u32 v12, v11, 4, v12
    s_add_u32 s48, s62, 32
    v_add_u32 v{VB}, s48, v12
    v_lshlrev_b32 v12, 2, v10
    v_add_u32 v12, v12, v11
    v_lshl_add_u32 v{VX}, v12, 3, s63
    s_add_u32 s48, s62, 512
    v_lshl_add_u32 v{VU}, v12, 3, s48
    v_and_b32 v12, 1, v11
    v_lshrrev_b32 v13, 2, v10
    v_lshl_add_u32 v12, v12, 2, v13
    v_mul_u32_u24 v12, 81920, v12
    v_and_b32 v13, 3, v10
    v_lshl_add_u32 v12, v13, 5, v12
    v_lshrrev_b32 v13, 1, v11
    v_lshl_add_u32 v12, v13, 4, v12
    s_lshl_b32 s48, s10, 7
    v_add_u32 v{VO}, s48, v12
    s_sub_u32 s48, s61, 96
    v_lshl_add_u32 v204, v1, 5, s48
    v_cmp_eq_u32 vcc, 34, v1
    s_add_u32 s48, s61, 1024
    v_lshl_add_u32 v206, v1, 3, s48
    v_cndmask_b32 v205, 0, 4, vcc
    v_sub_u32 v205, v204, v205
    v_cmp_eq_u32 vcc, 63, v1
    v_lshlrev_b32 v208, 4, v1
    v_add_u32 v211, s59, v208
    s_add_u32 s48, s60, 1072
    v_cndmask_b32 v207, 0, 4, vcc
    v_sub_u32 v207, v206, v207
    v_sub_u32 v208, s48, v208
    v_lshlrev_b32 v209, 3, v1
    s_add_u32 s48, s60, 1592
    v_sub_u32 v209, s48, v209
    v_lshlrev_b32 v210, 1, v1
    s_add_u32 s48, s60, 126
    v_sub_u32 v210, s48, v210
    s_lshl_b32 s48, s3, 2
    s_add_u32 s48, s48, {FLAG0}
    v_mov_b32 v3, s48
    """)
    a("v_mov_b32 v29, 0\nv_mov_b32 v30, 0x3c00")
    for w, (lo, hi) in enumerate(((0, 4), (5, 11), (12, 15))):
        a(f"v_subrev_u32 v25, {hi}, v24\nv_mov_b32 v28, {(1 << (hi - lo + 1)) - 1}\nv_lshlrev_b64 v[26:27], v25, v[28:29]")
        for d in range(4):
            a(f"v_bfe_u32 v25, v27, {2*d}, 2\nv_lshl_or_b32 v25, v25, 15, v25\nv_and_b32 v25, 0x10001, v25\nv_mul_u32_u24 v{BAND + 4*w + d}, v25, v30")
    dt_code(a)
    a("s_lshl_b32 s57, s58, 16\ns_and_b32 s58, s58, 0xffff0000\ns_bitcmp1_b32 s10, 0\ns_cselect_b32 s58, s58, s57")
    a("s_waitcnt vmcnt(1)")
    stamp(a, 1)
    def unpackA(AR, CUR):
        for dst, raw in ((AR, 16), (lambda s: AR(s) + 1, 18), (CUR, 20), (lambda s: CUR(s) + 1, 22)):
            a(f"v_lshlrev_b32 v{dst(0)}, 16, v{raw}")
            a(f"v_and_b32 v{dst(1)}, 0xffff0000, v{raw}")
        a("v_lshlrev_b32 v21, 16, v21\nv_lshlrev_b32 v23, 16, v23")
    ACC = 68
    def midA():
        a("ds_read_b32 v17, v3")
        return 1
    if OPT.get("krep"): a("s_mov_b32 s73, 0\nKA_REP:")
    kgen(a, 2, 528, "v2", "v4", [24, 44], [64, 66], ACC, 84, 148, unpackA,
         lambda CUR: [CUR(0), CUR(0)+1, CUR(1), CUR(1)+1, 21, 23], midA)
    if OPT.get("krep"):
        a("s_cmp_lg_u32 s73, 0\ns_cbranch_scc1 KA_DN"); stamp(a, 8); a("s_mov_b32 s73, 1\ns_nop 7\ns_barrier\ns_branch KA_REP\nKA_DN:"); stamp(a, 9)
    a(f"""
    v_mul_f32 v15, s48, v12
    v_add_f32 v15, v15, v15
    s_waitcnt lgkmcnt(0)
K1_PW:
    v_readfirstlane_b32 s50, v17
    s_cmp_lg_u32 s50, 0
    s_cbranch_scc1 K1_PR
    ds_read_b32 v17, v3
    s_waitcnt lgkmcnt(0)
    s_branch K1_PW
K1_PR:
    """)
    for k in range(4): a(f"ds_read_b128 {Q(180 + 4*k)}, v211 offset:{1024*k}")
    for k in range(4):
        a(f"s_waitcnt lgkmcnt({3-k})")
        for h in (0, 2): a(f"v_pk_add_f32 {P(ACC + 4*k + h)}, {P(ACC + 4*k + h)}, {P(180 + 4*k + h)}")
    a(f"""
    ds_write_b64 v5, {P(ACC)}
    ds_write_b64 v6, {P(ACC+2)}
    ds_write_b64 v7, {P(ACC+8)}
    ds_write_b64 v8, {P(ACC+10)}
    s_mov_b32 exec_hi, 0
    ds_write2_b32 v9, v{ACC+4}, v{ACC+5} offset0:0 offset1:32
    ds_write2_b32 v9, v{ACC+6}, v{ACC+7} offset0:64 offset1:96
    ds_write2_b32 v9, v{ACC+12}, v{ACC+13} offset0:16 offset1:48
    ds_write2_b32 v9, v{ACC+14}, v{ACC+15} offset0:80 offset1:112
    s_mov_b64 exec, -1
    ds_read_b64 v[44:45], v206 offset:512
    ds_read_b32 v46, v206 offset:520
    ds_read_b64 v[48:49], v206
    ds_read_b32 v50, v206 offset:8
    ds_read_b32 v51, v207 offset:12
    ds_read_b128 v[24:27], v204
    ds_read_b128 v[28:31], v204 offset:16
    ds_read_b32 v32, v204 offset:32
    ds_read2_b32 v[34:35], v205 offset0:9 offset1:10
    ds_read_b64 v[40:41], v206 offset:1024
    ds_read_b32 v42, v206 offset:1032
    """)
    def emit_region(e, n, addr, off0, regs):
        cur = [None] * (n // 2)
        for sg in range(4):
            for d in range(n // 2):
                want = (e[sg + n - 1 - 2 * d], e[sg + n - 2 - 2 * d])
                if cur[d] != want:
                    a(f"v_cvt_pk_f16_f32 v{regs + d}, v{want[0]}, v{want[1]}")
                    cur[d] = want
            if n == 4:
                a(f"ds_write_b64 {addr}, {P(regs)} offset:{off0 + CP*sg}")
            else:
                for h in range(n // 8):
                    a(f"ds_write_b128 {addr}, {Q(regs + 4*h)} offset:{off0 + CP*sg + 16*h}")
            if n <= 8 and len(set(e)) > 4:
                regs += n // 2; cur = [None] * (n // 2)
    a("s_waitcnt lgkmcnt(9)\nv_mov_b32 v47, v46\nv_writelane_b32 v47, 0, 63")
    emit_region([44]*3 + [45]*3 + [46]*2 + [47]*3, 8, "v208", 0, 92)
    a("s_waitcnt lgkmcnt(10)")
    emit_region([48, 48, 49, 50, 50, 50, 51], 4, "v209", 0, 96)
    a("s_waitcnt lgkmcnt(8)\ns_mov_b32 exec_hi, 7")
    emit_region([24, 25, 26, 27, 28, 29, 30, 31, 32, 34, 35], 8, "v208", 1072, 100)
    a("s_mov_b64 exec, -1")
    a("v_cvt_pk_f16_f32 v226, v40, v41\nv_cvt_pk_f16_f32 v227, v42, v42")
    tw = [("W", f"ds_write_b16{('', '_d16_hi', '')[w]} v210, v{(226, 226, 227)[w]} offset:{(CP + 2)*sg + 2*TB[w]}") for w in range(3) for sg in range(4)]
    stamp(a, 2)
    CA = 24; XR = 88; SR = 152; HH = 228; HB = 152
    AA = lambda q, s: (56 + 16*(s & 1) + 4*q) if q < 4 else 252
    BB = lambda d, s: 88 + 32*(s & 1) + 4*d
    lg = Cnt(a, "lgkmcnt", 15)
    def rdA(q, s, h): return (("A", q, s), f"ds_read_b64 {P(AA(q, s) + 2*h)}, v{VA} offset:{64*(32 - 8*q - s) + 8*h}")
    def rdB(d, s): return (("B", d, s), f"ds_read_b128 {Q(BB(d, s))}, v{VB} offset:{512*d + 64*(7 - s)}")
    UD = lambda c: 152 + 4*c
    XF32 = lambda c: (184 + 4*c) if c < 4 else (228 + 4*(c - 4))
    def epi_pre(c):
        u, x = UD(c), XF32(c)
        r = [(("U", c), f"ds_read_b64 {P(u + 2)}, v{VU} offset:{512*c}"), (("X", c), f"ds_read_b64 {P(x + 2)}, v{VX} offset:{512*c}")]
        v = [("U", f"v_fma_mix_f32 v{u}, v{u+2}, s58, 0 op_sel:[0,0,0] op_sel_hi:[1,0,0]\nv_fma_mix_f32 v{u+1}, v{u+2}, s58, 0 op_sel:[1,0,0] op_sel_hi:[1,0,0]"),
             ("U", f"v_fma_mix_f32 v{u+2}, v{u+3}, s58, 0 op_sel:[0,0,0] op_sel_hi:[1,0,0]\nv_fma_mix_f32 v{u+3}, v{u+3}, s58, 0 op_sel:[1,0,0] op_sel_hi:[1,0,0]"),
             ("X", f"v_lshlrev_b32 v{x}, 16, v{x+2}\nv_and_b32 v{x+1}, 0xffff0000, v{x+2}"),
             ("X", f"v_lshlrev_b32 v{x+2}, 16, v{x+3}\nv_and_b32 v{x+3}, 0xffff0000, v{x+3}"),
             ("U", f"v_cvt_pk_bf16_f32 v{u}, 0, v{u}\nv_cvt_pk_bf16_f32 v{u+1}, 0, v{u+1}"),
             ("U", f"v_cvt_pk_bf16_f32 v{u+2}, 0, v{u+2}\nv_cvt_pk_bf16_f32 v{u+3}, 0, v{u+3}")]
        return r, [(None, t, (k, c)) for k, t in v]
    def rdT(w, e): return (("T", w), f"ds_read_b64 {P(HB + 10*w + 2*(3 - e))}, v{VT} offset:{2*TB[w] + 96 - 32*e}")
    def emit(r):
        if len(r) > 2: lg.wait({r[2]})
        a(r[1])
        if r[0] is not None: lg.issue(r[0])
    a("s_waitcnt vmcnt(0)\ns_setprio " + str(OPT.get("cprio", 2)))
    for q in range(4, -1, -1):
        emit(rdA(q, 0, 0)); emit(rdA(q, 0, 1))
    padto(a, "p0", "Z")
    a("s_barrier")
    stamp(a, 3)
    for d in range(4): emit(rdB(d, 0))
    fifo = [rdB(d, 0) for d in range(4, 8)] + tw
    touched = set()
    def mm(c, ra, rb, tags):
        assert not any(t[0] in tags for t in fifo), tags
        lg.wait(tags)
        cin = Q(c) if c in touched else "0"
        touched.add(c)
        a(f"v_mfma_f32_16x16x32_f16 {Q(c)}, {Q(ra)}, {Q(rb)}, {cin}")
        if fifo: emit(fifo.pop(0))
    for x in range(4):
        for w in range(3): mm(SR + 16*w + 4*x, BB(x, 0), BAND + 4*w, {("B", x, 0)})
    for d in range(4): mm(CA + 4*(4 + d), AA(4, 0), BB(d, 0), {("A", 4, 0), ("B", d, 0)})
    for s in range(8):
        stamp(a, s + 1, "bs")
        if s < 7:
            n = s + 1
            fifo[0:0] = [rdA(3, n, 0), rdA(3, n, 1)] + [rdB(d, n) for d in range(5)] + [rdA(2, n, 0), rdA(2, n, 1), rdB(5, n), rdA(1, n, 0), rdA(1, n, 1), rdB(6, n), rdA(0, n, 0), rdA(0, n, 1), rdB(7, n)]
        if s == 0:
            fifo += [(None, f"v_cvt_pk_f16_f32 v{HH + 8*w + 2*x}, v{SR + 16*w + 4*x}, v{SR + 16*w + 4*x + 1}\nv_cvt_pk_f16_f32 v{HH + 8*w + 2*x + 1}, v{SR + 16*w + 4*x + 2}, v{SR + 16*w + 4*x + 3}") for w in range(3) for x in range(4)]
            fifo += [rdT(w, e) for w in range(3) for e in range(4)] + [(None, f"v_mov_b32 v{HB + 10*w + 8}, 0\nv_mov_b32 v{HB + 10*w + 9}, 0") for w in range(3)]
        if s == 4:
            pr = [epi_pre(c) for c in range(8)]
            for c in range(8): fifo += pr[c][0]
            for c in range(8): fifo += pr[c][1]
        for q in range(3, -1, -1):
            for d in range(0, 8 - q):
                mm(CA + 4*(q + d), AA(q, s), BB(d, s), {("A", q, s), ("B", d, s)})
        if s == 3:
            assert not fifo
            for w in range(3):
                for cc in range(4):
                    for kb in range(cc // 2 + 1):
                        e = cc - 2*kb
                        mm(CA + 4*(4 + cc), HH + 8*w + 4*kb, HB + 10*w + 2*(3 - e), {("T", w)})
    stamp(a, 1, "cv"); stamp(a, 9, "bs")
    a("v_mov_b32 v14, v15")
    while fifo: emit(fifo.pop(0))
    for c in range(8):
        acc = CA + 4*c
        a(f"v_pk_mul_f32 {P(acc)}, {P(acc)}, v[14:15]")
        a(f"v_pk_mul_f32 {P(acc+2)}, {P(acc+2)}, v[14:15]")
        for r in range(4): a(f"v_cvt_pk_bf16_f32 v{acc+r}, 0, v{acc+r}")
        a(f"v_pk_add_f32 {P(acc)}, {P(acc)}, {P(UD(c))}")
        a(f"v_pk_add_f32 {P(acc+2)}, {P(acc+2)}, {P(UD(c)+2)}")
        for r in range(4): a(f"v_cvt_pk_bf16_f32 v{acc+r}, 0, v{acc+r}")
        a(f"v_pk_add_f32 {P(acc)}, {P(acc)}, {P(XF32(c))}")
        a(f"v_pk_add_f32 {P(acc+2)}, {P(acc+2)}, {P(XF32(c)+2)}")
        o = 56 + 2*c
        a(f"v_cvt_pk_bf16_f32 v{o}, v{acc}, v{acc+1}")
        a(f"v_cvt_pk_bf16_f32 v{o+1}, v{acc+2}, v{acc+3}")
        if c & 1:
            a(f"v_permlane16_swap_b32 v{o-2}, v{o}\nv_permlane16_swap_b32 v{o-1}, v{o+1}")
            a(f"global_store_dwordx4 v{VO}, {Q(o-2)}, s[42:43] {SC}")
            if c < 7: a(f"v_add_u32 v{VO}, {8*81920}, v{VO}")
    a("s_setprio 0")
    stamp(a, 3, "cv")
    wsetup(a, 112, WST, 16384)
    a("s_barrier")
    for u in range(4): wread(a, 112, u, u)
    a(f"s_lshl_b32 s9, s6, 7\ns_add_u32 s9, s9, {C_S1}\ns_waitcnt vmcnt(0)")
    stamp(a, 4, "cv"); stamp(a, 10, "bs")
    arrive_last(a, "K1A", FLAG0 + 16, 9, 20, rep=True)
    stamp(a, 4)
    a("s_branch PH3X")

    XG = 160
    a(f"""
K1_BW:
    global_load_ushort v16, v15, s[18:19] {OPT.get('nt','nt')}
    global_load_ushort v18, v15, s[20:21] {OPT.get('nt','nt')}
    s_barrier
    v_subrev_u32 v2, 256, v0
    v_mul_u32_u24 v3, 10240, v2
    s_lshl_b32 s11, s9, 3
    v_add_u32 v3, s11, v3
    v_add_u32 v5, 5120, v3
    """)
    gath = [f"global_load_dwordx2 {P(XG + 2*i)}, v{(3, 5)[i >> 2]}, s[16:17] offset:{1280*(i & 3)}" for i in range(8)]
    for i in range(NG0): a(gath.pop(0))
    a(f"""
    s_mov_b32 s60, s59
    s_sub_u32 m0, s60, 32768
    v_mul_u32_u24 v4, 272, v10
    v_lshl_add_u32 v4, v11, 4, v4
    v_add_u32 v4, s60, v4
    v_lshl_add_u32 v9, v1, 4, s60
    v_lshlrev_b32 v6, 5, v2
    v_add_u32 v7, {WS_STAT1}, v6
    v_lshlrev_b32 v8, 4, v2
    v_add_u32 v6, {X0}, v8
    v_add_u32 v8, {U0 + 512}, v8
    """)
    dt_code(a)
    wsetup(a, 112, WST, 16384)
    a(f"""
    s_sub_u32 s12, s7, 13
    s_lshl_b32 s12, s12, {7 - LG()}
    v_lshrrev_b32 v116, {1 + LG()}, v0
    v_add_u32 v116, s12, v116
    v_min_u32 v116, {(2048 >> LG()) - 1}, v116
    v_lshlrev_b32 v116, 12, v116
    v_and_b32 v117, 3, v1
    v_lshl_add_u32 v116, v117, 7, v116
    v_and_b32 v117, 4, v1
    v_lshl_add_u32 v116, v117, 8, v116
    s_lshl_b32 s12, s4, {23 - LG()}
    v_add_u32 v116, s12, v116
    v_mov_b32 v119, 0
    """)
    gath += [""] * 3 + ["global_load_dword v118, v119, s[40:41] sc1"]
    a(f"s_waitcnt vmcnt({NG0})")
    def unpackB(AR, CUR):
        for dst, raw in ((AR(0), 16), (AR(0) + 1, 18), (CUR(0), 21), (CUR(0) + 1, 23), (17, 20), (19, 22)):
            a(f"v_lshlrev_b32 v{dst}, 16, v{raw}")
    ACC = 48
    if OPT.get("krep"): stamp(a, 7); a("s_mov_b32 s73, 0\nKB_REP:")
    kgen(a, 1, 272, None, "v4", [24], [44, 45], ACC, 64, 96, unpackB, lambda CUR: [CUR(0), CUR(0)+1, 17, 19, 20, 22], fill=gath)
    if OPT.get("krep"):
        a("s_cmp_lg_u32 s73, 0\ns_cbranch_scc1 KB_DN"); stamp(a, 8); a("s_mov_b32 s73, 1\ns_nop 7\ns_barrier\ns_branch KB_REP\nKB_DN:"); stamp(a, 9)
    for k in range(4): a(f"ds_write_b128 v9, {Q(ACC + 4*k)} offset:{1024*k}")
    a(f"""
    s_lshl_b32 s48, s3, 2
    s_add_u32 s48, s48, {FLAG0}
    v_mov_b32 v3, s48
    v_mov_b32 v5, 1
    ds_write_b32 v3, v5
    s_mov_b32 s64, 0x05040100
    s_mov_b32 s65, 0x07060302
    """)
    stamp(a, 1)
    a("s_waitcnt vmcnt(0)\nv_cmp_eq_u32 vcc, 0, v118\ns_cbranch_vccz K1BI_OK")
    wait_init(a, "K1B", 10)
    if OPT.get("st2"): stamp(a, 3)
    XF = lambda i, c: 64 + 4*i + c
    UF = XF
    MR = lambda i: 40 + 2*i
    ldst = f"global_load_dwordx4 v[32:35], v7, s[42:43] sc1\nglobal_load_dwordx4 v[36:39], v7, s[42:43] offset:16 sc1"
    a(ldst)
    for i in range(8):
        for h in range(2):
            a(f"v_lshlrev_b32 v{XF(i, 2*h)}, 16, v{XG + 2*i + h}")
            a(f"v_and_b32 v{XF(i, 2*h+1)}, 0xffff0000, v{XG + 2*i + h}")
    for c in range(4):
        for i in range(0, 8, 2):
            a(f"v_perm_b32 v{16 + 4*c + i//2}, v{XG + 2*i + 2 + (c >> 1)}, v{XG + 2*i + (c >> 1)}, s{64 + (c & 1)}")
        a(f"ds_write_b128 v6, {Q(16 + 4*c)} offset:{4096*c}")
    a(f"""
    s_mov_b32 s15, 0
K1_POLL:
    s_waitcnt vmcnt(0)
    v_min3_u32 v10, v32, v33, v34
    v_min3_u32 v11, v35, v36, v37
    v_min3_u32 v10, v10, v38, v39
    v_min_u32 v10, v10, v11
    v_cmp_eq_u32 vcc, 0, v10
    s_add_u32 s15, s15, 1
    s_cbranch_vccz K1_READY
    s_cmp_ge_u32 s15, {SPIN}
    s_cbranch_scc1 K1_READY
    s_sleep 4
    {ldst}
    s_branch K1_POLL
K1_READY:
    """)
    stamp(a, 2)
    for i in range(8):
        a(f"v_lshlrev_b32 v{MR(i)+1}, 16, v{32+i}")
        a(f"v_and_b32 v{MR(i)}, 0xffff0000, v{32+i}")
        a(f"v_rcp_f32 v{MR(i)+1}, v{MR(i)+1}")
    for i in range(8):
        for h in range(2):
            a(f"v_pk_add_f32 {P(UF(i, 2*h))}, {P(XF(i, 2*h))}, {P(MR(i))} op_sel:[0,0] op_sel_hi:[1,0] neg_lo:[0,1] neg_hi:[0,1]")
        for c in range(4): a(f"v_cvt_pk_bf16_f32 v{UF(i,c)}, 0, v{UF(i,c)}")
        for h in range(2):
            a(f"v_pk_mul_f32 {P(UF(i, 2*h))}, {P(UF(i, 2*h))}, {P(MR(i))} op_sel:[0,1] op_sel_hi:[1,1]")
        for c in range(4): a(f"v_cvt_pk_bf16_f32 v{UF(i,c)}, 0, v{UF(i,c)}")
    for c in range(4):
        for i in range(0, 8, 2):
            a(f"v_cvt_pk_f16_f32 v{16 + 4*c + i//2}, v{UF(i,c)}, v{UF(i+1,c)}")
        a(f"ds_write_b128 v8, {Q(16 + 4*c)} offset:{U_STRIDE*c}")
    a("s_waitcnt lgkmcnt(0)")
    if not OPT.get("st2"): stamp(a, 3)
    a("s_barrier")
    for u in range(4): wdma(a, 112, u, u)
    a("global_load_dword v117, v116, s[34:35] nt")
    for u in range(8):
        a(f"s_waitcnt vmcnt({13 if u < 4 else 12})")
        stamp(a, u + 1, "bs")
        wread(a, 112, u, u & 3)
        a("s_waitcnt lgkmcnt(0)")
        wdma(a, 112, u + 4 if u < 4 else u - 20, u & 3)
    a("s_cmp_lg_u32 s8, 4\ns_cbranch_scc1 K1V_OK")
    poll8(a, "K1V", C_WI, 4, 14, sleep=2)
    a("s_waitcnt vmcnt(0)")
    stamp(a, 9, "bs")
    a("s_barrier\ns_branch PH3Y")

    a(f"""
K1_HELPER:
    s_lshl_b32 s9, s7, 3
    s_add_u32 s9, s9, s6
    s_cmp_ge_u32 s7, 8
    s_cbranch_scc1 K1_H2
    v_lshrrev_b32 v2, 4, v0
    s_lshl_b32 s10, s9, 5
    v_add_u32 v3, s10, v2
    v_mul_u32_u24 v3, 1280, v3
    v_and_b32 v4, 15, v0
    v_lshl_add_u32 v3, v4, 4, v3
    """)
    for j in range(5): a(f"global_load_dwordx4 {Q(16 + 4*j)}, v3, s[16:17] offset:{256*j} {OPT.get('ntx','')}")
    a(f"""
    s_mov_b32 s11, 0x3f803f80
    v_lshlrev_b32 v2, 2, v2
    v_add_u32 v2, 0x18000, v2
    v_mov_b32 v10, 0
    v_mov_b32 v11, 0
    v_mov_b32 v12, 0
    v_mov_b32 v13, 0
    """)
    slab_addr(a, 1280)
    a(f"""
    s_lshl_b32 s10, s9, 2
    s_add_u32 s10, s10, s8
    s_cmp_ge_u32 s8, 4
    s_cselect_b32 s10, 240, s10
    s_min_u32 s10, s10, 240
    s_mul_i32 s52, s10, 205
    s_lshr_b32 s52, s52, 11
    s_mul_i32 s60, s52, 10
    s_sub_u32 s60, s10, s60
    s_mul_i32 s12, s52, 43
    s_lshr_b32 s12, s12, 7
    s_mul_i32 s13, s12, 3
    s_sub_u32 s13, s52, s13
    s_lshl_b32 s13, s13, 2
    s_mul_i32 s12, s12, {96*1280}
    s_lshl_b32 s14, s60, 7
    s_add_u32 s12, s12, s14
    s_lshr_b32 s58, 0x320, s13
    s_and_b32 s58, s58, 15
    s_mul_i32 s58, s58, {16*1280}
    s_add_u32 s58, s58, s12
    s_lshr_b32 s59, 0x451, s13
    s_and_b32 s59, s59, 15
    s_mul_i32 s59, s59, {16*1280}
    s_add_u32 s59, s59, s12
    s_lshl_b32 s57, s60, 2
    """)
    srd(a, 68, 38, 0, 768 * 1280)
    srd(a, 64, 42, WS_WO, 768 * 1280)
    for j in range(5):
        a(f"s_waitcnt vmcnt({4-j})")
        for r in range(4):
            a(f"v_dot2_f32_bf16 v{10 + (r & 1)}, v{16 + 4*j + r}, s11, v{10 + (r & 1)}")
            a(f"v_dot2_f32_bf16 v{12 + (r & 1)}, v{16 + 4*j + r}, v{16 + 4*j + r}, v{12 + (r & 1)}")
    stamp(a, 1)
    a("v_add_f32 v10, v10, v11\nv_add_f32 v12, v12, v13")
    for sh in (8, 4, 2, 1):
        for r in (10, 12): a(f"v_add_f32_dpp v{r}, v{r}, v{r} row_ror:{sh} row_mask:0xf bank_mask:0xf")
    ln_finish(a, 10, 12, 640, 11, rcp=False)
    a(f"""
    v_cvt_pk_bf16_f32 v12, v12, v10
    ds_write_b32 v2, v12
    s_cmp_lg_u32 s8, 4
    s_cbranch_scc1 K1_NI
    """)
    wait_init(a, "K1H", 10)
    a(f"""
K1_NI:
    s_waitcnt lgkmcnt(0)
    s_barrier
    s_cmp_lg_u32 s8, 4
    s_cbranch_scc1 K1_WO
    v_lshlrev_b32 v2, 2, v1
    v_add_u32 v3, 0x18000, v2
    ds_read_b32 v12, v3
    s_lshl_b32 s12, s9, 7
    s_add_u32 s12, s12, {WS_STAT1}
    v_add_u32 v2, s12, v2
    s_waitcnt lgkmcnt(0)
    s_mov_b32 exec_hi, 0
    global_store_dword v2, v12, s[42:43] sc1
    s_mov_b32 exec_hi, -1
    """)
    stamp(a, 2)
    a(f"""
K1_WO:
    s_barrier
    s_lshl_b32 s12, s7, {20 - LG()}
    s_lshl_b32 s13, s4, {23 - LG()}
    s_add_u32 s12, s12, s13
    v_lshrrev_b32 v2, 4, v0
    v_lshlrev_b32 v2, 12, v2
    v_lshl_add_u32 v2, v4, 7, v2
    v_add_u32 v2, s12, v2
    v_add_u32 v3, 0x20000, v2
    global_load_dword v255, v2, s[34:35] offset:2048 {OPT.get('ntu', 'nt')}
    {"global_load_dword v255, v3, s[34:35] offset:2048 " + OPT.get('ntu', 'nt') if LG() == 2 else ""}
    s_lshr_b32 s12, s6, {LG()}
    s_lshl_b32 s12, s12, 17
    v_add_u32 v2, s12, v2
    s_barrier
    """)
    for e in range(4):
        a(f"s_add_u32 m0, s56, {1024*e}")
        a(f"s_add_u32 s13, s{58 + (e >> 1)}, {8*1280*(e & 1)}")
        a(f"buffer_load_dwordx4 v7, s[68:71], s13 offen {OPT.get('nt','nt')} lds")
    a(f"""
    v_or_b32 v2, 0x200, v2
    global_load_dword v255, v2, s[34:35]
    s_cmp_ge_u32 s10, 240
    s_cbranch_scc1 K1_PF
    s_waitcnt vmcnt(1)
    """)
    slab(a, 0, 16, 57, 52, 5, 24, 64)
    a(f"""
    s_branch K1_PF
K1_H2:
    s_sub_u32 s10, s9, 64
    s_lshl_b32 s14, s10, 13
    s_lshl_b32 s10, s10, 3
    s_add_u32 s10, s10, s8
    s_cmp_ge_u32 s10, 240
    s_cbranch_scc1 K1_H3
    s_mul_i32 s52, s10, 171
    s_lshr_b32 s52, s52, 11
    s_mul_i32 s60, s52, 12
    s_sub_u32 s60, s10, s60
    s_mul_i32 s12, s52, {32*3072}
    s_lshl_b32 s13, s60, 7
    s_add_u32 s12, s12, s13
    """)
    slab_addr(a, 3072)
    srd(a, 68, 32, 0, 640 * 3072)
    srd(a, 64, 42, WS_WI, 640 * 3072)
    for r in range(2):
        for e in range(4):
            a(f"s_add_u32 m0, s56, {4096*r + 1024*e}")
            a(f"s_add_u32 s13, s12, {1536*(1 - r) + 8*3072*e}")
            a(f"buffer_load_dwordx4 v7, s[68:71], s13 offen nt lds")
    stamp(a, 1, "hi")
    a(f"""
    s_mov_b32 s11, 0x3f803f80
    s_mul_i32 s12, s60, {16*320}
    s_lshl_b32 s13, s52, 4
    s_add_u32 s12, s12, s13
    s_add_u32 s12, s12, {WS_CSUM}
    v_lshrrev_b32 v2, 2, v1
    v_mul_u32_u24 v2, 320, v2
    v_and_b32 v3, 3, v1
    v_lshl_add_u32 v2, v3, 2, v2
    v_add_u32 v2, s12, v2
    v_add_u32 v3, {192*320}, v2
    """)
    for r in range(2):
        a(f"s_waitcnt vmcnt({4 + r})")
        stamp(a, 2 + r, "hi")
        a(f"s_lshl_b32 s57, s60, 2\ns_add_u32 s57, s57, {48*(1 - r)}")
        slab(a, 4096*r, 16 + 16*r, 57, 43, 6, 20, 64)
        C = 48 + 4*r
        for k in range(4):
            for c in range(4):
                a(f"v_dot2_f32_bf16 v{C+c}, v{16 + 16*r + 4*c + k}, s11, " + ("0" if k == 0 else f"v{C+c}"))
        a(f"""
        v_permlane16_swap_b32 v{C}, v{C+1}
        v_permlane16_swap_b32 v{C+2}, v{C+3}
        v_add_f32 v{C}, v{C}, v{C+1}
        v_add_f32 v{C+2}, v{C+2}, v{C+3}
        v_permlane32_swap_b32 v{C}, v{C+2}
        v_add_f32 v{C}, v{C}, v{C+2}
        global_store_dword v{3 - r}, v{C}, s[42:43] {SC}
        """)
    a(f"""
K1_H3:
    s_add_u32 s14, s14, {WS_PST}
    v_lshl_add_u32 v2, v0, 4, s14
    v_mov_b32 v4, -1
    v_mov_b32 v5, -1
    v_mov_b32 v6, -1
    v_mov_b32 v7, -1
    global_store_dwordx4 v2, v[4:7], s[42:43] {SC}
    """)
    a(f"""
K1_PF:
    s_cmp_lg_u32 s8, 4
    s_cbranch_scc1 K1_PG
    """)
    wait_init(a, "K1P", 10)
    a(f"""
K1_PG:
    """)
    stamp(a, 6, "hi")
    a("s_waitcnt vmcnt(0)")
    stamp(a, 7, "hi")
    a(f"""
    s_barrier
    s_cmp_lt_u32 s8, 4
    s_cbranch_scc1 K1_HX
    s_cmp_lg_u32 s8, 4
    s_cbranch_scc1 K1_HW
    s_cmp_lt_u32 s7, 8
    s_mov_b32 s9, {C_WI}
    s_cselect_b32 s9, {C_WO}, s9
    s_lshl_b32 s12, s6, 7
    s_add_u32 s9, s9, s12
    """)
    arrive(a, 9, 10)
    stamp(a, 3)
    a("K1_HW:")
    stamp(a, 1, "cv"); stamp(a, 8, "hi")
    wsetup(a, 10, WST, 16384)
    for u in range(4): wdma(a, 10, u, u)
    for u in range(8):
        a(f"s_waitcnt vmcnt({12 if u < 5 else 4*(7 - u)})")
        wread(a, 10, u, u & 3)
        if u < 4:
            a("s_waitcnt lgkmcnt(0)")
            wdma(a, 10, u + 4, u)
    stamp(a, 2, "cv"); stamp(a, 9, "hi")
    a("s_cmp_lg_u32 s8, 4\ns_cbranch_scc1 K1_NW")
    poll8(a, "K1W", C_WI, 4, 14, sleep=4)
    a("K1_NW:")
    stamp(a, 3, "cv"); stamp(a, 10, "hi"); stamp(a, 9, "bs")
    a(f"""
    s_waitcnt lgkmcnt(0)
    s_barrier
    """)
    def touch(tag):
        srd(a, 64, 42, WS_WI, 640 * 3072)
        if OPT.get("tw", 2) == 2:
            a(f"""
            s_cmp_lt_u32 s7, 8
            s_cbranch_scc1 K1_T{tag}
            s_sub_u32 s10, s7, 8
            s_mul_i32 s12, {"s10" if LG() == 3 else "s47"}, {(LG() - 1)*122880}
            v_min_u32 v2, 479, v0
            v_lshl_add_u32 v2, v2, 7, s12
            """)
            for off in [8*122880 + 61440, 9*122880 + 61440, 0, 122880][:LG() - 1]:
                a(f"s_mov_b32 s12, {off}\nbuffer_load_dword v127, v2, s[64:67], s12 offen sc1")
            a(f"K1_T{tag}:")
            return
        a(f"""
        s_mul_i32 s10, s7, 122880
        s_mul_i32 s12, s7, {2*122880}
        s_sub_u32 s12, s12, {8*122880 - 61440}
        s_cmp_lt_u32 s7, 8
        s_cselect_b32 s10, s10, s12
        s_mov_b32 s12, 122880
        s_cselect_b32 s12, 61440, s12
        v_min_u32 v2, 479, v0
        v_lshl_add_u32 v2, v2, 7, s10
        buffer_load_dword v127, v2, s[64:67], 0 offen sc1
        buffer_load_dword v127, v2, s[64:67], s12 offen sc1
        """)
        stamp(a, 4)
    touch("Y")
    a("s_branch PH3Y\nK1_HX:")
    wsetup(a, 112, WS2, 16384)
    a("s_barrier")
    touch("X")
    for u in range(4): wdma(a, 112, u, u)
    for u in range(4):
        a(f"s_waitcnt vmcnt({12 - 4*u})")
        wread(a, 112, u, u)
    a("s_waitcnt lgkmcnt(0)")
```

```python
import struct
WS_HT = 0
WS_STAT1 = 0x280000
WS_CNT = 0x282000
C_S1 = WS_CNT + 192*128
C_WI = WS_CNT + 8*128
C_WO = WS_CNT + 16*128
C_S2 = WS_CNT + 64*128
C_S3 = WS_CNT + 128*128
WS_CSUM = 0x2d0000
WS_PST = 0x290000
WS_Z2 = 0x300000
WS_P = 0x600000
WS_WI = 0x900000
WS_WO = WS_WI + 640*3072
WS_STAMP = 0x1000000
LDS_FLAG = 163840 - 64
SC = "sc1"
SPIN = "0x20000"
OPT = {}
def fhex(x): return "0x%08x" % struct.unpack("<I", struct.pack("<f", x))[0]
def P(r): return f"v[{r}:{r+1}]"
def Q(r): return f"v[{r}:{r+3}]"

class Cnt:
    def __init__(self, a, name, mx): self.a = a; self.name = name; self.mx = mx; self.q = []
    def issue(self, tag, n=1): self.q.extend([tag] * n)
    def wait(self, tags):
        last = max((i for i, t in enumerate(self.q) if t in tags), default=-1)
        if last < 0: return
        n = min(len(self.q) - 1 - last, self.mx)
        self.a(f"s_waitcnt {self.name}({n})")
        del self.q[:len(self.q) - n]
    def all(self):
        self.a(f"s_waitcnt {self.name}(0)"); self.q = []

def LG(): return OPT.get('lg', 3)
NSTAMP = 12
def stamp(a, k, grp="main"):
    if not OPT.get("stamp"): return
    if k not in (0, NSTAMP - 1) and OPT.get("sg", "main") != grp: return
    a(f"s_memrealtime s[{76+2*k}:{77+2*k}]")

def stamp_out(a, tag):
    if not OPT.get("stamp"): return
    a("s_waitcnt vmcnt(0)")
    stamp(a, NSTAMP - 1)
    a("s_waitcnt lgkmcnt(0)")
    for i in range(NSTAMP): a(f"v_mov_b32 v{4+i}, s{76+2*i}")
    if OPT.get("dbg"):
        if tag == OPT["dbg"]:
            for i in range(1, NSTAMP): a(f"v_subrev_u32 v{4+i}, s76, v{4+i}")
            a(f"""
            v_mov_b32 v2, 16
            s_cmp_lg_u32 s3, 0
            s_cbranch_scc1 ST_{tag}
            s_cmp_lg_u32 s2, 200
            s_cbranch_scc1 ST_{tag}
            s_mov_b64 exec, 1
            global_store_dwordx4 v2, v[4:7], s[40:41]
            global_store_dwordx4 v2, v[8:11], s[40:41] offset:16
            global_store_dwordx4 v2, v[12:15], s[40:41] offset:32
ST_{tag}:
            """)
        return
    a(f"""
    s_lshl_b32 s74, s2, 7
    s_lshl_b32 s75, s8, 4
    s_add_u32 s74, s74, s75
    s_add_u32 s74, s74, {WS_STAMP}
    v_mov_b32 v2, s74
    s_cmp_lg_u32 s3, 0
    s_cbranch_scc1 ST_{tag}
    s_mov_b64 exec, 1
    global_store_dwordx4 v2, v[4:7], s[42:43]
    global_store_dwordx4 v2, v[8:11], s[42:43] offset:16
    global_store_dwordx4 v2, v[12:15], s[42:43] offset:32
ST_{tag}:
    """)

def entry(a, name):
    a(f"{name}:")
    if OPT.get("stamp"):
        for k in range(1, NSTAMP): a(f"s_mov_b32 s{76+2*k}, 0")
        stamp(a, 0)
    a(f"""
    s_cmp_ge_u32 s2, 256
    s_cbranch_scc1 K_END
    s_load_dwordx16 s[16:31], s[0:1], 0
    s_load_dwordx8 s[32:39], s[0:1], 64
    s_load_dwordx4 s[40:43], s[0:1], 104
    s_load_dwordx2 s[44:45], s[0:1], 96
    v_and_b32 v1, 63, v0
    v_lshrrev_b32 v2, 6, v0
    s_and_b32 s6, s2, 7
    s_lshr_b32 s7, s2, 3
    v_readfirstlane_b32 s8, v2
    s_and_b32 s4, s6, {(1 << LG()) - 1}
    s_lshl_b32 s46, s4, {5 - LG()}
    s_lshr_b32 s9, s7, {LG()}
    s_add_u32 s46, s46, s9
    s_lshr_b32 s47, s6, {LG()}
    s_lshl_b32 s47, s47, {LG()}
    s_and_b32 s9, s7, {(1 << LG()) - 1}
    s_add_u32 s47, s47, s9
    s_and_b32 s3, s8, 3
    """)

def srd(a, r, base, off, nbytes):
    if off:
        a(f"s_add_u32 s{r}, s{base}, {off}\ns_addc_u32 s{r+1}, s{base+1}, 0")
    else:
        a(f"s_mov_b32 s{r}, s{base}\ns_mov_b32 s{r+1}, s{base+1}")
    a(f"s_mov_b32 s{r+2}, {nbytes}\ns_mov_b32 s{r+3}, 0x20000")

def allred_g(a, regs, tmp):
    for swap in ("v_permlane32_swap_b32", "v_permlane16_swap_b32"):
        for k, r in enumerate(regs): a(f"v_mov_b32 v{tmp+k}, v{r}")
        for k, r in enumerate(regs): a(f"{swap} v{r}, v{tmp+k}")
        for k, r in enumerate(regs): a(f"v_add_f32 v{r}, v{r}, v{tmp+k}")

def ln_finish(a, s, q, n, t, rcp=True):
    a(f"v_mul_f32 v{s}, {fhex(1/n)}, v{s}")
    a(f"v_mul_f32 v{t}, v{s}, v{s}")
    a(f"v_mul_f32 v{q}, {fhex(1/n)}, v{q}")
    a(f"v_sub_f32 v{q}, v{q}, v{t}")
    a(f"v_max_f32 v{q}, 0, v{q}")
    a(f"v_cvt_pk_bf16_f32 v{q}, 0, v{q}")
    a(f"v_add_f32 v{q}, {fhex(1e-5)}, v{q}")
    a(f"v_cvt_pk_bf16_f32 v{q}, 0, v{q}")
    a(f"v_sqrt_f32 v{q}, v{q}")
    if rcp:
        a(f"v_cvt_pk_bf16_f32 v{s}, 0, v{s}")
        a(f"v_cvt_pk_bf16_f32 v{q}, 0, v{q}")
        a(f"v_rcp_f32 v{q}, v{q}")

def arrive(a, sreg, vt, inc=1):
    a(f"""
    v_mov_b32 v{vt}, s{sreg}
    v_mov_b32 v{vt+1}, {inc}
    s_mov_b64 exec, 1
    global_atomic_add v{vt}, v{vt+1}, s[42:43] sc1
    s_mov_b64 exec, -1
    """)

def arrive_last(a, tag, ldsaddr, sreg, vt, rep=False):
    a(f"""
    v_mov_b32 v{vt}, {ldsaddr}
    v_mov_b32 v{vt+1}, 1
    s_mov_b64 exec, 1
    ds_add_rtn_u32 v{vt+2}, v{vt}, v{vt+1}
    s_mov_b64 exec, {"0xff" if rep else "1"}
    v_lshl_add_u32 v{vt}, v1, 10, s{sreg}
    s_waitcnt lgkmcnt(0)
    v_readfirstlane_b32 s15, v{vt+2}
    s_cmp_lg_u32 s15, 3
    s_cbranch_scc1 {tag}_NL
    global_atomic_add v{vt}, v{vt+1}, s[42:43] sc1
{tag}_NL:
    s_mov_b64 exec, -1
    """)

def warm(a, sreg, vt, rep=False):
    a(f"""
    v_lshl_add_u32 v{vt}, v1, 10, s{sreg}
    v_mov_b32 v{vt+1}, 0
    s_mov_b64 exec, {"0xff" if rep else "1"}
    global_atomic_add v{vt}, v{vt+1}, s[42:43] sc1
    s_mov_b64 exec, -1
    """)

def poll(a, tag, vaddr, want, vt, base="s[42:43]", sleep=2):
    a(f"""
    s_mov_b32 s15, 0
{tag}_PL:
    global_load_dword v{vt}, v{vaddr}, {base} sc1
    s_waitcnt vmcnt(0)
    v_cmp_gt_u32 vcc, {want}, v{vt}
    s_add_u32 s15, s15, 1
    s_cbranch_vccz {tag}_OK
    s_sleep {sleep}
    s_cmp_lt_u32 s15, {SPIN}
    s_cbranch_scc1 {tag}_PL
{tag}_OK:
    """)

def poll8(a, tag, off_expr, want, vt, sleep=2, n=8):
    a(f"v_and_b32 v{vt}, {n-1}, v1\nv_lshlrev_b32 v{vt}, 7, v{vt}\nv_add_u32 v{vt}, {off_expr}, v{vt}")
    poll(a, tag, vt, want, vt + 1, sleep=sleep)

WF = lambda mt, ks: 128 + 64*mt + 4*ks
def wsetup(a, va, lds_base, per_wave):
    a(f"""
    s_lshl_b32 s73, s46, 1
    s_lshr_b32 s13, s3, 1
    s_add_u32 s73, s73, s13
    s_lshl_b32 s73, s73, 17
    s_lshr_b32 s13, s8, 2
    s_lshl_b32 s13, s13, 1
    s_and_b32 s9, s8, 1
    s_add_u32 s13, s13, s9
    s_lshl_b32 s13, s13, 10
    s_add_u32 s73, s73, s13
    s_mul_i32 s72, s3, {per_wave}
    s_add_u32 s72, s72, {lds_base}
    v_lshrrev_b32 v{va}, 3, v1
    v_lshrrev_b32 v{va+1}, 4, v1
    v_and_b32 v{va+2}, 7, v1
    v_xor_b32 v{va+1}, v{va+1}, v{va+2}
    v_lshlrev_b32 v{va}, 12, v{va}
    v_lshl_add_u32 v{va}, v{va+1}, 4, v{va}
    v_xor_b32 v{va+1}, 64, v{va}
    v_add_u32 v{va+1}, {8*4096 - 1024}, v{va+1}
    v_and_b32 v{va+3}, 15, v1
    v_lshrrev_b32 v{va+2}, 1, v{va+3}
    v_lshlrev_b32 v{va+2}, 4, v{va+2}
    v_lshl_add_u32 v{va+2}, v{va+3}, 7, v{va+2}
    v_and_b32 v{va+3}, 48, v1
    v_xor_b32 v{va+2}, v{va+2}, v{va+3}
    v_add_u32 v{va+2}, s72, v{va+2}
    v_xor_b32 v{va+3}, 64, v{va+2}
    """)
    srd(a, 68, 34, 0, 2048 * 4096)

def wdma(a, va, u, slot):
    for mt in range(2):
        a(f"s_add_u32 m0, s72, {4096*slot + 2048*mt}")
        a(f"s_add_u32 s13, s73, {16*4096*mt + 128*u}")
        a(f"buffer_load_dwordx4 v{va}, s[68:71], s13 offen lds")
        a(f"buffer_load_dwordx4 v{va+1}, s[68:71], s13 offen offset:1024 lds")

def wread(a, va, u, slot):
    for ks in range(2):
        for mt in range(2):
            a(f"ds_read_b128 {Q(WF(mt, 2*u + ks))}, v{va+2+ks} offset:{4096*slot + 2048*mt}")
```

```python
import struct
WS_HT = 0
WS_STAT1 = 0x280000
WS_CNT = 0x282000
C_S1 = WS_CNT + 192*128
C_WI = WS_CNT + 8*128
C_WO = WS_CNT + 16*128
C_S2 = WS_CNT + 64*128
C_S3 = WS_CNT + 128*128
WS_CSUM = 0x2d0000
WS_PST = 0x290000
WS_Z2 = 0x300000
WS_P = 0x600000
WS_WI = 0x900000
WS_WO = WS_WI + 640*3072
WS_STAMP = 0x1000000
LDS_FLAG = 163840 - 64
SC = "sc1"
SPIN = "0x20000"
OPT = {}
def fhex(x): return "0x%08x" % struct.unpack("<I", struct.pack("<f", x))[0]
def P(r): return f"v[{r}:{r+1}]"
def Q(r): return f"v[{r}:{r+3}]"

class Cnt:
    def __init__(self, a, name, mx): self.a = a; self.name = name; self.mx = mx; self.q = []
    def issue(self, tag, n=1): self.q.extend([tag] * n)
    def wait(self, tags):
        last = max((i for i, t in enumerate(self.q) if t in tags), default=-1)
        if last < 0: return
        n = min(len(self.q) - 1 - last, self.mx)
        self.a(f"s_waitcnt {self.name}({n})")
        del self.q[:len(self.q) - n]
    def all(self):
        self.a(f"s_waitcnt {self.name}(0)"); self.q = []

def LG(): return OPT.get('lg', 3)
NSTAMP = 12
def stamp(a, k, grp="main"):
    if not OPT.get("stamp"): return
    if k not in (0, NSTAMP - 1) and OPT.get("sg", "main") != grp: return
    a(f"s_memrealtime s[{76+2*k}:{77+2*k}]")

def padto(a, key, tag):
    if not OPT.get(key): return
    a(f"""
PAD_{tag}:
    s_memrealtime s[100:101]
    s_waitcnt lgkmcnt(0)
    s_sub_u32 s100, s100, s76
    s_cmp_lt_u32 s100, {OPT[key]}
    s_cbranch_scc1 PAD_{tag}
    """)

def stamp_out(a, tag):
    if not OPT.get("stamp"): return
    a("s_waitcnt vmcnt(0)")
    stamp(a, NSTAMP - 1)
    a("s_waitcnt lgkmcnt(0)")
    for i in range(NSTAMP): a(f"v_mov_b32 v{4+i}, s{76+2*i}")
    if OPT.get("dbg"):
        if tag == OPT["dbg"]:
            for i in range(1, NSTAMP): a(f"v_subrev_u32 v{4+i}, s76, v{4+i}")
            a(f"""
            v_mov_b32 v2, 16
            s_cmp_lg_u32 s3, 0
            s_cbranch_scc1 ST_{tag}
            s_cmp_lg_u32 s2, 200
            s_cbranch_scc1 ST_{tag}
            s_mov_b64 exec, 1
            global_store_dwordx4 v2, v[4:7], s[40:41]
            global_store_dwordx4 v2, v[8:11], s[40:41] offset:16
            global_store_dwordx4 v2, v[12:15], s[40:41] offset:32
ST_{tag}:
            """)
        return
    a(f"""
    s_lshl_b32 s74, s2, 7
    s_lshl_b32 s75, s8, 4
    s_add_u32 s74, s74, s75
    s_add_u32 s74, s74, {WS_STAMP}
    v_mov_b32 v2, s74
    s_cmp_lg_u32 s3, 0
    s_cbranch_scc1 ST_{tag}
    s_mov_b64 exec, 1
    global_store_dwordx4 v2, v[4:7], s[42:43]
    global_store_dwordx4 v2, v[8:11], s[42:43] offset:16
    global_store_dwordx4 v2, v[12:15], s[42:43] offset:32
ST_{tag}:
    """)

def entry(a, name):
    a(f"{name}:")
    if OPT.get("diag"): a("s_memrealtime s[76:77]")
    if OPT.get("stamp"):
        for k in range(1, NSTAMP): a(f"s_mov_b32 s{76+2*k}, 0")
        stamp(a, 0)
    a(f"""
    s_cmp_ge_u32 s2, 256
    s_cbranch_scc1 K_END
    s_load_dwordx16 s[16:31], s[0:1], 0
    s_load_dwordx8 s[32:39], s[0:1], 64
    s_load_dwordx4 s[40:43], s[0:1], 104
    s_load_dwordx2 s[44:45], s[0:1], 96
    v_and_b32 v1, 63, v0
    v_lshrrev_b32 v2, 6, v0
    s_and_b32 s6, s2, 7
    s_lshr_b32 s7, s2, 3
    v_readfirstlane_b32 s8, v2
    s_and_b32 s4, s6, {(1 << LG()) - 1}
    s_lshl_b32 s46, s4, {5 - LG()}
    s_lshr_b32 s9, s7, {LG()}
    s_add_u32 s46, s46, s9
    s_lshr_b32 s47, s6, {LG()}
    s_lshl_b32 s47, s47, {LG()}
    s_and_b32 s9, s7, {(1 << LG()) - 1}
    s_add_u32 s47, s47, s9
    s_and_b32 s3, s8, 3
    """)

def srd(a, r, base, off, nbytes):
    if off:
        a(f"s_add_u32 s{r}, s{base}, {off}\ns_addc_u32 s{r+1}, s{base+1}, 0")
    else:
        a(f"s_mov_b32 s{r}, s{base}\ns_mov_b32 s{r+1}, s{base+1}")
    a(f"s_mov_b32 s{r+2}, {nbytes}\ns_mov_b32 s{r+3}, 0x20000")

def allred_g(a, regs, tmp):
    for swap in ("v_permlane32_swap_b32", "v_permlane16_swap_b32"):
        for k, r in enumerate(regs): a(f"v_mov_b32 v{tmp+k}, v{r}")
        for k, r in enumerate(regs): a(f"{swap} v{r}, v{tmp+k}")
        for k, r in enumerate(regs): a(f"v_add_f32 v{r}, v{r}, v{tmp+k}")

def ln_finish(a, s, q, n, t, rcp=True):
    a(f"v_mul_f32 v{s}, {fhex(1/n)}, v{s}")
    a(f"v_mul_f32 v{t}, v{s}, v{s}")
    a(f"v_mul_f32 v{q}, {fhex(1/n)}, v{q}")
    a(f"v_sub_f32 v{q}, v{q}, v{t}")
    a(f"v_max_f32 v{q}, 0, v{q}")
    a(f"v_cvt_pk_bf16_f32 v{q}, 0, v{q}")
    a(f"v_add_f32 v{q}, {fhex(1e-5)}, v{q}")
    a(f"v_cvt_pk_bf16_f32 v{q}, 0, v{q}")
    a(f"v_sqrt_f32 v{q}, v{q}")
    if rcp:
        a(f"v_cvt_pk_bf16_f32 v{s}, 0, v{s}")
        a(f"v_cvt_pk_bf16_f32 v{q}, 0, v{q}")
        a(f"v_rcp_f32 v{q}, v{q}")

def arrive(a, sreg, vt, inc=1):
    a(f"""
    v_mov_b32 v{vt}, s{sreg}
    v_mov_b32 v{vt+1}, {inc}
    s_mov_b64 exec, 1
    global_atomic_add v{vt}, v{vt+1}, s[42:43] sc1
    s_mov_b64 exec, -1
    """)

def arrive_last(a, tag, ldsaddr, sreg, vt, rep=False):
    a(f"""
    v_mov_b32 v{vt}, {ldsaddr}
    v_mov_b32 v{vt+1}, 1
    s_mov_b64 exec, 1
    ds_add_rtn_u32 v{vt+2}, v{vt}, v{vt+1}
    s_mov_b64 exec, {"0xff" if rep else "1"}
    v_lshl_add_u32 v{vt}, v1, 10, s{sreg}
    s_waitcnt lgkmcnt(0)
    v_readfirstlane_b32 s15, v{vt+2}
    s_cmp_lg_u32 s15, 3
    s_cbranch_scc1 {tag}_NL
    global_atomic_add v{vt}, v{vt+1}, s[42:43] sc1
{tag}_NL:
    s_mov_b64 exec, -1
    """)

def warm(a, sreg, vt, rep=False):
    a(f"""
    v_lshl_add_u32 v{vt}, v1, 10, s{sreg}
    v_mov_b32 v{vt+1}, 0
    s_mov_b64 exec, {"0xff" if rep else "1"}
    global_atomic_add v{vt}, v{vt+1}, s[42:43] sc1
    s_mov_b64 exec, -1
    """)

def poll(a, tag, vaddr, want, vt, base="s[42:43]", sleep=2):
    a(f"""
    s_mov_b32 s15, 0
{tag}_PL:
    global_load_dword v{vt}, v{vaddr}, {base} sc1
    s_waitcnt vmcnt(0)
    v_cmp_gt_u32 vcc, {want}, v{vt}
    s_add_u32 s15, s15, 1
    s_cbranch_vccz {tag}_OK
    s_sleep {sleep}
    s_cmp_lt_u32 s15, {SPIN}
    s_cbranch_scc1 {tag}_PL
{tag}_OK:
    """)

def poll8(a, tag, off_expr, want, vt, sleep=2, n=8):
    a(f"v_and_b32 v{vt}, {n-1}, v1\nv_lshlrev_b32 v{vt}, 7, v{vt}\nv_add_u32 v{vt}, {off_expr}, v{vt}")
    poll(a, tag, vt, want, vt + 1, sleep=sleep)

WF = lambda mt, ks: 128 + 64*mt + 4*ks
def wsetup(a, va, lds_base, per_wave):
    a(f"""
    s_lshl_b32 s73, s46, 1
    s_lshr_b32 s13, s3, 1
    s_add_u32 s73, s73, s13
    s_lshl_b32 s73, s73, 17
    s_lshr_b32 s13, s8, 2
    s_lshl_b32 s13, s13, 1
    s_and_b32 s9, s8, 1
    s_add_u32 s13, s13, s9
    s_lshl_b32 s13, s13, 10
    s_add_u32 s73, s73, s13
    s_mul_i32 s72, s3, {per_wave}
    s_add_u32 s72, s72, {lds_base}
    v_lshrrev_b32 v{va}, 3, v1
    v_lshrrev_b32 v{va+1}, 4, v1
    v_and_b32 v{va+2}, 7, v1
    v_xor_b32 v{va+1}, v{va+1}, v{va+2}
    v_lshlrev_b32 v{va}, 12, v{va}
    v_lshl_add_u32 v{va}, v{va+1}, 4, v{va}
    v_xor_b32 v{va+1}, 64, v{va}
    v_add_u32 v{va+1}, {8*4096 - 1024}, v{va+1}
    v_and_b32 v{va+3}, 15, v1
    v_lshrrev_b32 v{va+2}, 1, v{va+3}
    v_lshlrev_b32 v{va+2}, 4, v{va+2}
    v_lshl_add_u32 v{va+2}, v{va+3}, 7, v{va+2}
    v_and_b32 v{va+3}, 48, v1
    v_xor_b32 v{va+2}, v{va+2}, v{va+3}
    v_add_u32 v{va+2}, s72, v{va+2}
    v_xor_b32 v{va+3}, 64, v{va+2}
    """)
    srd(a, 68, 34, 0, 2048 * 4096)

def wdma(a, va, u, slot):
    for mt in range(2):
        a(f"s_add_u32 m0, s72, {4096*slot + 2048*mt}")
        a(f"s_add_u32 s13, s73, {16*4096*mt + 128*u}")
        a(f"buffer_load_dwordx4 v{va}, s[68:71], s13 offen lds")
        a(f"buffer_load_dwordx4 v{va+1}, s[68:71], s13 offen offset:1024 lds")

def wread(a, va, u, slot):
    for ks in range(2):
        for mt in range(2):
            a(f"ds_read_b128 {Q(WF(mt, 2*u + ks))}, v{va+2+ks} offset:{4096*slot + 2048*mt}")
```

```python
import numpy as np
from layout import *

def pipeline(a, j0, j1, reads, mfmas, pre, tail_reads=None):
    lg = Cnt(a, "lgkmcnt", 15)
    def emit(r): a(r[1]); lg.issue(r[0])
    for j in (j0, j0 + 1):
        for r in reads(j): emit(r)
    for j in range(j0, j1):
        pre(j)
        nxt = reads(j + 2) if j + 2 < j1 else (list(tail_reads) if (tail_reads and j == j1 - 1) else [])
        ms = mfmas(j)
        extra = len(nxt) - len(ms)
        for k, (tags, text) in enumerate(ms):
            lg.wait(tags)
            a(text)
            if nxt: emit(nxt.pop(0))
            if extra > 0 and k >= len(ms) - extra and nxt: emit(nxt.pop(0))
    return lg

K3_NS = 5
K3_TR = 81920
K3_ST = K3_TR + 4 * 32 * 112
K3_RING = 163328 - K3_NS * 12288
K3_CS = K3_ST + 512
assert K3_ST % 256 == 0 and K3_CS + 1024 <= K3_RING

Z1R = 20

def gen_k3(a):
    def common():
        a("""
        v_and_b32 v2, 15, v1
        v_lshrrev_b32 v3, 4, v1
        s_lshr_b32 s10, s3, 1
        s_and_b32 s11, s3, 1
        """)
        a(f"""
        v_lshrrev_b32 v9, 3, v1
        v_and_b32 v10, 7, v1
        v_and_b32 v11, 6, v9
        v_xor_b32 v10, v10, v11
        v_lshlrev_b32 v9, 7, v9
        v_lshl_add_u32 v5, v10, 4, v9
        s_mul_i32 s12, s46, 81920
        v_add_u32 v5, s12, v5
        s_lshl_b32 s12, s3, 11
        v_add_u32 v4, s12, v5
        s_mul_i32 s59, s3, 3072
        s_mul_i32 s12, s47, {20*6144}
        s_add_u32 s12, s12, s59
        v_lshl_add_u32 v6, v1, 4, s12
        s_lshl_b32 s14, s3, 11
        s_add_u32 s59, s59, {K3_RING}
        """)
        srd(a, 48, 42, WS_HT, 640 * 4096)
        srd(a, 52, 42, WS_WI, 640 * 3072)
    def mk_dma(vm):
        def dma_h(i):
            if i >= 10: return
            a(f"s_add_u32 m0, s14, {8192*i}")
            a(f"s_mov_b32 s56, {8192*i}")
            a(f"buffer_load_dwordx4 v4, s[48:51], s56 offen {SC} lds")
            a(f"buffer_load_dwordx4 v4, s[48:51], s56 offen offset:1024 {SC} lds")
            vm.issue(i, 2)
        def dma(i):
            if i >= 20: return
            a(f"s_add_u32 m0, s59, {12288*((i + 2) % K3_NS)}")
            a(f"s_mov_b32 s57, {12288*(i % 10) + (8*20*6144 if i < 10 else 0)}")
            for e in range(3):
                a(f"buffer_load_dwordx4 v6, s[52:55], s57 offen offset:{1024*e} {SC} lds")
            vm.issue(i, 3)
        return dma, dma_h
    CS = lambda nt: 24 + 4*nt
    ACC = lambda mt, nt: 36 + 12*mt + 4*nt
    FH = lambda b, mt: 60 + 20*b + 4*mt
    FW = lambda b, nt: 68 + 20*b + 4*nt
    TMP = 100; GC = 120
    MR = lambda mt: 122 + 2*mt
    ST = 20; SA = 20; SB = 124; ONE = 8
    def csload(vm, ph, C0=24, T0=36):
        a(f"""
        s_mul_i32 s12, s47, {24*320}
        s_mul_i32 s13, s11, {12*320}
        s_add_u32 s12, s12, s13
        s_add_u32 s12, s12, {WS_CSUM + (192*320 if ph == 0 else 0)}
        v_mul_u32_u24 v9, 320, v3
        v_lshl_add_u32 v9, v2, 4, v9
        v_add_u32 v9, s12, v9
        """)
        for r in range(12): a(f"v_mov_b32 v{T0+r}, 0")
        for nt in range(3): a(f"global_load_dwordx4 {Q(C0 + 4*nt)}, v9, s[42:43] offset:{1280*nt} {SC}")
        a("s_mov_b32 exec_lo, 0x000f000f\ns_mov_b32 exec_hi, 0x000f000f")
        for nt in range(3): a(f"global_load_dwordx4 {Q(T0 + 4*nt)}, v9, s[42:43] offset:{1280*nt + 256} {SC}")
        a("s_mov_b64 exec, -1")
        vm.issue("cs", 6)
    def csred(vm, C0=24, T0=36):
        vm.wait({"cs"})
        for r in range(12): a(f"v_add_f32 v{C0+r}, v{C0+r}, v{T0+r}")
        for sh in (8, 4, 2, 1):
            for r in range(12): a(f"v_add_f32_dpp v{C0+r}, v{C0+r}, v{C0+r} row_ror:{sh} row_mask:0xf bank_mask:0xf")
    def setup(isx):
        a(f"""
        v_lshrrev_b32 v9, 2, v1
        v_lshrrev_b32 v10, 1, v9
        v_and_b32 v10, 3, v10
        v_and_b32 v11, 3, v2
        v_lshlrev_b32 v11, 3, v11
        s_mov_b32 s63, {"s11" if isx else "0"}
        s_lshl_b32 s12, s10, 1
        s_add_u32 s12, s12, s63
        v_xor_b32 v12, s12, v10
        v_xor_b32 v13, 1, v12
        v_lshl_add_u32 v19, v9, 7, v11
        v_lshl_add_u32 v12, v12, 5, v19
        v_lshl_add_u32 v13, v13, 5, v19
        v_add_u32 v14, 40960, v12
        v_add_u32 v15, 40960, v13
        s_mul_i32 s12, s11, 3072
        s_add_u32 s12, s12, {K3_RING}
        v_lshl_add_u32 v16, v1, 4, s12
        s_lshl_b32 s12, s10, 8
        s_lshl_b32 s13, s63, 7
        s_add_u32 s12, s12, s13
        s_add_u32 s12, s12, {K3_ST}
        v_lshl_add_u32 v17, v2, 3, s12
        v_xor_b32 v7, 0x80, v17
        v_mov_b32 v{GC}, {fhex(-2.302208198)}
        v_mov_b32 v{GC+1}, {fhex(-0.1029432397)}
        """)
    def reads(j):
        st = j >> 1; b = j % 3; kk = j % 20
        ho = kk * 4096; hb = 12
        if ho >= 40960: ho -= 40960; hb = 14
        wo = 12288 * ((st + 2) % K3_NS) + (j & 1) * 6144
        h = [((j, "h", mt), f"ds_read_b64_tr_b16 {P(FH(b, mt) + 2*h)}, v{hb+mt} offset:{ho + 2048*h}") for mt in range(2) for h in range(2)]
        w = [((j, "w", nt), f"ds_read_b128 {Q(FW(b, nt))}, v16 offset:{wo + 1024*nt}") for nt in range(3)]
        return h[:2] + w + h[2:]
    WR = lambda j, nt: 128 + 12*(j - 10) + 4*nt
    NWR = OPT.get("nwr", 10)
    def wrl(vm, j):
        a(f"s_mov_b32 s57, {8*20*6144 + 6144*j}")
        for nt in range(3): a(f"buffer_load_dwordx4 {Q(WR(j, nt))}, v126, s[52:55], s57 offen offset:{1024*nt} {SC}")
        vm.issue(("wr", j), 3)
    def mainloop(j0, vm):
        def mf(j):
            b = j % 3
            return [({(j, "h", mt), (j, "w", nt)},
                     f"v_mfma_f32_16x16x32_bf16 {Q(ACC(mt, nt))}, {Q(FW(b, nt))}, {Q(FH(b, mt))}, " + ("0" if j == j0 else Q(ACC(mt, nt))))
                    for mt in range(2) for nt in range(3)] + ([] if j0 else [
                    ({(j, "h", 0)}, f"v_mfma_f32_16x16x32_bf16 {Q(SA)}, {Q(ONE)}, {Q(FH(b, 0))}, " + ("0" if j == 0 else Q(SA))),
                    ({(j, "h", 0)}, f"v_mfma_f32_16x16x32_bf16 {Q(SB)}, {Q(FH(b, 0))}, {Q(FH(b, 0))}, " + ("0" if j == 0 else Q(SB)))])
        def pre(j):
            if j in (0, 2, 4, 6, 8, 10, 12, 14, 16):
                stamp(a, (j % 20) // 2 + 1, "p3a" if j < 20 else "p3b")
                a("s_barrier")
        pipeline(a, j0, j0 + 20, reads, mf, pre)
    def gelu_tile(acc, cs, mr, t=100):
        for h in (0, 2): a(f"v_pk_fma_f32 {P(acc+h)}, {P(cs+h)}, {P(mr)}, {P(acc+h)} op_sel:[0,0,0] op_sel_hi:[1,0,1] neg_lo:[1,0,0] neg_hi:[1,0,0]")
        for h in (0, 2): a(f"v_pk_mul_f32 {P(acc+h)}, {P(acc+h)}, {P(mr)} op_sel:[0,1] op_sel_hi:[1,1]")
        for h in (0, 2): a(f"v_pk_mul_f32 {P(t+h)}, {P(acc+h)}, {P(acc+h)}")
        for h in (0, 2): a(f"v_pk_fma_f32 {P(t+h)}, {P(t+h)}, {P(GC)}, {P(GC)} op_sel:[0,1,0] op_sel_hi:[1,1,0]")
        for h in (0, 2): a(f"v_pk_mul_f32 {P(t+h)}, {P(t+h)}, {P(acc+h)}")
        for r in range(4): a(f"v_exp_f32 v{t+r}, v{t+r}")
        for r in range(4): a(f"v_add_f32 v{t+r}, 1.0, v{t+r}")
        for r in range(4): a(f"v_rcp_f32 v{t+r}, v{t+r}")
        for h in (0, 2): a(f"v_pk_mul_f32 {P(acc+h)}, {P(acc+h)}, {P(t+h)}")
    def rd_mr():
        for mt in range(2): a(f"ds_read_b64 {P(MR(mt))}, v{(17, 7)[mt]}")

    a("PH3X:")
    common(); setup(True)
    vm = Cnt(a, "vmcnt", 63); dma, dma_h = mk_dma(vm)
    a(f"""
    s_barrier
    """)
    csload(vm, 0)
    csred(vm)
    a(f"""
    s_lshl_b32 s12, s46, 13
    s_lshl_b32 s13, s10, 8
    s_add_u32 s12, s12, s13
    s_add_u32 s12, s12, {WS_PST}
    s_lshl_b32 s13, s11, 4
    v_and_b32 v19, 31, v1
    v_xor_b32 v19, s13, v19
    v_lshl_add_u32 v19, v19, 3, s12
    s_lshl_b32 s13, s47, 1
    s_add_u32 s13, s13, s11
    s_lshl_b32 s13, s13, 9
    v_add_u32 v18, s13, v19
    v_lshrrev_b32 v10, 5, v1
    v_lshl_add_u32 v19, v10, 12, v19
    v_and_b32 v122, 3, v1
    """)
    for r in range(4): a(f"v_mov_b32 v{ONE+r}, 0x3f803f80")
    stamp(a, 10, "p3a")
    a("s_setprio 3\ns_barrier\ns_barrier")
    stamp(a, 5)
    mainloop(0, vm)
    stamp(a, 6)
    a(f"""
    v_cmp_eq_u32 vcc, 1, v122
    v_cndmask_b32 v{SA+1}, v{SB}, v{SB+1}, vcc
    v_cmp_eq_u32 vcc, 2, v122
    v_cndmask_b32 v{SA+1}, v{SA+1}, v{SB+2}, vcc
    v_cmp_eq_u32 vcc, 3, v122
    v_cndmask_b32 v{SA+1}, v{SA+1}, v{SB+3}, vcc
    """)
    ln_finish(a, SA, SA+1, 640, TMP)
    a(f"""
    s_mov_b32 exec_lo, 0x00f0000f
    s_mov_b32 exec_hi, 0xf0000f00
    ds_write_b64 v17, {P(SA)}
    s_mov_b64 exec, -1
    s_waitcnt lgkmcnt(0)
    s_barrier
    """)
    rd_mr()
    a("s_waitcnt lgkmcnt(0)")
    SQ = lambda mt: 104 + 4*mt
    for mt in range(2):
        for nt in range(3):
            acc = ACC(mt, nt)
            gelu_tile(acc, CS(nt), MR(mt))
            if nt == 0:
                a(f"v_pk_add_f32 {P(SQ(mt))}, {P(acc)}, {P(acc+2)}")
                a(f"v_pk_mul_f32 {P(SQ(mt)+2)}, {P(acc)}, {P(acc)}")
                a(f"v_pk_fma_f32 {P(SQ(mt)+2)}, {P(acc+2)}, {P(acc+2)}, {P(SQ(mt)+2)}")
            else:
                for h in (0, 2):
                    a(f"v_pk_add_f32 {P(SQ(mt))}, {P(SQ(mt))}, {P(acc+h)}")
                    a(f"v_pk_fma_f32 {P(SQ(mt)+2)}, {P(acc+h)}, {P(acc+h)}, {P(SQ(mt)+2)}")
    for mt in range(2):
        a(f"v_add_f32 v{ST+2*mt}, v{SQ(mt)}, v{SQ(mt)+1}")
        a(f"v_add_f32 v{ST+2*mt+1}, v{SQ(mt)+2}, v{SQ(mt)+3}")
    a(f"""
    v_permlane16_swap_b32 v{ST}, v{ST+2}
    v_permlane16_swap_b32 v{ST+1}, v{ST+3}
    v_pk_add_f32 {P(ST)}, {P(ST)}, {P(ST+2)}
    v_mov_b32 v{ST+2}, v{ST}
    v_mov_b32 v{ST+3}, v{ST+1}
    v_permlane32_swap_b32 v{ST}, v{ST+2}
    v_permlane32_swap_b32 v{ST+1}, v{ST+3}
    v_pk_add_f32 {P(ST)}, {P(ST)}, {P(ST+2)}
    v_max_f32 v{ST+1}, 0, v{ST+1}
    s_mov_b32 exec_hi, 0
    global_store_dwordx2 v18, {P(ST)}, s[42:43] sc1
    s_mov_b32 exec_hi, -1
    """)
    vm.issue("pst")
    stamp(a, 1, "cv2")
    a("s_barrier")
    a(f"""
    s_mul_i32 s12, s3, {32*112}
    s_add_u32 s12, s12, {K3_TR}
    v_mul_u32_u24 v11, 112, v2
    v_lshl_add_u32 v11, v3, 3, v11
    v_add_u32 v11, s12, v11
    s_lshl_b32 s13, s11, 1
    v_xor_b32 v13, s13, v3
    v_lshrrev_b32 v12, 2, v2
    v_lshl_add_u32 v12, v13, 3, v12
    v_mul_u32_u24 v12, 112, v12
    v_and_b32 v13, 3, v2
    v_lshl_add_u32 v12, v13, 3, v12
    v_add_u32 v12, s12, v12
    s_lshl_b32 s12, s47, 5
    s_add_u32 s12, s12, s46
    s_mul_i32 s12, s12, 12288
    s_mul_i32 s13, s3, 3072
    s_add_u32 s12, s12, s13
    s_add_u32 s12, s12, {WS_Z2}
    v_lshl_add_u32 v10, v1, 4, s12
    """)
    G = 60
    def pstl():
        for k in range(8): a(f"global_load_dwordx2 {P(G + 2*k)}, v19, s[42:43] offset:{512*k} sc1")
    wsetup(a, 112, 0, 16384)
    a("s_barrier")
    pstl()
    a("s_mov_b32 s58, 0")
    a("K3_POLL:")
    a("s_waitcnt vmcnt(0)")
    a(f"v_max_u32 v13, v{G}, v{G+1}")
    for k in range(1, 8): a(f"v_max3_u32 v13, v13, v{G+2*k}, v{G+2*k+1}")
    a(f"""
    v_cmp_eq_u32 vcc, -1, v13
    s_add_u32 s58, s58, 1
    s_cbranch_vccz K3_READY
    s_cmp_ge_u32 s58, {SPIN}
    s_cbranch_scc1 K3_READY
    s_sleep 1
    """)
    pstl()
    a("s_branch K3_POLL\nK3_READY:")
    stamp(a, 2, "cv2")
    for d, e in ((0, 2), (4, 6), (8, 10), (12, 14), (0, 4), (8, 12), (0, 8)):
        for h in range(2): a(f"v_add_f32 v{G+d+h}, v{G+d+h}, v{G+e+h}")
    a(f"""
    v_mov_b32 v{G+2}, v{G}
    v_mov_b32 v{G+3}, v{G+1}
    v_permlane32_swap_b32 v{G}, v{G+2}
    v_permlane32_swap_b32 v{G+1}, v{G+3}
    v_add_f32 v{G}, v{G}, v{G+2}
    v_add_f32 v{G+1}, v{G+1}, v{G+3}
    """)
    ln_finish(a, G, G+1, 768, G+4)
    a(f"v_mul_f32 v{G}, v{G}, -v{G+1}")
    a(f"""
    v_mov_b32 v{G+2}, v{G}
    v_mov_b32 v{G+3}, v{G+1}
    v_permlane16_swap_b32 v{G}, v{G+2}
    v_permlane16_swap_b32 v{G+1}, v{G+3}
    """)
    O = 80
    for nt in range(3):
        for mt in range(2):
            acc = ACC(mt, nt); mr = G + 2*mt
            for r in range(4): a(f"v_fma_f32 v{acc+r}, v{acc+r}, v{mr+1}, v{mr}")
            a(f"v_cvt_pk_bf16_f32 v{acc}, v{acc}, v{acc+1}")
            a(f"v_cvt_pk_bf16_f32 v{acc+1}, v{acc+2}, v{acc+3}")
            a(f"ds_write_b64 v11, {P(acc)} offset:{16*112*mt + 32*nt}")
        for h in range(2):
            a(f"ds_read_b64_tr_b16 {P(O + 4*nt + 2*h)}, v12 offset:{32*nt + 4*112*h}")
        if nt:
            a(f"s_waitcnt lgkmcnt(4)")
            a(f"global_store_dwordx4 v10, {Q(O + 4*(nt-1))}, s[42:43] offset:{1024*(nt-1)} {SC}")
    a(f"s_waitcnt lgkmcnt(0)")
    a(f"global_store_dwordx4 v10, {Q(O + 8)}, s[42:43] offset:2048 {SC}")
    a(f"""
    s_lshl_b32 s12, s47, 10
    s_add_u32 s12, s12, {C_S2}
    s_lshl_b32 s58, s4, 7
    s_add_u32 s58, s58, s12
    s_waitcnt vmcnt(0)
    """)
    arrive_last(a, "K3A", LDS_FLAG + 20, 58, 10)
    stamp(a, 7); stamp(a, 3, "cv2")
    a("s_setprio 0")
    a("s_barrier")
    for u in range(4): wdma(a, 112, 4 + u, u)
    for u in range(4):
        a(f"s_waitcnt vmcnt({12 - 4*u})"); wread(a, 112, 4 + u, u)
    a(f"""
    s_waitcnt lgkmcnt(0)
    s_cmp_lg_u32 s8, 0
    s_cbranch_scc1 PH4
    s_lshl_b32 s12, s47, 10
    s_add_u32 s12, s12, {C_S2}
    """)
    poll8(a, "S2", "s12", 32 >> LG(), 10, sleep=OPT.get("sl2", 1), n=1 << LG())
    padto(a, "p2", "B")
    stamp(a, 4, "cv2")
    a("s_branch PH4")

    a("PH3Y:")
    common(); setup(False)
    vm = Cnt(a, "vmcnt", 63); dma, dma_h = mk_dma(vm)
    stamp(a, 10, "bs")
    a("s_barrier")
    csload(vm, 1)
    for i in range(5): dma(i)
    csred(vm)
    a(f"s_lshl_b32 s12, s3, 8\ns_add_u32 s12, s12, {K3_CS}\nv_lshl_add_u32 v18, v3, 4, s12")
    for nt in range(3): a(f"ds_write_b128 v18, {Q(24 + 4*nt)} offset:{64*nt}")
    a(f"""
    s_lshl_b32 s12, s10, 12
    v_add_u32 v12, s12, v12
    v_add_u32 v13, s12, v13
    v_xor_b32 v14, 64, v12
    v_xor_b32 v15, 64, v13
    v_lshl_add_u32 v16, v1, 4, s59
    """)
    a("s_cmp_lg_u32 s8, 4\ns_cbranch_scc1 K3_NP")
    a(f"""
    s_lshl_b32 s12, s6, 10
    s_add_u32 s12, s12, {C_S1}
    v_and_b32 v20, 7, v1
    v_lshlrev_b32 v20, 7, v20
    v_add_u32 v21, s12, v20
    v_mov_b32 v22, 20
    s_mov_b64 exec, 0xff00
    v_add_u32 v21, {C_WO}, v20
    v_mov_b32 v22, 8
    s_mov_b64 exec, -1
    """)
    poll(a, "S1", 21, "v22", 20, sleep=OPT.get("sl1", 1))
    padto(a, "p1", "A")
    a("K3_NP:\ns_barrier")
    stamp(a, 5)
    for i in range(4): dma_h(i)
    for s in range(11):
        vm.wait({s} if s < 10 else set())
        if s: stamp(a, s, "p3a")
        a("s_barrier")
        if s >= 2: dma(s + 3)
        dma_h(s + 4)
        if s == 10: dma(14)
        if s in (OPT.get("zs", 8), OPT.get("z0", 2)):
            a(f"""
            s_lshr_b32 s12, s7, {LG()}
            s_lshl_b32 s12, s12, 2
            s_add_u32 s12, s12, s3
            s_mul_i32 s12, s12, {(15 << (LG() - 2))*128}
            s_mul_i32 s13, s47, 122880
            s_add_u32 s12, s12, s13
            s_add_u32 s12, s12, {WS_WI + (61440 if s == OPT.get('zs', 8) else 0)}
            v_min_u32 v9, {(15 << (LG() - 2)) - 1}, v1
            v_lshl_add_u32 v9, v9, 7, s12
            global_load_dword v127, v9, s[42:43] sc1
            """)
            vm.issue("t", 1)
    stamp(a, 6)
    AY = lambda lt, nt: (44, 56, 20, 32)[lt] + 4*nt
    YH = lambda b, lt: 68 + 28*b + 4*lt
    YW = lambda b, nt: 84 + 28*b + 4*nt
    lg = Cnt(a, "lgkmcnt", 15)
    def yreads(st):
        b = st & 1; ho = 8192 * ((st - 10) % 5); wo_ = 12288 * ((st + 2) % K3_NS)
        h = [((st, "h", lt), f"ds_read_b64_tr_b16 {P(YH(b, lt) + 2*hf)}, v{12+lt} offset:{ho + 2048*hf}") for lt in range(4) for hf in range(2)]
        w = [((st, "w", nt), f"ds_read_b128 {Q(YW(b, nt))}, v16 offset:{wo_ + 1024*nt}") for nt in range(3)]
        return w + h
    vm.wait({10})
    for t, r in yreads(10): a(r); lg.issue(t)
    a("s_barrier")
    for st in range(10, 20):
        stamp(a, st - 9, "p3b")
        lg.wait({(st, "w", 2)})
        dma(st + 5)
        if st == OPT.get("qs", 14): a("s_barrier")
        if st == 14:
            for lt in range(4): a(f"v_add_u32 v{12+lt}, 40960, v{12+lt}")
        nxt = []
        if st < 19: vm.wait({st + 1}); nxt = yreads(st + 1)
        for lt in range(4):
            for nt in range(3):
                lg.wait({(st, "h", lt)})
                a(f"v_mfma_f32_16x16x32_bf16 {Q(AY(lt, nt))}, {Q(YW(st & 1, nt))}, {Q(YH(st & 1, lt))}, " + ("0" if st == 10 else Q(AY(lt, nt))))
                if nxt: t, r = nxt.pop(0); a(r); lg.issue(t)
    stamp(a, 7); stamp(a, 1, "cv2")
    rd_mr()
    a(f"""
    s_lshl_b32 s12, s3, 2
    s_add_u32 s12, s12, {LDS_FLAG + 32}
    v_mov_b32 v8, s12
    v_xor_b32 v9, 8, v8
    v_mov_b32 v10, 1
    s_mul_i32 s12, s10, -12288
    s_add_u32 s12, s12, 6144
    v_add_u32 v11, s12, v16
    v_mov_b32 v{GC}, {fhex(-2.302208198)}
    v_mov_b32 v{GC+1}, {fhex(-0.1029432397)}
    """)
    for lt in (2, 3):
        for nt in range(3): a(f"ds_write_b128 v16, {Q(AY(lt, nt))} offset:{12288*(lt - 2) + 1024*nt}")
    a("ds_write_b32 v8, v10")
    for nt in range(3): a(f"ds_read_b128 {Q(68 + 4*nt)}, v18 offset:{64*nt}")
    a("""
K3_YW:
    ds_read_b32 v10, v9
    s_waitcnt lgkmcnt(0)
    v_readfirstlane_b32 s12, v10
    s_cmp_eq_u32 s12, 0
    s_cbranch_scc1 K3_YW
    """)
    for lt in range(2):
        for nt in range(3): a(f"ds_read_b128 {Q(92 + 12*lt + 4*nt)}, v11 offset:{12288*lt + 1024*nt}")
    for mt in range(2):
        for nt in range(3):
            acc = AY(mt, nt); o = Z1R + 4*nt + 2*mt
            if (mt, nt) == (0, 0): a("s_waitcnt lgkmcnt(5)")
            if (mt, nt) == (0, 1): a("s_waitcnt lgkmcnt(0)")
            if 3*mt + nt == OPT.get("tb", 1): stamp(a, 2, "cv2"); a("s_barrier")
            for h in (0, 2): a(f"v_pk_add_f32 {P(acc+h)}, {P(acc+h)}, {P(92 + 12*mt + 4*nt + h)}")
            gelu_tile(acc, 68 + 4*nt, MR(mt), 116)
            a(f"v_cvt_pk_bf16_f32 v{o}, v{acc}, v{acc+1}")
            a(f"v_cvt_pk_bf16_f32 v{o+1}, v{acc+2}, v{acc+3}")
    stamp(a, 4, "cv2")
    if OPT.get("wot", 0):
        a(f"""
        s_lshl_b32 s12, s7, 2
        s_add_u32 s12, s12, s3
        s_mul_i32 s12, s12, {60*128}
        s_add_u32 s12, s12, {WS_WO}
        v_min_u32 v9, 59, v1
        v_lshl_add_u32 v9, v9, 7, s12
        global_load_dword v19, v9, s[42:43] sc1
        """)

def decode_z2(v):
    v = v.reshape(8, 32, 2, 6, 4, 16, 8)
    return v.transpose(1, 2, 4, 6, 0, 3, 5).reshape(2048, 768)
def decode_p(v):
    v = v.reshape(32, 4, 8, 3, 4, 16, 2, 4)
    v = v.transpose(0, 1, 5, 2, 3, 6, 4, 7).reshape(2048, 8, 6, 16)
    return v[:, :, [0, 1, 2, 4, 5, 3], :].reshape(2048, 768)

K4_NS = 4
SLOT = 24576
RED = 0
XCH = 94208
WOC = [98304, 118784, 139264, 73728, 0, 20480]
K5_H = 40960
LDS_TOTAL = 163840

def wo_setup(a):
    a(f"""
    s_mul_i32 s62, s3, 5120
    s_mul_i32 s12, s47, {24*5120}
    s_add_u32 s12, s12, s62
    v_lshl_add_u32 v4, v1, 4, s12
    """)
    srd(a, 64, 42, WS_WO, 768 * 1280)

def wo(a, c, parts=(0, 1)):
    for part in parts:
        a(f"s_add_u32 m0, s62, {WOC[c] + 3072*part}")
        a(f"s_mov_b32 s56, {20480*c + 3072*part}")
        for e in range(3 - part): a(f"buffer_load_dwordx4 v4, s[64:67], s56 offen offset:{1024*e} {SC} lds")

def gen_k4(a):
    vm = Cnt(a, "vmcnt", 63)
    ACC = lambda mt, p: 32 + 24*mt + 4*p
    FZ = lambda b, p: 80 + 24*b + 4*p
    a(f"""
PH4:
    s_lshr_b32 s60, s8, 2
    s_lshl_b32 s60, s60, 1
    s_add_u32 s60, s60, s11
    s_mul_i32 s12, s60, 6144
    v_lshl_add_u32 v12, v1, 4, s12
    v_add_u32 v13, {2*SLOT}, v12
    s_mul_i32 s13, s10, 3072
    s_add_u32 s61, s12, s13
    s_cmp_eq_u32 s60, 3
    s_cselect_b32 s12, 1, 0
    s_xor_b32 s12, s12, s10
    s_mul_i32 s12, s12, 3072
    s_mul_i32 s13, s60, {16*6144}
    s_add_u32 s12, s12, s13
    s_mul_i32 s13, s47, {32*12288}
    s_add_u32 s12, s12, s13
    v_lshl_add_u32 v6, v1, 4, s12
    s_lshl_b32 s12, s46, 7
    s_lshl_b32 s13, s10, 6
    s_add_u32 s12, s12, s13
    v_lshl_add_u32 v11, v2, 1, s12
    global_load_ushort v16, v11, s[36:37]
    global_load_ushort v18, v11, s[36:37] offset:32
    """)
    srd(a, 52, 42, WS_Z2, 2048 * 768 * 2)
    def dma(i):
        r = [f"s_add_u32 m0, s61, {SLOT*(i % K4_NS)}\ns_mov_b32 s57, {6144*i}\nbuffer_load_dwordx4 v6, s[52:55], s57 offen {SC} lds"]
        r += [f"buffer_load_dwordx4 v6, s[52:55], s57 offen offset:{1024*e} {SC} lds" for e in (1, 2)]
        return r if i < 16 else []
    def reads(i):
        so = SLOT * (i % K4_NS); hi = 0
        if so >= 2*SLOT: so -= 2*SLOT; hi = 1
        return [((i, p), f"ds_read_b128 {Q(FZ(i & 1, p))}, v{12+hi} offset:{so + 1024*p}") for p in range(6)]
    a("s_barrier")
    stamp(a, 8); stamp(a, 5, "cv2")
    for i in range(3):
        for r in dma(i): a(r)
    a(f"""
    s_mul_i32 s12, s10, {2*18432}
    s_add_u32 s12, s12, {RED}
    v_lshl_add_u32 v14, v1, 4, s12
    """)
    wo_setup(a)
    a("s_waitcnt vmcnt(6)\ns_barrier")
    for t, r in reads(0): a(r)
    for r in dma(3): a(r)
    a("s_cmp_ge_u32 s8, 4\ns_cbranch_scc1 K4_Y")
    def mainloop(first, sends):
        vm = Cnt(a, "vmcnt", 63)
        for i in (1, 2, 3): vm.issue(i, 3)
        for i in range(16):
            if i >= 6: stamp(a, i - 5, "p4a")
            a("s_waitcnt lgkmcnt(0)")
            vm.wait({i + 1})
            if i == 15 and first: a("s_setprio 2")
            a("s_barrier")
            nxt = reads(i + 1) if i < 15 else []
            def issue():
                for r in dma(i + 4): a(r); vm.issue(i + 4)
                if 12 <= i < 15: wo(a, i - 12, (0,) if first else (1,)); vm.issue("o", 3 if first else 2)
            if first: issue()
            k = 0
            for p in ((3, 4, 5, 0, 1, 2) if i == 15 else range(6)):
                for mt in range(2):
                    c = "0" if i == 0 else Q(ACC(mt, p))
                    a(f"v_mfma_f32_16x16x32_bf16 {Q(ACC(mt, p))}, {Q(FZ(i & 1, p))}, {Q(WF(mt, i))}, {c}")
                    if nxt: a(nxt.pop(0)[1])
                    k += 1
                    if i == 15 and k > 8 and not first: a(sends.pop(0))
            if not first: issue()
        stamp(a, 9); stamp(a, 1, 't')
        for r in sends: a(r)
    a(f"""
    s_mul_i32 s13, s11, 6144
    v_add_u32 v7, s13, v14
    s_mul_i32 s12, s47, 10240
    s_lshl_b32 s13, s3, 10
    s_add_u32 s12, s12, s13
    v_add_u32 v8, s12, v5
    """)
    mainloop(True, [f"ds_write_b128 v7, {Q(ACC(mt, p))} offset:{18432*(p // 3) + 1024*(3*mt + p % 3)}" for p in (3, 4, 5, 0, 1, 2) for mt in range(2)])
    a("s_waitcnt lgkmcnt(0)\ns_setprio 0\ns_barrier")
    wo(a, 3)
    a("s_barrier\ns_barrier")
    stamp(a, 3, 't')
    for c in (4, 5): wo(a, c)
    a(f"s_lshl_b32 s15, s3, 10\ns_add_u32 s15, s15, {K5_H}")
    for e in range(3):
        if e == 2: a("s_cmp_ge_u32 s3, 2\ns_cbranch_scc1 K5_NOH")
        a(f"s_add_u32 m0, s15, {4096*e}")
        a(f"s_mov_b32 s56, {4096*e}")
        a(f"buffer_load_dwordx4 v8, s[48:51], s56 offen {SC} lds")
    a("K5_NOH:")
    stamp(a, 4, 't')
    a("s_waitcnt vmcnt(17)\ns_barrier\ns_waitcnt vmcnt(0)")
    stamp(a, 10); stamp(a, 5, 't')
    a("s_barrier")
    stamp_out(a, "X")
    a("s_endpgm")
    a(f"""
K4_Y:
    s_xor_b32 s13, s11, 1
    s_mul_i32 s13, s13, 18432
    s_add_u32 s13, s13, {2*6144}
    v_add_u32 v7, s13, v14
    s_mul_i32 s13, s11, 18432
    v_add_u32 v9, s13, v14
    v_lshlrev_b32 v16, 16, v16
    v_lshlrev_b32 v18, 16, v18
    s_lshl_b32 s12, s46, 2
    s_lshl_b32 s13, s10, 1
    s_add_u32 s12, s12, s13
    s_mul_i32 s12, s12, 24576
    s_mul_i32 s13, s47, 3072
    s_add_u32 s12, s12, s13
    s_add_u32 s12, s12, {WS_P}
    v_lshl_add_u32 v11, v1, 4, s12
    s_lshl_b32 s13, s11, 11
    v_add_u32 v10, s13, v11
    v_add_u32 v8, 24576, v10
    s_mul_i32 s13, s11, 24576
    s_add_u32 s13, s13, 1024
    v_add_u32 v11, s13, v11
    s_lshl_b32 s12, s10, 11
    s_add_u32 s12, s12, {XCH}
    v_lshl_add_u32 v14, v1, 4, s12
    s_lshl_b32 s13, s11, 3
    v_add_u32 v15, s13, v14
    s_lshl_b32 s13, s11, 10
    v_add_u32 v14, s13, v14
    """)
    mainloop(False, [f"ds_write_b128 v7, {Q(ACC(mt, p))} offset:{1024*(3*mt + p % 3)}" for p in (3, 4, 5) for mt in range(2)])
    a("s_waitcnt lgkmcnt(0)\ns_barrier")
    stamp(a, 2, 't')
    order = ((2, 0), (2, 1), (0, 0), (1, 0), (0, 1), (1, 1))
    lg = Cnt(a, "lgkmcnt", 15)
    R = lambda k, j: 128 + 12*k + 4*j
    def rd(k):
        nt, mt = order[k]
        for j in range(3):
            a(f"ds_read_b128 {Q(R(k, j))}, v9 offset:{6144*j + 1024*(3*mt + nt)}"); lg.issue(k)
    for k in range(5): rd(k)
    T = 80; O = 88
    for k, (nt, mt) in enumerate(order):
        acc = ACC(mt, nt); z = Z1R + 4*nt + 2*mt; t = T + 4*(k & 1)
        for h in range(2):
            a(f"v_lshlrev_b32 v{t+2*h}, 16, v{z+h}")
            a(f"v_and_b32 v{t+2*h+1}, 0xffff0000, v{z+h}")
        lg.wait({k})
        if k == 0: rd(5)
        for h in (0, 2): a(f"v_pk_add_f32 {P(R(k,0)+h)}, {P(R(k,0)+h)}, {P(R(k,1)+h)}")
        for h in (0, 2): a(f"v_pk_add_f32 {P(acc+h)}, {P(acc+h)}, {P(R(k,2)+h)}")
        for h in (0, 2): a(f"v_pk_add_f32 {P(acc+h)}, {P(acc+h)}, {P(R(k,0)+h)}")
        for r in range(4): a(f"v_cvt_pk_bf16_f32 v{acc+r}, 0, v{acc+r}")
        for h in (0, 2): a(f"v_pk_add_f32 {P(acc+h)}, {P(acc+h)}, {P(16+2*mt)} op_sel:[0,0] op_sel_hi:[1,0]")
        for r in range(4): a(f"v_cvt_pk_bf16_f32 v{acc+r}, 0, v{acc+r}")
        for h in (0, 2): a(f"v_pk_mul_f32 {P(acc+h)}, {P(acc+h)}, {P(t+h)}")
        o = acc if nt == 2 else O + 4*mt + 2*nt
        a(f"v_cvt_pk_bf16_f32 v{o}, v{acc}, v{acc+1}")
        a(f"v_cvt_pk_bf16_f32 v{o+1}, v{acc+2}, v{acc+3}")
        if nt == 2: a(f"ds_write_b64 v15, {P(o)} offset:{1024*mt}"); lg.issue("x")
        if nt == 1: a(f"global_store_dwordx4 v{(10, 8)[mt]}, {Q(O + 4*mt)}, s[42:43] {SC}")
        if k == 1:
            lg.all(); a(f"s_barrier\nds_read_b128 {Q(O + 8)}, v14"); lg.issue("y")
        if k == 2:
            lg.all(); a(f"global_store_dwordx4 v11, {Q(O + 8)}, s[42:43] {SC}")
    stamp(a, 3, 't')
    a("s_barrier")
    a(f"""
    s_lshl_b32 s12, s46, 2
    s_add_u32 s12, s12, s3
    s_mul_i32 s12, s12, 24576
    v_lshl_add_u32 v12, v1, 4, s12
    v_lshlrev_b32 v14, 4, v1
    v_add_u32 v15, 98304, v14
    v_add_u32 v13, 49152, v14
    v_lshrrev_b32 v9, 2, v1
    v_and_b32 v11, 3, v2
    v_lshlrev_b32 v11, 3, v11
    v_lshrrev_b32 v10, 1, v9
    v_and_b32 v10, 3, v10
    v_xor_b32 v10, s3, v10
    v_lshl_add_u32 v16, v9, 7, v11
    v_lshl_add_u32 v16, v10, 5, v16
    v_add_u32 v16, {K5_H}, v16
    s_mul_i32 s12, s46, {64*1280}
    s_mul_i32 s13, s3, {16*1280}
    s_add_u32 s12, s12, s13
    s_mul_i32 s13, s47, 160
    s_add_u32 s12, s12, s13
    v_mul_u32_u24 v17, 1280, v2
    v_add_u32 v17, s12, v17
    v_and_b32 v9, 1, v3
    v_lshlrev_b32 v9, 5, v9
    v_lshrrev_b32 v10, 1, v3
    v_lshl_add_u32 v9, v10, 4, v9
    v_add_u32 v18, v17, v9
    v_lshl_add_u32 v17, v3, 3, v17
    s_lshl_b32 s12, s46, 7
    s_add_u32 s12, s12, {C_S3}
    """)
    srd(a, 52, 42, WS_P, 2048 * 768 * 2)
    a("s_waitcnt vmcnt(0)")
    stamp(a, 4, 't')
    arrive_last(a, "K4A", LDS_FLAG + 24, 12, 8)
    a("s_cmp_lg_u32 s15, 3\ns_cbranch_scc1 S3_OK\nv_mov_b32 v8, s12")
    poll(a, "S3", 8, 8, 9, sleep=1)
    a("s_barrier")
    stamp(a, 10); stamp(a, 5, 't')
    vm = Cnt(a, "vmcnt", 63)
    PF = lambda ks: 128 + 4*ks
    def pl(ks):
        if ks >= 24: return
        if ks % 4 == 0: a(f"s_mov_b32 s57, {1024*ks}")
        a(f"buffer_load_dwordx4 {Q(PF(ks))}, v12, s[52:55], s57 offen offset:{1024*(ks % 4)} {SC}")
        vm.issue(ks)
    NP = OPT.get("np", 12)
    for ks in range(NP): pl(ks)
    A5 = lambda nt: 20 + 4*nt
    FW = lambda b, nt: 40 + 20*b + 4*nt
    HF = 100
    def reads5(j):
        o = WOC[j // 4] + (j % 4) * 5120; hi = 0
        if o >= 98304: o -= 98304; hi = 1
        elif o >= 49152: o -= 49152; hi = -1
        return [((j, nt), f"ds_read_b128 {Q(FW(j % 3, nt))}, v{14+hi} offset:{o + 1024*nt}") for nt in range(5)]
    def mf(j):
        return [({(j, nt)}, f"v_mfma_f32_16x16x32_bf16 {Q(A5(nt))}, {Q(FW(j % 3, nt))}, {Q(PF(j))}, " + ("0" if j == 0 else Q(A5(nt)))) for nt in range(5)]
    def pre5(j):
        pl(NP + j)
        vm.wait({j})
        if j == 10: a("s_barrier")
        if j == 0: stamp(a, 7, 't')
    stamp(a, 6, 't')
    pipeline(a, 0, 24, reads5, mf, pre5, [("h", f"ds_read_b64_tr_b16 {P(HF + 2*nt)}, v16 offset:{2048*nt}") for nt in range(5)])
    stamp(a, 8, 't')
    a("s_waitcnt lgkmcnt(0)")
    O = 112
    for nt in range(5):
        acc = A5(nt); t = 40 + 4*nt
        for h in range(2):
            a(f"v_lshlrev_b32 v{t+2*h}, 16, v{HF+2*nt+h}")
            a(f"v_and_b32 v{t+2*h+1}, 0xffff0000, v{HF+2*nt+h}")
        if OPT.get("eps"):
            for r in range(4): a(f"v_mul_f32 v{acc+r}, {fhex(1 + OPT['eps'] / 1000)}, v{acc+r}")
        for r in range(4): a(f"v_cvt_pk_bf16_f32 v{acc+r}, 0, v{acc+r}")
        for h in (0, 2): a(f"v_pk_add_f32 {P(acc+h)}, {P(acc+h)}, {P(t+h)}")
        a(f"v_cvt_pk_bf16_f32 v{O+2*nt}, v{acc}, v{acc+1}")
        a(f"v_cvt_pk_bf16_f32 v{O+2*nt+1}, v{acc+2}, v{acc+3}")
        if nt & 1:
            o = O + 2*nt - 2
            a(f"v_permlane16_swap_b32 v{o}, v{o+2}\nv_permlane16_swap_b32 v{o+1}, v{o+3}")
            a(f"global_store_dwordx4 v18, {Q(o)}, s[44:45] offset:{32*(nt-1)}")
    a(f"global_store_dwordx2 v17, {P(O+8)}, s[44:45] offset:128")
    padto(a, "pe", "E")
    stamp_out(a, "Y")
    a("K_END:\ns_endpgm")
```

```python
from asmgen import Asm
from layout import *

LOG2E = "0x3fb8aa3b"
NLOG2E = "0xbfb8aa3b"
INV2PI = "0x3e22f983"

CP = 2752
TB = (1088, 1176, 1264)
KW_STRIDE = 4 * CP
U0 = 4 * KW_STRIDE; U_STRIDE = 4608
X0 = U0 + 4 * U_STRIDE
BS0 = X0 + 16384; BS_STRIDE = 4352
KC0 = BS0 + 4 * BS_STRIDE; KC_STRIDE = 3200
AS0 = KC0 + 4 * KC_STRIDE; AS_STRIDE = 8448
WST = 163328 - 65536
WS2 = 16384
assert BS0 <= WST and AS0 + 4 * AS_STRIDE <= LDS_FLAG and WST % 128 == 0 and KC0 % 16 == 0 and KC0 - 32768 < 65536
FLAG0 = LDS_FLAG

def cmul(a, sets):
    for d, x, y, t in sets:
        a(f"v_pk_mul_f32 {P(t)}, {P(x)}, {P(y)} op_sel:[0,0] op_sel_hi:[0,1]")
    for d, x, y, t in sets:
        a(f"v_pk_fma_f32 {P(d)}, {P(x)}, {P(y)}, {P(t)} op_sel:[1,1,0] op_sel_hi:[1,0,1] neg_lo:[1,0,0]")

def kgen(a, ns, erow, vwr, vrd, SB, PKS, ACC, AF, BF, unpack, maxsrc, mid=None, fill=None):
    AR, Z1, W, ZZ, CUR, R2, R4, R6, PW, T = [lambda s, k=k: SB[s] + 2 * k for k in range(10)]
    S = range(ns); nks = 4 * ns
    unpack(AR, CUR)
    for s in S: a(f"v_mul_f32 v{AR(s)}, {LOG2E}, v{AR(s)}")
    for s in S: a(f"v_exp_f32 v{AR(s)}, v{AR(s)}")
    m = maxsrc(CUR)
    a(f"v_max3_f32 v13, abs(v{m[0]}), abs(v{m[1]}), abs(v{m[2]})")
    a(f"v_max3_f32 v14, abs(v{m[3]}), abs(v{m[4]}), abs(v{m[5]})")
    a("v_max_u32 v13, v13, v14")
    for s in S: a(f"v_cvt_pk_bf16_f32 v{AR(s)}, 0, v{AR(s)}")
    a("v_max_u32_dpp v13, v13, v13 row_ror:8 row_mask:0xf bank_mask:0xf")
    for s in S: a(f"v_pk_mul_f32 {P(AR(s))}, {P(AR(s))}, v[12:13] op_sel:[0,0] op_sel_hi:[1,0]")
    a("v_max_u32_dpp v13, v13, v13 row_ror:4 row_mask:0xf bank_mask:0xf")
    for s in S: a(f"v_mul_f32 v{AR(s)}, {NLOG2E}, v{AR(s)}")
    a("v_max_u32_dpp v13, v13, v13 row_ror:2 row_mask:0xf bank_mask:0xf")
    for s in S: a(f"v_mul_f32 v{AR(s)+1}, {INV2PI}, v{AR(s)+1}")
    a("v_max_u32_dpp v13, v13, v13 row_ror:1 row_mask:0xf bank_mask:0xf")
    def anchor(dst, p, conj=False):
        for s in S:
            if p == 1:
                a(f"v_exp_f32 v{PW(s)}, v{AR(s)}")
                a(f"v_fract_f32 v{T(s)+1}, v{AR(s)+1}")
            else:
                a(f"v_mul_f32 v{T(s)}, {fhex(p)}, v{AR(s)}")
                a(f"v_mul_f32 v{T(s)+1}, {fhex(p)}, v{AR(s)+1}")
        if p != 1:
            for s in S:
                a(f"v_exp_f32 v{PW(s)}, v{T(s)}")
                a(f"v_fract_f32 v{T(s)+1}, v{T(s)+1}")
        for s in S:
            a(f"v_cos_f32 v{dst(s)}, v{T(s)+1}")
            a(f"v_sin_f32 v{dst(s)+1}, v{T(s)+1}")
        for s in S:
            a(f"v_pk_mul_f32 {P(dst(s))}, {P(dst(s))}, {P(PW(s))} op_sel:[0,0] op_sel_hi:[1,0]" + (" neg_hi:[1,0]" if conj else ""))
    anchor(Z1, 1)
    a("""
    v_readlane_b32 s48, v13, 0
    v_readlane_b32 s49, v13, 16
    v_readlane_b32 s50, v13, 32
    v_readlane_b32 s51, v13, 48
    """)
    anchor(ZZ, 256)
    a("""
    s_max_u32 s48, s48, s49
    s_max_u32 s50, s50, s51
    s_max_u32 s48, s48, s50
    s_and_b32 s48, s48, 0x7f800000
    s_max_u32 s48, s48, 0x01000000
    s_min_u32 s48, s48, 0x7e000000
    s_sub_u32 s49, 0x7f000000, s48
    """)
    anchor(W, 8, conj=True)
    for s in S:
        a(f"v_mul_f32 v{CUR(s)}, s49, v{CUR(s)}")
        a(f"v_mul_f32 v{CUR(s)+1}, s49, -v{CUR(s)+1}")
    cnt = [0]
    def row(slot, reg):
        pk = PKS[cnt[0] & 1]; cnt[0] += 1
        for s in S:
            if reg is None: a(f"v_mov_b32 v{pk+s}, 0x3c00")
            else: a(f"v_cvt_pk_f16_f32 v{pk+s}, v{reg(s)}, v{reg(s)+1}")
        if ns == 2: a(f"ds_write_b64 {vwr}, {P(pk)} offset:{slot*erow}")
        else: a(f"ds_write_addtid_b32 v{pk} offset:{slot*erow + 32768}")
        if fill and cnt[0] % OPT.get('gp', 12) == 1: a(fill.pop(0))
    def cm(d, x, y): cmul(a, [(d(s), x(s), y(s), T(s)) for s in S])
    TMP = AR
    row(0, None); row(1, Z1)
    cm(R2, Z1, Z1); row(2, R2)
    cm(TMP, R2, Z1); row(3, TMP)
    cm(R4, R2, R2); row(4, R4)
    cm(TMP, R4, Z1); row(5, TMP)
    cm(R6, R4, R2); row(6, R6)
    cm(TMP, R6, Z1); row(7, TMP)
    row(8, ZZ)
    cm(TMP, ZZ, R2); row(9, TMP)
    cm(TMP, ZZ, R4); row(10, TMP)
    cm(TMP, ZZ, R6); row(11, TMP)
    cm(PW, ZZ, ZZ); row(12, PW)
    cm(TMP, PW, R4); row(13, TMP)
    cm(PW, PW, ZZ); row(14, PW)
    cm(TMP, PW, R4); row(15, TMP)
    for ks in range(nks): a(f"ds_read_b128 {Q(AF + 4*ks)}, {vrd} offset:{64*ks}")
    for i in range(5):
        cm(PW, PW, ZZ); row(i, PW)
    for ks in range(nks): a(f"ds_read_b128 {Q(AF + 4*nks + 4*ks)}, {vrd} offset:{64*ks}")
    for j in range(16):
        row(j, CUR); cm(CUR, CUR, W)
    for ks in range(nks): a(f"ds_read_b128 {Q(BF + 4*ks)}, {vrd} offset:{64*ks}")
    def kmfma(nt, ks):
        for mt in range(2):
            acc = ACC + 8 * nt + 4 * mt
            c = "0" if ks == 0 else Q(acc)
            a(f"v_mfma_f32_16x16x32_f16 {Q(acc)}, {Q(AF + 4*nks*mt + 4*ks)}, {Q(BF + 4*ks)}, {c}")
    for j in range(16):
        row(j, CUR)
        if j == 3: a("s_waitcnt lgkmcnt(4)")
        if 3 <= j < 3 + nks: kmfma(0, j - 3)
        if j < 15: cm(CUR, CUR, W)
    for ks in range(nks): a(f"ds_read_b128 {Q(BF + 4*ks)}, {vrd} offset:{64*ks}")
    extra = mid() if mid else 0
    for ks in range(nks):
        a(f"s_waitcnt lgkmcnt({nks - 1 - ks + extra})")
        kmfma(1, ks)

def dt_code(a):
    a(f"""
    s_waitcnt lgkmcnt(0)
    s_lshl_b32 s14, s74, 16
    s_and_b32 s13, s74, 0xffff0000
    s_bitcmp1_b32 s10, 0
    s_cselect_b32 s13, s13, s14
    v_mov_b32 v12, {LOG2E}
    v_mul_f32 v12, s13, v12
    v_exp_f32 v12, v12
    v_cvt_pk_bf16_f32 v12, 0, v12
    """)

def wait_init(a, tag, vtmp):
    a(f"v_mov_b32 v{vtmp}, 0")
    poll(a, tag + "I", vtmp, 1, vtmp + 1, base="s[40:41]", sleep=4)

def slab(a, lds_off, FR, ct0, mul, per, nks, dsrd, stores=True):
    for c in range(4):
        for h in range(2):
            a(f"ds_read_b64_tr_b16 {P(FR + 4*c + 2*h)}, v8 offset:{lds_off + 32*c + 2048*h}")
    for c in range(4):
        a(f"""
        s_add_u32 s53, s{ct0}, {c}
        s_mul_i32 s54, s53, {mul}
        s_lshr_b32 s54, s54, 8
        s_mul_i32 s55, s54, {nks - 1}
        s_add_u32 s55, s55, s52
        s_mul_i32 s55, s55, {per}
        s_add_u32 s55, s55, s53
        s_lshl_b32 s55, s55, 10
        s_waitcnt lgkmcnt({6 - 2*c})
        buffer_store_dwordx4 {Q(FR + 4*c)}, v9, s[{dsrd}:{dsrd+3}], s55 offen {SC}
        """)

def slab_addr(a, stride):
    a(f"""
    v_lshrrev_b32 v7, 3, v1
    v_mul_u32_u24 v7, {stride}, v7
    v_and_b32 v8, 7, v1
    v_lshl_add_u32 v7, v8, 4, v7
    v_lshrrev_b32 v8, 2, v1
    v_lshlrev_b32 v8, 7, v8
    v_and_b32 v9, 3, v1
    v_lshl_add_u32 v8, v9, 3, v8
    s_mul_i32 s56, s8, 12288
    v_add_u32 v8, s56, v8
    v_lshlrev_b32 v9, 4, v1
    """)

def gen_k1(a):
    NG0 = OPT.get('ng0', 3)
    a(f"""
    s_lshl_b32 s9, s8, 2
    s_add_u32 s9, s9, {FLAG0}
    v_mov_b32 v2, s9
    v_mov_b32 v3, 0
    ds_write_b32 v2, v3
    ds_write_b32 v2, v3 offset:32
    s_sub_u32 s9, s7, 8
    s_cmp_ge_u32 s9, 4
    s_cbranch_scc1 K1_NOPF
    s_cmp_eq_u32 s2, 95
    s_cbranch_scc1 K1_INIT
    s_getpc_b64 s[10:11]
K1_PC:
    v_lshlrev_b32 v2, 7, v0
    v_min_u32 v2, CODE_END-K1_PC-4, v2
    global_load_dword v255, v2, s[10:11]
    s_branch K1_NOPF
K1_INIT:
    v_lshlrev_b32 v2, 4, v0
    v_add_u32 v2, {WS_STAT1}, v2
    v_mov_b32 v4, 0
    v_mov_b32 v5, 0
    v_mov_b32 v6, 0
    v_mov_b32 v7, 0
    s_waitcnt lgkmcnt(0)
    global_store_dwordx4 v2, v[4:7], s[42:43] sc1
    v_add_u32 v2, 0x2000, v2
    global_store_dwordx4 v2, v[4:7], s[42:43] sc1
    v_add_u32 v2, 0x2000, v2
    global_store_dwordx4 v2, v[4:7], s[42:43] sc1
    v_add_u32 v2, 0x2000, v2
    global_store_dwordx4 v2, v[4:7], s[42:43] sc1
    v_add_u32 v2, 0x2000, v2
    global_store_dwordx4 v2, v[4:7], s[42:43] sc1
    s_waitcnt vmcnt(0)
    s_barrier
    s_cmp_lg_u32 s8, 0
    s_cbranch_scc1 K1_NOPF
    v_mov_b32 v5, 1
    s_mov_b64 exec, 1
    global_store_dword v4, v5, s[40:41] sc1
    s_mov_b64 exec, -1
K1_NOPF:
    s_waitcnt lgkmcnt(0)
    s_cmp_lt_u32 s7, 12
    s_cbranch_scc1 K1_HELPER
    s_mul_i32 s9, s6, 20
    s_add_u32 s9, s9, s7
    s_sub_u32 s9, s9, 12
    s_lshl_b32 s10, s9, 2
    s_add_u32 s10, s10, s3
    s_mul_i32 s11, s10, 384
    v_lshl_add_u32 v14, v1, 2, s11
    s_add_u32 s11, s11, 256
    v_lshl_add_u32 v15, v1, 1, s11
    s_lshl_b32 s12, s10, 1
    s_and_b32 s12, s12, -4
    s_load_dword s74, s[26:27], s12
    s_load_dword s58, s[28:29], s12
    global_load_dword v20, v14, s[22:23] {OPT.get('nt','nt')}
    global_load_ushort v21, v15, s[22:23] {OPT.get('nt','nt')}
    global_load_dword v22, v14, s[24:25] {OPT.get('nt','nt')}
    global_load_ushort v23, v15, s[24:25] {OPT.get('nt','nt')}
    s_mul_i32 s59, s3, {BS_STRIDE}
    s_add_u32 s59, s59, {BS0}
    v_and_b32 v10, 15, v1
    v_lshrrev_b32 v11, 4, v1
    s_cmp_lt_u32 s8, 4
    s_cbranch_scc1 K1_AW
    """)
    XG = 160
    a(f"""
    global_load_ushort v16, v15, s[18:19] {OPT.get('nt','nt')}
    global_load_ushort v18, v15, s[20:21] {OPT.get('nt','nt')}
    s_barrier
    v_subrev_u32 v2, 256, v0
    v_mul_u32_u24 v3, 10240, v2
    s_lshl_b32 s11, s9, 3
    v_add_u32 v3, s11, v3
    v_add_u32 v5, 5120, v3
    """)
    gath = [f"global_load_dwordx2 {P(XG + 2*i)}, v{(3, 5)[i >> 2]}, s[16:17] offset:{1280*(i & 3)}" for i in range(8)]
    NGE = OPT.get("nge", 1)
    for i in range(NGE): a(gath.pop(0))
    a("s_branch K1_BW\nK1_AW:")
    a(f"""
    global_load_dword v16, v14, s[18:19] {OPT.get('nt','nt')}
    global_load_dword v18, v14, s[20:21] {OPT.get('nt','nt')}
    s_sub_u32 s48, s7, 12
    s_lshl_b32 s48, s48, 7
    v_lshrrev_b32 v2, 1, v0
    v_add_u32 v2, s48, v2
    v_min_u32 v2, 0x7ff, v2
    v_mul_u32_u24 v2, 1280, v2
    v_and_b32 v3, 1, v0
    v_lshl_add_u32 v2, v3, 7, v2
    s_mul_i32 s48, s6, 160
    s_and_b32 s48, s48, -128
    v_add_u32 v2, s48, v2
    s_barrier
    global_load_dword v255, v2, s[16:17] {OPT.get('ntx','')}
    s_mul_i32 s61, s3, {KC_STRIDE}
    s_add_u32 s61, s61, {KC0 + 96}
    s_mul_i32 s62, s3, {U_STRIDE}
    s_add_u32 s62, s62, {U0}
    s_lshl_b32 s63, s3, 12
    s_add_u32 s63, s63, {X0}
    s_mul_i32 s60, s3, {AS_STRIDE}
    s_add_u32 s60, s60, {AS0}
    v_lshl_add_u32 v2, v1, 3, s60
    v_mul_u32_u24 v4, 528, v10
    v_lshl_add_u32 v4, v11, 4, v4
    v_add_u32 v4, s60, v4
    s_mul_i32 s60, s3, {KW_STRIDE}
    v_mov_b32 v12, 0
    v_mov_b32 v13, 0
    v_mov_b32 v14, 0
    v_mov_b32 v15, 0
    v_lshl_add_u32 v5, v1, 4, s60
    ds_write_b128 v5, v[12:15]
    ds_write_b128 v5, v[12:15] offset:{2*TB[0]}
    ds_write_b128 v5, v[12:15] offset:{2*TB[0] + CP}
    ds_write_b128 v5, v[12:15] offset:{2*TB[0] + 2*CP}
    ds_write_b128 v5, v[12:15] offset:{2*TB[0] + 3*CP}
    v_lshl_add_u32 v5, v1, 3, s62
    ds_write_b64 v5, v[12:13]
    s_sub_u32 s48, s61, 96
    v_lshl_add_u32 v5, v1, 2, s48
    ds_write_b32 v5, v12
    v_max_u32 v12, 1, v11
    v_sub_u32 v12, 6, v12
    v_lshlrev_b32 v5, v12, v10
    v_lshlrev_b32 v13, 4, v11
    v_lshlrev_b32 v6, 9, v11
    v_cmp_gt_u32 vcc, 2, v11
    v_cndmask_b32 v13, v6, v13, vcc
    v_add3_u32 v5, v5, v13, s61
    v_mov_b32 v13, 0x100
    v_cmp_eq_u32 vcc, 3, v11
    v_cndmask_b32 v13, 8, v13, vcc
    v_lshlrev_b32 v12, v12, 16
    v_add_u32 v7, v5, v12
    v_add_u32 v8, v7, v13
    v_lshl_add_u32 v9, v10, 2, v6
    v_add_u32 v6, v5, v13
    s_add_u32 s48, s61, 2048
    v_add_u32 v9, s48, v9
    """)
    VA, VB, VX, VO, VT, VU, BAND = 200, 201, 202, 203, 224, 225, 212
    a(f"""
    v_add_u32 v12, 1, v10
    v_and_b32 v12, 3, v12
    v_mul_u32_u24 v13, {CP + 2}, v12
    v_lshlrev_b32 v12, 3, v11
    v_sub_u32 v12, v12, v10
    v_lshl_add_u32 v13, v12, 1, v13
    s_add_u32 s48, s60, 30
    v_add_u32 v{VA}, s48, v13
    v_lshlrev_b32 v13, 3, v11
    v_sub_u32 v{VT}, v{VA}, v13
    v_sub_u32 v199, 48, v12
    v_lshlrev_b32 v12, 5, v10
    v_lshl_add_u32 v12, v11, 4, v12
    s_add_u32 s48, s62, 32
    v_add_u32 v{VB}, s48, v12
    v_lshlrev_b32 v12, 2, v10
    v_add_u32 v12, v12, v11
    v_lshl_add_u32 v{VX}, v12, 3, s63
    s_add_u32 s48, s62, 512
    v_lshl_add_u32 v{VU}, v12, 3, s48
    v_and_b32 v12, 1, v11
    v_lshrrev_b32 v13, 2, v10
    v_lshl_add_u32 v12, v12, 2, v13
    v_mul_u32_u24 v12, 81920, v12
    v_and_b32 v13, 3, v10
    v_lshl_add_u32 v12, v13, 5, v12
    v_lshrrev_b32 v13, 1, v11
    v_lshl_add_u32 v12, v13, 4, v12
    s_lshl_b32 s48, s10, 7
    v_add_u32 v{VO}, s48, v12
    s_sub_u32 s48, s61, 96
    v_lshl_add_u32 v204, v1, 5, s48
    v_cmp_eq_u32 vcc, 34, v1
    s_add_u32 s48, s61, 1024
    v_lshl_add_u32 v206, v1, 3, s48
    v_cndmask_b32 v205, 0, 4, vcc
    v_sub_u32 v205, v204, v205
    v_cmp_eq_u32 vcc, 63, v1
    v_lshlrev_b32 v208, 4, v1
    v_add_u32 v211, s59, v208
    s_add_u32 s48, s60, 1072
    v_cndmask_b32 v207, 0, 4, vcc
    v_sub_u32 v207, v206, v207
    v_sub_u32 v208, s48, v208
    v_lshlrev_b32 v209, 3, v1
    s_add_u32 s48, s60, 1592
    v_sub_u32 v209, s48, v209
    v_lshlrev_b32 v210, 1, v1
    s_add_u32 s48, s60, 126
    v_sub_u32 v210, s48, v210
    s_lshl_b32 s48, s3, 2
    s_add_u32 s48, s48, {FLAG0}
    v_mov_b32 v3, s48
    """)
    def band():
        a("v_mov_b32 v29, 0\nv_mov_b32 v30, 0x3c00")
        for w, (lo, hi) in enumerate(((0, 4), (5, 11), (12, 15))):
            a(f"v_subrev_u32 v25, {hi}, v199\nv_mov_b32 v28, {(1 << (hi - lo + 1)) - 1}\nv_lshlrev_b64 v[26:27], v25, v[28:29]")
            for d in range(4):
                a(f"v_bfe_u32 v25, v27, {2*d}, 2\nv_lshl_or_b32 v25, v25, 15, v25\nv_and_b32 v25, 0x10001, v25\nv_mul_u32_u24 v{BAND + 4*w + d}, v25, v30")
    band()
    stamp(a, 1, "kg")
    dt_code(a)
    a("s_lshl_b32 s57, s58, 16\ns_and_b32 s58, s58, 0xffff0000\ns_bitcmp1_b32 s10, 0\ns_cselect_b32 s58, s58, s57")
    a("s_waitcnt vmcnt(1)")
    stamp(a, 1); stamp(a, 2, "kg")
    def unpackA(AR, CUR):
        for dst, raw in ((AR, 16), (lambda s: AR(s) + 1, 18), (CUR, 20), (lambda s: CUR(s) + 1, 22)):
            a(f"v_lshlrev_b32 v{dst(0)}, 16, v{raw}")
            a(f"v_and_b32 v{dst(1)}, 0xffff0000, v{raw}")
        a("v_lshlrev_b32 v21, 16, v21\nv_lshlrev_b32 v23, 16, v23")
    ACC = 68
    def midA():
        a("ds_read_b32 v17, v3")
        return 1
    if OPT.get("krep"): a("s_mov_b32 s73, 0\nKA_REP:")
    kgen(a, 2, 528, "v2", "v4", [24, 44], [64, 66], ACC, 84, 148, unpackA,
         lambda CUR: [CUR(0), CUR(0)+1, CUR(1), CUR(1)+1, 21, 23], midA)
    if OPT.get("krep"):
        a("s_cmp_lg_u32 s73, 0\ns_cbranch_scc1 KA_DN"); stamp(a, 8); a("s_mov_b32 s73, 1\ns_nop 7\ns_barrier\ns_branch KA_REP\nKA_DN:"); stamp(a, 9)
    stamp(a, 3, "kg")
    a(f"""
    v_mul_f32 v15, s48, v12
    v_add_f32 v15, v15, v15
    s_waitcnt lgkmcnt(0)
K1_PW:
    v_readfirstlane_b32 s50, v17
    s_cmp_lg_u32 s50, 0
    s_cbranch_scc1 K1_PR
    ds_read_b32 v17, v3
    s_waitcnt lgkmcnt(0)
    s_branch K1_PW
K1_PR:
    """)
    stamp(a, 4, "kg")
    for k in range(4): a(f"ds_read_b128 {Q(180 + 4*k)}, v211 offset:{1024*k}")
    for k in range(4):
        a(f"s_waitcnt lgkmcnt({3-k})")
        for h in (0, 2): a(f"v_pk_add_f32 {P(ACC + 4*k + h)}, {P(ACC + 4*k + h)}, {P(180 + 4*k + h)}")
    a(f"""
    ds_write_b64 v5, {P(ACC)}
    ds_write_b64 v6, {P(ACC+2)}
    ds_write_b64 v7, {P(ACC+8)}
    ds_write_b64 v8, {P(ACC+10)}
    s_mov_b32 exec_hi, 0
    ds_write2_b32 v9, v{ACC+4}, v{ACC+5} offset0:0 offset1:32
    ds_write2_b32 v9, v{ACC+6}, v{ACC+7} offset0:64 offset1:96
    ds_write2_b32 v9, v{ACC+12}, v{ACC+13} offset0:16 offset1:48
    ds_write2_b32 v9, v{ACC+14}, v{ACC+15} offset0:80 offset1:112
    s_mov_b64 exec, -1
    ds_read_b64 v[44:45], v206 offset:512
    ds_read_b32 v46, v206 offset:520
    ds_read_b64 v[48:49], v206
    ds_read_b32 v50, v206 offset:8
    ds_read_b32 v51, v207 offset:12
    ds_read_b128 v[24:27], v204
    ds_read_b128 v[28:31], v204 offset:16
    ds_read_b32 v32, v204 offset:32
    ds_read2_b32 v[34:35], v205 offset0:9 offset1:10
    ds_read_b64 v[40:41], v206 offset:1024
    ds_read_b32 v42, v206 offset:1032
    """)
    def emit_region(e, n, addr, off0, regs):
        cur = [None] * (n // 2)
        for sg in range(4):
            for d in range(n // 2):
                want = (e[sg + n - 1 - 2 * d], e[sg + n - 2 - 2 * d])
                if cur[d] != want:
                    a(f"v_cvt_pk_f16_f32 v{regs + d}, v{want[0]}, v{want[1]}")
                    cur[d] = want
            if n == 4:
                a(f"ds_write_b64 {addr}, {P(regs)} offset:{off0 + CP*sg}")
            else:
                for h in range(n // 8):
                    a(f"ds_write_b128 {addr}, {Q(regs + 4*h)} offset:{off0 + CP*sg + 16*h}")
            if n <= 8 and len(set(e)) > 4:
                regs += n // 2; cur = [None] * (n // 2)
    a("s_waitcnt lgkmcnt(9)\nv_mov_b32 v47, v46\nv_writelane_b32 v47, 0, 63")
    emit_region([44]*3 + [45]*3 + [46]*2 + [47]*3, 8, "v208", 0, 92)
    a("s_waitcnt lgkmcnt(10)")
    emit_region([48, 48, 49, 50, 50, 50, 51], 4, "v209", 0, 96)
    a("s_waitcnt lgkmcnt(8)\ns_mov_b32 exec_hi, 7")
    emit_region([24, 25, 26, 27, 28, 29, 30, 31, 32, 34, 35], 8, "v208", 1072, 100)
    a("s_mov_b64 exec, -1")
    a("v_cvt_pk_f16_f32 v226, v40, v41\nv_cvt_pk_f16_f32 v227, v42, v42")
    tw = [("W", f"ds_write_b16{('', '_d16_hi', '')[w]} v210, v{(226, 226, 227)[w]} offset:{(CP + 2)*sg + 2*TB[w]}") for w in range(3) for sg in range(4)]
    stamp(a, 2); stamp(a, 5, "kg")
    CA = 24; XR = 88; SR = 152; HH = 228; HB = 152
    AA = lambda q, s: (56 + 16*(s & 1) + 4*q) if q < 4 else 252
    BB = lambda d, s: 88 + 32*(s & 1) + 4*d
    lg = Cnt(a, "lgkmcnt", 15)
    def rdA(q, s, h): return (("A", q, s), f"ds_read_b64 {P(AA(q, s) + 2*h)}, v{VA} offset:{64*(32 - 8*q - s) + 8*h}")
    def rdB(d, s): return (("B", d, s), f"ds_read_b128 {Q(BB(d, s))}, v{VB} offset:{512*d + 64*(7 - s)}")
    UD = lambda c: 152 + 4*c
    XF32 = lambda c: (184 + 4*c) if c < 4 else (228 + 4*(c - 4))
    def epi_pre(c):
        u, x = UD(c), XF32(c)
        r = [(("U", c), f"ds_read_b64 {P(u + 2)}, v{VU} offset:{512*c}"), (("X", c), f"ds_read_b64 {P(x + 2)}, v{VX} offset:{512*c}")]
        v = [("U", f"v_fma_mix_f32 v{u}, v{u+2}, s58, 0 op_sel:[0,0,0] op_sel_hi:[1,0,0]\nv_fma_mix_f32 v{u+1}, v{u+2}, s58, 0 op_sel:[1,0,0] op_sel_hi:[1,0,0]"),
             ("U", f"v_fma_mix_f32 v{u+2}, v{u+3}, s58, 0 op_sel:[0,0,0] op_sel_hi:[1,0,0]\nv_fma_mix_f32 v{u+3}, v{u+3}, s58, 0 op_sel:[1,0,0] op_sel_hi:[1,0,0]"),
             ("X", f"v_lshlrev_b32 v{x}, 16, v{x+2}\nv_and_b32 v{x+1}, 0xffff0000, v{x+2}"),
             ("X", f"v_lshlrev_b32 v{x+2}, 16, v{x+3}\nv_and_b32 v{x+3}, 0xffff0000, v{x+3}"),
             ("U", f"v_cvt_pk_bf16_f32 v{u}, 0, v{u}\nv_cvt_pk_bf16_f32 v{u+1}, 0, v{u+1}"),
             ("U", f"v_cvt_pk_bf16_f32 v{u+2}, 0, v{u+2}\nv_cvt_pk_bf16_f32 v{u+3}, 0, v{u+3}")]
        return r, [(None, t, (k, c)) for k, t in v]
    def rdT(w, e): return (("T", w), f"ds_read_b64 {P(HB + 10*w + 2*(3 - e))}, v{VT} offset:{2*TB[w] + 96 - 32*e}")
    def emit(r):
        if len(r) > 2: lg.wait({r[2]})
        a(r[1])
        if r[0] is not None: lg.issue(r[0])
    a("s_waitcnt vmcnt(0)\ns_setprio " + str(OPT.get("cprio", 2)))
    for q in range(4, -1, -1):
        emit(rdA(q, 0, 0)); emit(rdA(q, 0, 1))
    padto(a, "p0", "Z")
    a("s_barrier")
    stamp(a, 3)
    for d in range(4): emit(rdB(d, 0))
    fifo = [rdB(d, 0) for d in range(4, 8)] + tw
    touched = set()
    def mm(c, ra, rb, tags):
        assert not any(t[0] in tags for t in fifo), tags
        lg.wait(tags)
        cin = Q(c) if c in touched else "0"
        touched.add(c)
        a(f"v_mfma_f32_16x16x32_f16 {Q(c)}, {Q(ra)}, {Q(rb)}, {cin}")
        if fifo: emit(fifo.pop(0))
    for x in range(4):
        for w in range(3): mm(SR + 16*w + 4*x, BB(x, 0), BAND + 4*w, {("B", x, 0)})
    for d in range(4): mm(CA + 4*(4 + d), AA(4, 0), BB(d, 0), {("A", 4, 0), ("B", d, 0)})
    for s in range(8):
        stamp(a, s + 1, "bs")
        if s < 7:
            n = s + 1
            fifo[0:0] = [rdA(3, n, 0), rdA(3, n, 1)] + [rdB(d, n) for d in range(5)] + [rdA(2, n, 0), rdA(2, n, 1), rdB(5, n), rdA(1, n, 0), rdA(1, n, 1), rdB(6, n), rdA(0, n, 0), rdA(0, n, 1), rdB(7, n)]
        if s == 0:
            fifo += [(None, f"v_cvt_pk_f16_f32 v{HH + 8*w + 2*x}, v{SR + 16*w + 4*x}, v{SR + 16*w + 4*x + 1}\nv_cvt_pk_f16_f32 v{HH + 8*w + 2*x + 1}, v{SR + 16*w + 4*x + 2}, v{SR + 16*w + 4*x + 3}") for w in range(3) for x in range(4)]
            fifo += [rdT(w, e) for w in range(3) for e in range(4)] + [(None, f"v_mov_b32 v{HB + 10*w + 8}, 0\nv_mov_b32 v{HB + 10*w + 9}, 0") for w in range(3)]
        if s == 4:
            pr = [epi_pre(c) for c in range(8)]
            for c in range(8): fifo += pr[c][0]
            for c in range(8): fifo += pr[c][1]
        for q in range(3, -1, -1):
            for d in range(0, 8 - q):
                mm(CA + 4*(q + d), AA(q, s), BB(d, s), {("A", q, s), ("B", d, s)})
        if s == 3:
            assert not fifo
            for w in range(3):
                for cc in range(4):
                    for kb in range(cc // 2 + 1):
                        e = cc - 2*kb
                        mm(CA + 4*(4 + cc), HH + 8*w + 4*kb, HB + 10*w + 2*(3 - e), {("T", w)})
    stamp(a, 1, "cv"); stamp(a, 9, "bs")
    a("v_mov_b32 v14, v15")
    while fifo: emit(fifo.pop(0))
    for c in range(8):
        acc = CA + 4*c
        a(f"v_pk_mul_f32 {P(acc)}, {P(acc)}, v[14:15]")
        a(f"v_pk_mul_f32 {P(acc+2)}, {P(acc+2)}, v[14:15]")
        for r in range(4): a(f"v_cvt_pk_bf16_f32 v{acc+r}, 0, v{acc+r}")
        a(f"v_pk_add_f32 {P(acc)}, {P(acc)}, {P(UD(c))}")
        a(f"v_pk_add_f32 {P(acc+2)}, {P(acc+2)}, {P(UD(c)+2)}")
        for r in range(4): a(f"v_cvt_pk_bf16_f32 v{acc+r}, 0, v{acc+r}")
        a(f"v_pk_add_f32 {P(acc)}, {P(acc)}, {P(XF32(c))}")
        a(f"v_pk_add_f32 {P(acc+2)}, {P(acc+2)}, {P(XF32(c)+2)}")
        o = 56 + 2*c
        a(f"v_cvt_pk_bf16_f32 v{o}, v{acc}, v{acc+1}")
        a(f"v_cvt_pk_bf16_f32 v{o+1}, v{acc+2}, v{acc+3}")
        if c & 1:
            a(f"v_permlane16_swap_b32 v{o-2}, v{o}\nv_permlane16_swap_b32 v{o-1}, v{o+1}")
            a(f"global_store_dwordx4 v{VO}, {Q(o-2)}, s[42:43] {SC}")
            if c < 7: a(f"v_add_u32 v{VO}, {8*81920}, v{VO}")
    a("s_setprio 0")
    stamp(a, 3, "cv")
    wsetup(a, 112, WST, 16384)
    a("s_barrier")
    for u in range(4): wread(a, 112, u, u)
    a(f"s_lshl_b32 s9, s6, 7\ns_add_u32 s9, s9, {C_S1}\ns_waitcnt vmcnt(0)")
    stamp(a, 4, "cv"); stamp(a, 10, "bs")
    arrive_last(a, "K1A", FLAG0 + 16, 9, 20, rep=True)
    stamp(a, 4)
    a("s_branch PH3X")

    XG = 160
    a("K1_BW:")
    a(f"""
    s_mov_b32 s60, s59
    s_sub_u32 m0, s60, 32768
    v_mul_u32_u24 v4, 272, v10
    v_lshl_add_u32 v4, v11, 4, v4
    v_add_u32 v4, s60, v4
    v_lshl_add_u32 v9, v1, 4, s60
    v_lshlrev_b32 v6, 5, v2
    v_add_u32 v7, {WS_STAT1}, v6
    v_lshlrev_b32 v8, 4, v2
    v_add_u32 v6, {X0}, v8
    v_add_u32 v8, {U0 + 512}, v8
    """)
    wsetup(a, 112, WST, 16384)
    a(f"""
    s_sub_u32 s12, s7, 13
    s_lshl_b32 s12, s12, {7 - LG()}
    v_lshrrev_b32 v116, {1 + LG()}, v0
    v_add_u32 v116, s12, v116
    v_min_u32 v116, {(2048 >> LG()) - 1}, v116
    v_lshlrev_b32 v116, 12, v116
    v_and_b32 v117, 3, v1
    v_lshl_add_u32 v116, v117, 7, v116
    v_and_b32 v117, 4, v1
    v_lshl_add_u32 v116, v117, 8, v116
    s_lshl_b32 s12, s4, {23 - LG()}
    v_add_u32 v116, s12, v116
    v_mov_b32 v119, 0
    """)
    for i in range(NGE, NG0): a(gath.pop(0))
    gath += [""] * OPT.get('gz', 0) + ["global_load_dword v118, v119, s[40:41] sc1"]
    a(f"s_setprio {OPT.get('bp', 3)}")
    dt_code(a)
    a(f"s_waitcnt vmcnt({NG0})")
    stamp(a, 1, "kg")
    def unpackB(AR, CUR):
        for dst, raw in ((AR(0), 16), (AR(0) + 1, 18), (CUR(0), 21), (CUR(0) + 1, 23), (17, 20), (19, 22)):
            a(f"v_lshlrev_b32 v{dst}, 16, v{raw}")
    ACC = 48
    if OPT.get("krep"): stamp(a, 7); a("s_mov_b32 s73, 0\nKB_REP:")
    kgen(a, 1, 272, None, "v4", [24], [44, 45], ACC, 64, 96, unpackB, lambda CUR: [CUR(0), CUR(0)+1, 17, 19, 20, 22], fill=gath)
    if OPT.get("krep"):
        a("s_cmp_lg_u32 s73, 0\ns_cbranch_scc1 KB_DN"); stamp(a, 8); a("s_mov_b32 s73, 1\ns_nop 7\ns_barrier\ns_branch KB_REP\nKB_DN:"); stamp(a, 9)
    for k in range(4): a(f"ds_write_b128 v9, {Q(ACC + 4*k)} offset:{1024*k}")
    a(f"""
    s_lshl_b32 s48, s3, 2
    s_add_u32 s48, s48, {FLAG0}
    v_mov_b32 v3, s48
    v_mov_b32 v5, 1
    ds_write_b32 v3, v5
    s_mov_b32 s64, 0x05040100
    s_mov_b32 s65, 0x07060302
    """)
    stamp(a, 1); stamp(a, 2, "kg")
    assert len(gath) <= 1
    for g_ in gath: a(g_)
    a("s_waitcnt vmcnt(0)")
    stamp(a, 3, "kg")
    a("v_cmp_eq_u32 vcc, 0, v118\ns_cbranch_vccz K1BI_OK")
    wait_init(a, "K1B", 10)
    if OPT.get("st2"): stamp(a, 3)
    XF = lambda i, c: 64 + 4*i + c
    UF = XF
    MR = lambda i: 40 + 2*i
    ldst = f"global_load_dwordx4 v[32:35], v7, s[42:43] sc1\nglobal_load_dwordx4 v[36:39], v7, s[42:43] offset:16 sc1"
    a(ldst)
    for i in range(8):
        for h in range(2):
            a(f"v_lshlrev_b32 v{XF(i, 2*h)}, 16, v{XG + 2*i + h}")
            a(f"v_and_b32 v{XF(i, 2*h+1)}, 0xffff0000, v{XG + 2*i + h}")
    for c in range(4):
        for i in range(0, 8, 2):
            a(f"v_perm_b32 v{16 + 4*c + i//2}, v{XG + 2*i + 2 + (c >> 1)}, v{XG + 2*i + (c >> 1)}, s{64 + (c & 1)}")
        a(f"ds_write_b128 v6, {Q(16 + 4*c)} offset:{4096*c}")
    a(f"""
    s_mov_b32 s15, 0
K1_POLL:
    s_waitcnt vmcnt(0)
    v_min3_u32 v10, v32, v33, v34
    v_min3_u32 v11, v35, v36, v37
    v_min3_u32 v10, v10, v38, v39
    v_min_u32 v10, v10, v11
    v_cmp_eq_u32 vcc, 0, v10
    s_add_u32 s15, s15, 1
    s_cbranch_vccz K1_READY
    s_cmp_ge_u32 s15, {SPIN}
    s_cbranch_scc1 K1_READY
    s_sleep 4
    {ldst}
    s_branch K1_POLL
K1_READY:
    """)
    stamp(a, 2)
    for i in range(8):
        a(f"v_lshlrev_b32 v{MR(i)+1}, 16, v{32+i}")
        a(f"v_and_b32 v{MR(i)}, 0xffff0000, v{32+i}")
        a(f"v_rcp_f32 v{MR(i)+1}, v{MR(i)+1}")
    for i in range(8):
        for h in range(2):
            a(f"v_pk_add_f32 {P(UF(i, 2*h))}, {P(XF(i, 2*h))}, {P(MR(i))} op_sel:[0,0] op_sel_hi:[1,0] neg_lo:[0,1] neg_hi:[0,1]")
        for c in range(4): a(f"v_cvt_pk_bf16_f32 v{UF(i,c)}, 0, v{UF(i,c)}")
        for h in range(2):
            a(f"v_pk_mul_f32 {P(UF(i, 2*h))}, {P(UF(i, 2*h))}, {P(MR(i))} op_sel:[0,1] op_sel_hi:[1,1]")
        for c in range(4): a(f"v_cvt_pk_bf16_f32 v{UF(i,c)}, 0, v{UF(i,c)}")
    for c in range(4):
        for i in range(0, 8, 2):
            a(f"v_cvt_pk_f16_f32 v{16 + 4*c + i//2}, v{UF(i,c)}, v{UF(i+1,c)}")
        a(f"ds_write_b128 v8, {Q(16 + 4*c)} offset:{U_STRIDE*c}")
    a("s_waitcnt lgkmcnt(0)")
    if not OPT.get("st2"): stamp(a, 3)
    stamp(a, 4, "kg")
    a("s_setprio 0\ns_barrier")
    for u in range(4): wdma(a, 112, u, u)
    a("global_load_dword v117, v116, s[34:35] nt")
    for u in range(8):
        a(f"s_waitcnt vmcnt({13 if u < 4 else 12})")
        stamp(a, u + 1, "bs")
        wread(a, 112, u, u & 3)
        a("s_waitcnt lgkmcnt(0)")
        wdma(a, 112, u + 4 if u < 4 else u - 20, u & 3)
    a("s_cmp_lg_u32 s8, 4\ns_cbranch_scc1 K1V_OK")
    poll8(a, "K1V", C_WI, 4, 14, sleep=2)
    a("s_waitcnt vmcnt(0)")
    stamp(a, 9, "bs")
    a("s_barrier\ns_branch PH3Y")

    a(f"""
K1_HELPER:
    s_lshl_b32 s9, s7, 3
    s_add_u32 s9, s9, s6
    s_cmp_ge_u32 s7, 8
    s_cbranch_scc1 K1_H2
    v_lshrrev_b32 v2, 4, v0
    s_lshl_b32 s10, s9, 5
    v_add_u32 v3, s10, v2
    v_mul_u32_u24 v3, 1280, v3
    v_and_b32 v4, 15, v0
    v_lshl_add_u32 v3, v4, 4, v3
    """)
    for j in range(5): a(f"global_load_dwordx4 {Q(16 + 4*j)}, v3, s[16:17] offset:{256*j} {OPT.get('ntx','')}")
    a(f"""
    s_mov_b32 s11, 0x3f803f80
    v_lshlrev_b32 v2, 2, v2
    v_add_u32 v2, 0x18000, v2
    v_mov_b32 v10, 0
    v_mov_b32 v11, 0
    v_mov_b32 v12, 0
    v_mov_b32 v13, 0
    """)
    slab_addr(a, 1280)
    a(f"""
    s_lshl_b32 s10, s9, 2
    s_add_u32 s10, s10, s8
    s_cmp_ge_u32 s8, 4
    s_cselect_b32 s10, 240, s10
    s_min_u32 s10, s10, 240
    s_mul_i32 s52, s10, 205
    s_lshr_b32 s52, s52, 11
    s_mul_i32 s60, s52, 10
    s_sub_u32 s60, s10, s60
    s_mul_i32 s12, s52, 43
    s_lshr_b32 s12, s12, 7
    s_mul_i32 s13, s12, 3
    s_sub_u32 s13, s52, s13
    s_lshl_b32 s13, s13, 2
    s_mul_i32 s12, s12, {96*1280}
    s_lshl_b32 s14, s60, 7
    s_add_u32 s12, s12, s14
    s_lshr_b32 s58, 0x320, s13
    s_and_b32 s58, s58, 15
    s_mul_i32 s58, s58, {16*1280}
    s_add_u32 s58, s58, s12
    s_lshr_b32 s59, 0x451, s13
    s_and_b32 s59, s59, 15
    s_mul_i32 s59, s59, {16*1280}
    s_add_u32 s59, s59, s12
    s_lshl_b32 s57, s60, 2
    """)
    srd(a, 68, 38, 0, 768 * 1280)
    srd(a, 64, 42, WS_WO, 768 * 1280)
    for j in range(5):
        a(f"s_waitcnt vmcnt({4-j})")
        for r in range(4):
            a(f"v_dot2_f32_bf16 v{10 + (r & 1)}, v{16 + 4*j + r}, s11, v{10 + (r & 1)}")
            a(f"v_dot2_f32_bf16 v{12 + (r & 1)}, v{16 + 4*j + r}, v{16 + 4*j + r}, v{12 + (r & 1)}")
    stamp(a, 1)
    a("v_add_f32 v10, v10, v11\nv_add_f32 v12, v12, v13")
    for sh in (8, 4, 2, 1):
        for r in (10, 12): a(f"v_add_f32_dpp v{r}, v{r}, v{r} row_ror:{sh} row_mask:0xf bank_mask:0xf")
    ln_finish(a, 10, 12, 640, 11, rcp=False)
    a(f"""
    v_cvt_pk_bf16_f32 v12, v12, v10
    ds_write_b32 v2, v12
    s_cmp_lg_u32 s8, 4
    s_cbranch_scc1 K1_NI
    """)
    wait_init(a, "K1H", 10)
    a(f"""
K1_NI:
    s_waitcnt lgkmcnt(0)
    s_barrier
    s_cmp_lg_u32 s8, 4
    s_cbranch_scc1 K1_WO
    v_lshlrev_b32 v2, 2, v1
    v_add_u32 v3, 0x18000, v2
    ds_read_b32 v12, v3
    s_lshl_b32 s12, s9, 7
    s_add_u32 s12, s12, {WS_STAT1}
    v_add_u32 v2, s12, v2
    s_waitcnt lgkmcnt(0)
    s_mov_b32 exec_hi, 0
    global_store_dword v2, v12, s[42:43] sc1
    s_mov_b32 exec_hi, -1
    """)
    stamp(a, 2)
    a(f"""
K1_WO:
    s_barrier
    s_lshl_b32 s12, s7, {20 - LG()}
    s_lshl_b32 s13, s4, {23 - LG()}
    s_add_u32 s12, s12, s13
    v_lshrrev_b32 v2, 4, v0
    v_lshlrev_b32 v2, 12, v2
    v_lshl_add_u32 v2, v4, 7, v2
    v_add_u32 v2, s12, v2
    v_add_u32 v3, 0x20000, v2
    global_load_dword v255, v2, s[34:35] offset:2048 {OPT.get('ntu', 'nt')}
    {"global_load_dword v255, v3, s[34:35] offset:2048 " + OPT.get('ntu', 'nt') if LG() == 2 else ""}
    s_lshr_b32 s12, s6, {LG()}
    s_lshl_b32 s12, s12, 17
    v_add_u32 v2, s12, v2
    s_barrier
    """)
    for e in range(4):
        a(f"s_add_u32 m0, s56, {1024*e}")
        a(f"s_add_u32 s13, s{58 + (e >> 1)}, {8*1280*(e & 1)}")
        a(f"buffer_load_dwordx4 v7, s[68:71], s13 offen {OPT.get('nt','nt')} lds")
    a(f"""
    v_or_b32 v2, 0x200, v2
    global_load_dword v255, v2, s[34:35]
    s_cmp_ge_u32 s10, 240
    s_cbranch_scc1 K1_PF
    s_waitcnt vmcnt(1)
    """)
    slab(a, 0, 16, 57, 52, 5, 24, 64)
    a(f"""
    s_branch K1_PF
K1_H2:
    s_sub_u32 s10, s9, 64
    s_lshl_b32 s14, s10, 13
    s_lshl_b32 s10, s10, 3
    s_add_u32 s10, s10, s8
    s_cmp_ge_u32 s10, 240
    s_cbranch_scc1 K1_H3
    s_mul_i32 s52, s10, 171
    s_lshr_b32 s52, s52, 11
    s_mul_i32 s60, s52, 12
    s_sub_u32 s60, s10, s60
    s_mul_i32 s12, s52, {32*3072}
    s_lshl_b32 s13, s60, 7
    s_add_u32 s12, s12, s13
    """)
    slab_addr(a, 3072)
    srd(a, 68, 32, 0, 640 * 3072)
    srd(a, 64, 42, WS_WI, 640 * 3072)
    for r in range(2):
        for e in range(4):
            a(f"s_add_u32 m0, s56, {4096*r + 1024*e}")
            a(f"s_add_u32 s13, s12, {1536*(1 - r) + 8*3072*e}")
            a(f"buffer_load_dwordx4 v7, s[68:71], s13 offen nt lds")
    stamp(a, 1, "hi")
    a(f"""
    s_mov_b32 s11, 0x3f803f80
    s_mul_i32 s12, s60, {16*320}
    s_lshl_b32 s13, s52, 4
    s_add_u32 s12, s12, s13
    s_add_u32 s12, s12, {WS_CSUM}
    v_lshrrev_b32 v2, 2, v1
    v_mul_u32_u24 v2, 320, v2
    v_and_b32 v3, 3, v1
    v_lshl_add_u32 v2, v3, 2, v2
    v_add_u32 v2, s12, v2
    v_add_u32 v3, {192*320}, v2
    """)
    for r in range(2):
        a(f"s_waitcnt vmcnt({4 + r})")
        stamp(a, 2 + r, "hi")
        a(f"s_lshl_b32 s57, s60, 2\ns_add_u32 s57, s57, {48*(1 - r)}")
        slab(a, 4096*r, 16 + 16*r, 57, 43, 6, 20, 64)
        C = 48 + 4*r
        for k in range(4):
            for c in range(4):
                a(f"v_dot2_f32_bf16 v{C+c}, v{16 + 16*r + 4*c + k}, s11, " + ("0" if k == 0 else f"v{C+c}"))
        a(f"""
        v_permlane16_swap_b32 v{C}, v{C+1}
        v_permlane16_swap_b32 v{C+2}, v{C+3}
        v_add_f32 v{C}, v{C}, v{C+1}
        v_add_f32 v{C+2}, v{C+2}, v{C+3}
        v_permlane32_swap_b32 v{C}, v{C+2}
        v_add_f32 v{C}, v{C}, v{C+2}
        global_store_dword v{3 - r}, v{C}, s[42:43] {SC}
        """)
    a(f"""
K1_H3:
    s_add_u32 s14, s14, {WS_PST}
    v_lshl_add_u32 v2, v0, 4, s14
    v_mov_b32 v4, -1
    v_mov_b32 v5, -1
    v_mov_b32 v6, -1
    v_mov_b32 v7, -1
    global_store_dwordx4 v2, v[4:7], s[42:43] {SC}
    """)
    a(f"""
K1_PF:
    s_cmp_lg_u32 s8, 4
    s_cbranch_scc1 K1_PG
    """)
    wait_init(a, "K1P", 10)
    a(f"""
K1_PG:
    """)
    stamp(a, 6, "hi")
    a("s_waitcnt vmcnt(0)")
    stamp(a, 7, "hi")
    a(f"""
    s_barrier
    s_cmp_lt_u32 s8, 4
    s_cbranch_scc1 K1_HX
    s_cmp_lg_u32 s8, 4
    s_cbranch_scc1 K1_HW
    s_cmp_lt_u32 s7, 8
    s_mov_b32 s9, {C_WI}
    s_cselect_b32 s9, {C_WO}, s9
    s_lshl_b32 s12, s6, 7
    s_add_u32 s9, s9, s12
    """)
    arrive(a, 9, 10)
    stamp(a, 3)
    a("K1_HW:")
    stamp(a, 1, "cv"); stamp(a, 8, "hi")
    wsetup(a, 10, WST, 16384)
    for u in range(4): wdma(a, 10, u, u)
    for u in range(8):
        a(f"s_waitcnt vmcnt({12 if u < 5 else 4*(7 - u)})")
        wread(a, 10, u, u & 3)
        if u < 4:
            a("s_waitcnt lgkmcnt(0)")
            wdma(a, 10, u + 4, u)
    stamp(a, 2, "cv"); stamp(a, 9, "hi")
    a("s_cmp_lg_u32 s8, 4\ns_cbranch_scc1 K1_NW")
    poll8(a, "K1W", C_WI, 4, 14, sleep=4)
    a("K1_NW:")
    stamp(a, 3, "cv"); stamp(a, 10, "hi"); stamp(a, 9, "bs")
    a(f"""
    s_waitcnt lgkmcnt(0)
    s_barrier
    """)
    def touch(tag):
        srd(a, 64, 42, WS_WI, 640 * 3072)
        if OPT.get("tw", 2) == 2:
            a(f"""
            s_cmp_lt_u32 s7, 8
            s_cbranch_scc1 K1_T{tag}
            s_sub_u32 s10, s7, 8
            s_mul_i32 s12, {"s10" if LG() == 3 else "s47"}, {(LG() - 1)*122880}
            v_min_u32 v2, 479, v0
            v_lshl_add_u32 v2, v2, 7, s12
            """)
            for off in [8*122880 + 61440, 9*122880 + 61440, 0, 122880][:LG() - 1]:
                a(f"s_mov_b32 s12, {off}\nbuffer_load_dword v127, v2, s[64:67], s12 offen sc1")
            a(f"K1_T{tag}:")
            return
        a(f"""
        s_mul_i32 s10, s7, 122880
        s_mul_i32 s12, s7, {2*122880}
        s_sub_u32 s12, s12, {8*122880 - 61440}
        s_cmp_lt_u32 s7, 8
        s_cselect_b32 s10, s10, s12
        s_mov_b32 s12, 122880
        s_cselect_b32 s12, 61440, s12
        v_min_u32 v2, 479, v0
        v_lshl_add_u32 v2, v2, 7, s10
        buffer_load_dword v127, v2, s[64:67], 0 offen sc1
        buffer_load_dword v127, v2, s[64:67], s12 offen sc1
        """)
        stamp(a, 4)
    touch("Y")
    a("s_branch PH3Y\nK1_HX:")
    wsetup(a, 112, WS2, 16384)
    a("s_barrier")
    touch("X")
    for u in range(4): wdma(a, 112, u, u)
    for u in range(4):
        a(f"s_waitcnt vmcnt({12 - 4*u})")
        wread(a, 112, u, u)
    a("s_waitcnt lgkmcnt(0)")
```

```python
import numpy as np
from layout import *

def pipeline(a, j0, j1, reads, mfmas, pre, tail_reads=None, after_prologue=None):
    lg = Cnt(a, "lgkmcnt", 15)
    def emit(r): a(r[1]); lg.issue(r[0])
    for j in (j0, j0 + 1):
        for r in reads(j): emit(r)
    if after_prologue: after_prologue()
    for j in range(j0, j1):
        pre(j)
        nxt = reads(j + 2) if j + 2 < j1 else (list(tail_reads) if (tail_reads and j == j1 - 1) else [])
        ms = mfmas(j)
        extra = len(nxt) - len(ms)
        for k, (tags, text) in enumerate(ms):
            lg.wait(tags)
            a(text)
            if nxt: emit(nxt.pop(0))
            if extra > 0 and k >= len(ms) - extra and nxt: emit(nxt.pop(0))
    return lg

K3_NS = 5
K3_TR = 81920
K3_ST = K3_TR + 4 * 32 * 112
K3_RING = 163328 - K3_NS * 12288
K3_CS = K3_ST + 512
assert K3_ST % 256 == 0 and K3_CS + 1024 <= K3_RING

Z1R = 20

HR = 22

def gen_k3(a):
    def common():
        a("""
        v_and_b32 v2, 15, v1
        v_lshrrev_b32 v3, 4, v1
        s_lshr_b32 s10, s3, 1
        s_and_b32 s11, s3, 1
        """)
        a(f"""
        v_lshrrev_b32 v9, 3, v1
        v_and_b32 v10, 7, v1
        v_and_b32 v11, 6, v9
        v_xor_b32 v10, v10, v11
        v_lshlrev_b32 v9, 7, v9
        v_lshl_add_u32 v5, v10, 4, v9
        s_mul_i32 s12, s46, 81920
        v_add_u32 v5, s12, v5
        s_lshl_b32 s12, s3, 11
        v_add_u32 v4, s12, v5
        s_mul_i32 s59, s3, 3072
        s_mul_i32 s12, s47, {20*6144}
        s_add_u32 s12, s12, s59
        v_lshl_add_u32 v6, v1, 4, s12
        s_lshl_b32 s14, s3, 11
        s_add_u32 s59, s59, {K3_RING}
        """)
        srd(a, 48, 42, WS_HT, 640 * 4096)
        srd(a, 52, 42, WS_WI, 640 * 3072)
    def mk_dma(vm):
        def dma_h(i):
            if i >= 10: return
            a(f"s_add_u32 m0, s14, {8192*i}")
            a(f"s_mov_b32 s56, {8192*i}")
            a(f"buffer_load_dwordx4 v4, s[48:51], s56 offen {SC} lds")
            a(f"buffer_load_dwordx4 v4, s[48:51], s56 offen offset:1024 {SC} lds")
            vm.issue(i, 2)
        def dma(i):
            if i >= 20: return
            a(f"s_add_u32 m0, s59, {12288*((i + 2) % K3_NS)}")
            a(f"s_mov_b32 s57, {12288*(i % 10) + (8*20*6144 if i < 10 else 0)}")
            for e in range(3):
                a(f"buffer_load_dwordx4 v6, s[52:55], s57 offen offset:{1024*e} {SC} lds")
            vm.issue(i, 3)
        return dma, dma_h
    CS = lambda nt: 24 + 4*nt
    ACC = lambda mt, nt: 36 + 12*mt + 4*nt
    FH = lambda b, mt: 60 + 20*b + 4*mt
    FW = lambda b, nt: 68 + 20*b + 4*nt
    TMP = 100; GC = 120
    MR = lambda mt: 122 + 2*mt
    ST = 20; SA = 20; SB = 124; ONE = 8
    def csload(vm, ph, C0=24, T0=36):
        a(f"""
        s_mul_i32 s12, s47, {24*320}
        s_mul_i32 s13, s11, {12*320}
        s_add_u32 s12, s12, s13
        s_add_u32 s12, s12, {WS_CSUM + (192*320 if ph == 0 else 0)}
        v_mul_u32_u24 v9, 320, v3
        v_lshl_add_u32 v9, v2, 4, v9
        v_add_u32 v9, s12, v9
        """)
        for r in range(12): a(f"v_mov_b32 v{T0+r}, 0")
        for nt in range(3): a(f"global_load_dwordx4 {Q(C0 + 4*nt)}, v9, s[42:43] offset:{1280*nt} {SC}")
        a("s_mov_b32 exec_lo, 0x000f000f\ns_mov_b32 exec_hi, 0x000f000f")
        for nt in range(3): a(f"global_load_dwordx4 {Q(T0 + 4*nt)}, v9, s[42:43] offset:{1280*nt + 256} {SC}")
        a("s_mov_b64 exec, -1")
        vm.issue("cs", 6)
    def csred(vm, C0=24, T0=36):
        vm.wait({"cs"})
        for r in range(12): a(f"v_add_f32 v{C0+r}, v{C0+r}, v{T0+r}")
        for sh in (8, 4, 2, 1):
            for r in range(12): a(f"v_add_f32_dpp v{C0+r}, v{C0+r}, v{C0+r} row_ror:{sh} row_mask:0xf bank_mask:0xf")
    def setup(isx):
        a(f"""
        v_lshrrev_b32 v9, 2, v1
        v_lshrrev_b32 v10, 1, v9
        v_and_b32 v10, 3, v10
        v_and_b32 v11, 3, v2
        v_lshlrev_b32 v11, 3, v11
        s_mov_b32 s63, {"s11" if isx else "0"}
        s_lshl_b32 s12, s10, 1
        s_add_u32 s12, s12, s63
        v_xor_b32 v12, s12, v10
        v_xor_b32 v13, 1, v12
        v_lshl_add_u32 v19, v9, 7, v11
        v_lshl_add_u32 v12, v12, 5, v19
        v_lshl_add_u32 v13, v13, 5, v19
        v_add_u32 v14, 40960, v12
        v_add_u32 v15, 40960, v13
        s_mul_i32 s12, s11, 3072
        s_add_u32 s12, s12, {K3_RING}
        v_lshl_add_u32 v16, v1, 4, s12
        s_lshl_b32 s12, s10, 8
        s_lshl_b32 s13, s63, 7
        s_add_u32 s12, s12, s13
        s_add_u32 s12, s12, {K3_ST}
        v_lshl_add_u32 v17, v2, 3, s12
        v_xor_b32 v7, 0x80, v17
        v_mov_b32 v{GC}, {fhex(-2.302208198)}
        v_mov_b32 v{GC+1}, {fhex(-0.1029432397)}
        """)
    def reads(j):
        st = j >> 1; b = j % 3; kk = j % 20
        ho = kk * 4096; hb = 12
        if ho >= 40960: ho -= 40960; hb = 14
        wo = 12288 * ((st + 2) % K3_NS) + (j & 1) * 6144
        h = [((j, "h", mt), f"ds_read_b64_tr_b16 {P(FH(b, mt) + 2*h)}, v{hb+mt} offset:{ho + 2048*h}") for mt in range(2) for h in range(2)]
        w = [((j, "w", nt), f"ds_read_b128 {Q(FW(b, nt))}, v16 offset:{wo + 1024*nt}") for nt in range(3)]
        return h[:2] + w + h[2:]
    WR = lambda j, nt: 128 + 12*(j - 10) + 4*nt
    NWR = OPT.get("nwr", 10)
    def wrl(vm, j):
        a(f"s_mov_b32 s57, {8*20*6144 + 6144*j}")
        for nt in range(3): a(f"buffer_load_dwordx4 {Q(WR(j, nt))}, v126, s[52:55], s57 offen offset:{1024*nt} {SC}")
        vm.issue(("wr", j), 3)
    def mainloop(j0, vm):
        def mf(j):
            b = j % 3
            return [({(j, "h", mt), (j, "w", nt)},
                     f"v_mfma_f32_16x16x32_bf16 {Q(ACC(mt, nt))}, {Q(FW(b, nt))}, {Q(FH(b, mt))}, " + ("0" if j == j0 else Q(ACC(mt, nt))))
                    for mt in range(2) for nt in range(3)] + ([] if j0 else [
                    ({(j, "h", 0)}, f"v_mfma_f32_16x16x32_bf16 {Q(SA)}, {Q(ONE)}, {Q(FH(b, 0))}, " + ("0" if j == 0 else Q(SA))),
                    ({(j, "h", 0)}, f"v_mfma_f32_16x16x32_bf16 {Q(SB)}, {Q(FH(b, 0))}, {Q(FH(b, 0))}, " + ("0" if j == 0 else Q(SB)))])
        def pre(j):
            if j in (0, 2, 4, 6, 8, 10, 12, 14, 16):
                stamp(a, (j % 20) // 2 + 1, "p3a" if j < 20 else "p3b")
                a("s_barrier")
        pipeline(a, j0, j0 + 20, reads, mf, pre)
    def gelu_tile(acc, cs, mr, t=100):
        for h in (0, 2): a(f"v_pk_fma_f32 {P(acc+h)}, {P(cs+h)}, {P(mr)}, {P(acc+h)} op_sel:[0,0,0] op_sel_hi:[1,0,1] neg_lo:[1,0,0] neg_hi:[1,0,0]")
        for h in (0, 2): a(f"v_pk_mul_f32 {P(acc+h)}, {P(acc+h)}, {P(mr)} op_sel:[0,1] op_sel_hi:[1,1]")
        for h in (0, 2): a(f"v_pk_mul_f32 {P(t+h)}, {P(acc+h)}, {P(acc+h)}")
        for h in (0, 2): a(f"v_pk_fma_f32 {P(t+h)}, {P(t+h)}, {P(GC)}, {P(GC)} op_sel:[0,1,0] op_sel_hi:[1,1,0]")
        for h in (0, 2): a(f"v_pk_mul_f32 {P(t+h)}, {P(t+h)}, {P(acc+h)}")
        for r in range(4): a(f"v_exp_f32 v{t+r}, v{t+r}")
        for r in range(4): a(f"v_add_f32 v{t+r}, 1.0, v{t+r}")
        for r in range(4): a(f"v_rcp_f32 v{t+r}, v{t+r}")
        for h in (0, 2): a(f"v_pk_mul_f32 {P(acc+h)}, {P(acc+h)}, {P(t+h)}")
    def rd_mr():
        for mt in range(2): a(f"ds_read_b64 {P(MR(mt))}, v{(17, 7)[mt]}")

    a("PH3X:")
    common(); setup(True)
    vm = Cnt(a, "vmcnt", 63); dma, dma_h = mk_dma(vm)
    a(f"""
    s_waitcnt lgkmcnt(0)
    s_barrier
    """)
    csload(vm, 0)
    csred(vm)
    a(f"""
    s_lshl_b32 s12, s46, 13
    s_lshl_b32 s13, s10, 8
    s_add_u32 s12, s12, s13
    s_add_u32 s12, s12, {WS_PST}
    s_lshl_b32 s13, s11, 4
    v_and_b32 v19, 31, v1
    v_xor_b32 v19, s13, v19
    v_lshl_add_u32 v19, v19, 3, s12
    s_lshl_b32 s13, s47, 1
    s_add_u32 s13, s13, s11
    s_lshl_b32 s13, s13, 9
    v_add_u32 v18, s13, v19
    v_lshrrev_b32 v10, 5, v1
    v_lshl_add_u32 v19, v10, 12, v19
    v_and_b32 v122, 3, v1
    """)
    for r in range(4): a(f"v_mov_b32 v{ONE+r}, 0x3f803f80")
    stamp(a, 10, "p3a")
    a("s_setprio 3\ns_barrier\ns_barrier")
    stamp(a, 5)
    mainloop(0, vm)
    stamp(a, 6)
    a(f"""
    v_cmp_eq_u32 vcc, 1, v122
    v_cndmask_b32 v{SA+1}, v{SB}, v{SB+1}, vcc
    v_cmp_eq_u32 vcc, 2, v122
    v_cndmask_b32 v{SA+1}, v{SA+1}, v{SB+2}, vcc
    v_cmp_eq_u32 vcc, 3, v122
    v_cndmask_b32 v{SA+1}, v{SA+1}, v{SB+3}, vcc
    """)
    ln_finish(a, SA, SA+1, 640, TMP)
    a(f"""
    s_mov_b32 exec_lo, 0x00f0000f
    s_mov_b32 exec_hi, 0xf0000f00
    ds_write_b64 v17, {P(SA)}
    s_mov_b64 exec, -1
    s_waitcnt lgkmcnt(0)
    s_barrier
    """)
    rd_mr()
    a("s_waitcnt lgkmcnt(0)")
    SQ = lambda mt: 104 + 4*mt
    for mt in range(2):
        for nt in range(3):
            acc = ACC(mt, nt)
            gelu_tile(acc, CS(nt), MR(mt))
            if nt == 0:
                a(f"v_pk_add_f32 {P(SQ(mt))}, {P(acc)}, {P(acc+2)}")
                a(f"v_pk_mul_f32 {P(SQ(mt)+2)}, {P(acc)}, {P(acc)}")
                a(f"v_pk_fma_f32 {P(SQ(mt)+2)}, {P(acc+2)}, {P(acc+2)}, {P(SQ(mt)+2)}")
            else:
                for h in (0, 2):
                    a(f"v_pk_add_f32 {P(SQ(mt))}, {P(SQ(mt))}, {P(acc+h)}")
                    a(f"v_pk_fma_f32 {P(SQ(mt)+2)}, {P(acc+h)}, {P(acc+h)}, {P(SQ(mt)+2)}")
    for mt in range(2):
        a(f"v_add_f32 v{ST+2*mt}, v{SQ(mt)}, v{SQ(mt)+1}")
        a(f"v_add_f32 v{ST+2*mt+1}, v{SQ(mt)+2}, v{SQ(mt)+3}")
    a(f"""
    v_permlane16_swap_b32 v{ST}, v{ST+2}
    v_permlane16_swap_b32 v{ST+1}, v{ST+3}
    v_pk_add_f32 {P(ST)}, {P(ST)}, {P(ST+2)}
    v_mov_b32 v{ST+2}, v{ST}
    v_mov_b32 v{ST+3}, v{ST+1}
    v_permlane32_swap_b32 v{ST}, v{ST+2}
    v_permlane32_swap_b32 v{ST+1}, v{ST+3}
    v_pk_add_f32 {P(ST)}, {P(ST)}, {P(ST+2)}
    v_max_f32 v{ST+1}, 0, v{ST+1}
    s_mov_b32 exec_hi, 0
    global_store_dwordx2 v18, {P(ST)}, s[42:43] sc1
    s_mov_b32 exec_hi, -1
    """)
    vm.issue("pst")
    stamp(a, 1, "cv2")
    a("s_barrier")
    a(f"s_mul_i32 s12, s47, 10240\nv_add_u32 v9, s12, v12")
    for nt in range(5): a(f"ds_read_b64_tr_b16 {P(HR + 2*nt)}, v9 offset:{2048*nt}")
    a(f"""
    s_mul_i32 s12, s3, {32*112}
    s_add_u32 s12, s12, {K3_TR}
    v_mul_u32_u24 v11, 112, v2
    v_lshl_add_u32 v11, v3, 3, v11
    v_add_u32 v11, s12, v11
    s_lshl_b32 s13, s11, 1
    v_xor_b32 v13, s13, v3
    v_lshrrev_b32 v12, 2, v2
    v_lshl_add_u32 v12, v13, 3, v12
    v_mul_u32_u24 v12, 112, v12
    v_and_b32 v13, 3, v2
    v_lshl_add_u32 v12, v13, 3, v12
    v_add_u32 v12, s12, v12
    s_lshl_b32 s12, s47, 5
    s_add_u32 s12, s12, s46
    s_mul_i32 s12, s12, 12288
    s_mul_i32 s13, s3, 3072
    s_add_u32 s12, s12, s13
    s_add_u32 s12, s12, {WS_Z2}
    v_lshl_add_u32 v10, v1, 4, s12
    """)
    G = 60
    def pstl():
        for k in range(8): a(f"global_load_dwordx2 {P(G + 2*k)}, v19, s[42:43] offset:{512*k} sc1")
    NE = 2 if OPT.get('qs', 14) >= 14 else (1 if OPT.get('qs', 14) >= 12 else 0)
    wsetup(a, 112, 0, 4096)
    stamp(a, 1, "x2")
    a("s_waitcnt lgkmcnt(0)\ns_barrier")
    stamp(a, 2, "x2")
    pstl()
    for u in range(NE): wdma(a, 112, 4 + u, 4*u)
    a(f"s_mov_b32 s58, 0\ns_waitcnt vmcnt({4*NE})")
    a("K3_POLL:")
    a(f"v_max_u32 v13, v{G}, v{G+1}")
    for k in range(1, 8): a(f"v_max3_u32 v13, v13, v{G+2*k}, v{G+2*k+1}")
    a(f"""
    v_cmp_eq_u32 vcc, -1, v13
    s_add_u32 s58, s58, 1
    s_cbranch_vccz K3_READY
    s_cmp_ge_u32 s58, {SPIN}
    s_cbranch_scc1 K3_READY
    s_sleep 1
    """)
    pstl()
    a("s_waitcnt vmcnt(0)\ns_branch K3_POLL\nK3_READY:")
    stamp(a, 2, "cv2"); stamp(a, 3, "x2")
    for d, e in ((0, 2), (4, 6), (8, 10), (12, 14), (0, 4), (8, 12), (0, 8)):
        for h in range(2): a(f"v_add_f32 v{G+d+h}, v{G+d+h}, v{G+e+h}")
    a(f"""
    v_mov_b32 v{G+2}, v{G}
    v_mov_b32 v{G+3}, v{G+1}
    v_permlane32_swap_b32 v{G}, v{G+2}
    v_permlane32_swap_b32 v{G+1}, v{G+3}
    v_add_f32 v{G}, v{G}, v{G+2}
    v_add_f32 v{G+1}, v{G+1}, v{G+3}
    """)
    ln_finish(a, G, G+1, 768, G+4)
    a(f"v_mul_f32 v{G}, v{G}, -v{G+1}")
    a(f"""
    v_mov_b32 v{G+2}, v{G}
    v_mov_b32 v{G+3}, v{G+1}
    v_permlane16_swap_b32 v{G}, v{G+2}
    v_permlane16_swap_b32 v{G+1}, v{G+3}
    """)
    O = 80
    stamp(a, 4, "x2")
    for nt in range(3):
        for mt in range(2):
            acc = ACC(mt, nt); mr = G + 2*mt
            for r in range(4): a(f"v_fma_f32 v{acc+r}, v{acc+r}, v{mr+1}, v{mr}")
            a(f"v_cvt_pk_bf16_f32 v{acc}, v{acc}, v{acc+1}")
            a(f"v_cvt_pk_bf16_f32 v{acc+1}, v{acc+2}, v{acc+3}")
            a(f"ds_write_b64 v11, {P(acc)} offset:{16*112*mt + 32*nt}")
        for h in range(2):
            a(f"ds_read_b64_tr_b16 {P(O + 4*nt + 2*h)}, v12 offset:{32*nt + 4*112*h}")
        if nt:
            a(f"s_waitcnt lgkmcnt(4)")
            a(f"global_store_dwordx4 v10, {Q(O + 4*(nt-1))}, s[42:43] offset:{1024*(nt-1)} {SC}")
    a(f"s_waitcnt lgkmcnt(0)")
    a(f"global_store_dwordx4 v10, {Q(O + 8)}, s[42:43] offset:2048 {SC}")
    stamp(a, 5, "x2")
    a(f"""
    s_lshl_b32 s12, s47, 10
    s_add_u32 s12, s12, {C_S2}
    s_lshl_b32 s58, s4, 7
    s_add_u32 s58, s58, s12
    s_waitcnt vmcnt(0)
    """)
    for u in range(NE): wread(a, 112, 4 + u, 4*u)
    stamp(a, 6, "x2")
    arrive_last(a, "K3A", LDS_FLAG + 20, 58, 10)
    stamp(a, 7, "x2")
    stamp(a, 7); stamp(a, 3, "cv2")
    a("s_setprio 0")
    a("s_barrier")
    stamp(a, 8, "x2")
    for u in range(NE, 4): wdma(a, 112, 4 + u, 4*u)
    wo_setup(a)
    NS2 = OPT.get("ns2", 2)
    for c in range(NS2): wo(a, c)
    for u in range(NE, 4):
        a(f"s_waitcnt vmcnt({12 + 5*NS2 - 4*u})"); wread(a, 112, 4 + u, 4*u)
    stamp(a, 9, "x2")
    a(f"""
    s_waitcnt lgkmcnt(0)
    s_cmp_lg_u32 s8, 0
    s_cbranch_scc1 PH4
    s_lshl_b32 s12, s47, 10
    s_add_u32 s12, s12, {C_S2}
    """)
    poll8(a, "S2", "s12", 4, 10, sleep=OPT.get("sl2", 1))
    stamp(a, 10, "x2")
    padto(a, "p2", "B")
    stamp(a, 4, "cv2")
    a("s_branch PH4")

    a("PH3Y:")
    common(); setup(False)
    vm = Cnt(a, "vmcnt", 63); dma, dma_h = mk_dma(vm)
    stamp(a, 10, "bs")
    a("s_barrier")
    def coop(off):
        a(f"""
        s_lshr_b32 s12, s7, 3
        s_lshl_b32 s12, s12, 2
        s_add_u32 s12, s12, s3
        s_mul_i32 s12, s12, {30*128}
        s_mul_i32 s13, s47, 122880
        s_add_u32 s12, s12, s13
        s_add_u32 s12, s12, {WS_WI + off}
        v_min_u32 v9, 29, v1
        v_lshl_add_u32 v9, v9, 7, s12
        global_load_dword v127, v9, s[42:43] sc1
        """)
        vm.issue("t", 1)
    csload(vm, 1)
    for i in range(5): dma(i)
    if OPT.get("c2", 1): coop(8*122880 + 61440)
    if OPT.get("z0", 5) < 0: coop(0)
    csred(vm)
    a(f"s_lshl_b32 s12, s3, 8\ns_add_u32 s12, s12, {K3_CS}\nv_lshl_add_u32 v18, v3, 4, s12")
    for nt in range(3): a(f"ds_write_b128 v18, {Q(24 + 4*nt)} offset:{64*nt}")
    a(f"""
    s_lshl_b32 s12, s10, 12
    s_lshl_b32 s13, s10, 6
    v_xor_b32 v12, s13, v12
    v_xor_b32 v13, s13, v13
    v_add_u32 v12, s12, v12
    v_add_u32 v13, s12, v13
    v_xor_b32 v14, 64, v12
    v_xor_b32 v15, 64, v13
    v_lshl_add_u32 v16, v1, 4, s59
    """)
    a("s_cmp_lg_u32 s8, 4\ns_cbranch_scc1 K3_NP")
    a(f"s_lshl_b32 s12, s6, 10\ns_add_u32 s12, s12, {C_S1}")
    poll8(a, "S1", "s12", 20, 20, sleep=OPT.get("sl1", 1))
    padto(a, "p1", "A")
    a("K3_NP:\ns_barrier")
    stamp(a, 5)
    for i in range(4): dma_h(i)
    for s in range(11):
        vm.wait({s} if s < 10 else set())
        if s: stamp(a, s, "p3a")
        a("s_barrier")
        if s >= 2: dma(s + 3)
        dma_h(s + 4)
        if s == 10: dma(14)
        if s == OPT.get("z0", 5): coop(0)
        if s == OPT.get("zs", 8): coop(61440)
    stamp(a, 6)
    AY = lambda lt, nt: 20 + 12*lt + 4*nt
    YH = lambda b, lt: 68 + 28*b + 4*lt
    YW = lambda b, nt: 84 + 28*b + 4*nt
    lg = Cnt(a, "lgkmcnt", 15)
    def yreads(st):
        b = st & 1; ho = 8192 * ((st - 10) % 5); wo_ = 12288 * ((st + 2) % K3_NS)
        h = [((st, "h", lt), f"ds_read_b64_tr_b16 {P(YH(b, lt) + 2*hf)}, v{12+lt} offset:{ho + 2048*hf}") for lt in range(4) for hf in range(2)]
        w = [((st, "w", nt), f"ds_read_b128 {Q(YW(b, nt))}, v16 offset:{wo_ + 1024*nt}") for nt in range(3)]
        return w + h
    a("s_cmp_lg_u32 s8, 4\ns_cbranch_scc1 K3O_OK")
    poll8(a, "K3O", C_WO, 4, 8)
    vm.wait({10})
    for t, r in yreads(10): a(r); lg.issue(t)
    a("s_barrier")
    for st in range(10, 20):
        stamp(a, st - 9, "p3b")
        lg.wait({(st, "w", 2)})
        dma(st + 5)
        if st == OPT.get("qs", 14): a("s_barrier")
        if st == 14:
            for lt in range(4): a(f"v_add_u32 v{12+lt}, 40960, v{12+lt}")
        nxt = []
        if st < 19: vm.wait({st + 1}); nxt = yreads(st + 1)
        for lt in range(4):
            for nt in range(3):
                lg.wait({(st, "h", lt)})
                a(f"v_mfma_f32_16x16x32_bf16 {Q(AY(lt, nt))}, {Q(YW(st & 1, nt))}, {Q(YH(st & 1, lt))}, " + ("0" if st == 10 else Q(AY(lt, nt))))
                if nxt: t, r = nxt.pop(0); a(r); lg.issue(t)
    stamp(a, 7); stamp(a, 1, "cv2")
    a(f"""
    v_mov_b32 v8, {LDS_FLAG + 32}
    v_mov_b32 v10, 1
    s_mul_i32 s12, s3, 12288
    s_add_u32 s12, s12, {K3_RING}
    v_lshl_add_u32 v11, v1, 4, s12
    s_lshl_b32 s12, s3, 7
    s_add_u32 s12, s12, {K3_ST}
    v_lshl_add_u32 v17, v2, 3, s12
    v_lshlrev_b32 v18, 4, v3
    v_add_u32 v18, {K3_CS}, v18
    v_mov_b32 v{GC}, {fhex(-2.302208198)}
    v_mov_b32 v{GC+1}, {fhex(-0.1029432397)}
    """)
    for lt in range(4):
        for nt in range(3): a(f"ds_write_b128 v16, {Q(AY(lt, nt))} offset:{12288*lt + 1024*nt}")
    a("s_mov_b64 exec, 1\nds_add_u32 v8, v10\ns_mov_b64 exec, -1")
    a(f"ds_read_b64 {P(MR(0))}, v17")
    for p in range(6): a(f"ds_read_b128 {Q(80 + 4*p)}, v18 offset:{256*(p // 3) + 64*(p % 3)}")
    a("""
K3_YW:
    ds_read_b32 v10, v8
    s_waitcnt lgkmcnt(0)
    v_readfirstlane_b32 s12, v10
    s_cmp_lt_u32 s12, 4
    s_cbranch_scc1 K3_YW
    """)
    for p in range(6):
        for k in range(2): a(f"ds_read_b128 {Q(32 + 8*p + 4*k)}, v11 offset:{6144*k + 1024*p}")
    for p in range(6):
        acc = 32 + 8*p
        if p == 0: a("s_waitcnt lgkmcnt(10)")
        if p == 1: a("s_waitcnt lgkmcnt(0)"); stamp(a, 2, "cv2"); a("s_barrier")
        for h in (0, 2): a(f"v_pk_add_f32 {P(acc+h)}, {P(acc+h)}, {P(acc+4+h)}")
        gelu_tile(acc, 80 + 4*p, MR(0), 116)
        a(f"v_cvt_pk_bf16_f32 v{Z1R + 2*p}, v{acc}, v{acc+1}")
        a(f"v_cvt_pk_bf16_f32 v{Z1R + 2*p + 1}, v{acc+2}, v{acc+3}")
    stamp(a, 4, "cv2")
    if OPT.get("wot", 0):
        a(f"""
        s_lshl_b32 s12, s7, 2
        s_add_u32 s12, s12, s3
        s_mul_i32 s12, s12, {60*128}
        s_add_u32 s12, s12, {WS_WO}
        v_min_u32 v9, 59, v1
        v_lshl_add_u32 v9, v9, 7, s12
        global_load_dword v19, v9, s[42:43] sc1
        """)

def decode_z2(v):
    v = v.reshape(8, 32, 2, 6, 4, 16, 8)
    return v.transpose(1, 2, 4, 6, 0, 3, 5).reshape(2048, 768)
def decode_p(v):
    v = v.reshape(32, 4, 8, 3, 4, 16, 2, 4)
    return v.transpose(0, 1, 5, 2, 3, 6, 4, 7).reshape(2048, 768)

K4_NS = 4
SLOT = 24576
RED = 61440
WOC = [98304, 118784, 139264, 0, 20480, 40960]
LDS_TOTAL = 163840

def wo_setup(a):
    a(f"""
    s_mul_i32 s62, s3, 5120
    s_mul_i32 s12, s47, {24*5120}
    s_add_u32 s12, s12, s62
    v_lshl_add_u32 v4, v1, 4, s12
    """)
    srd(a, 64, 42, WS_WO, 768 * 1280)

def wo(a, c, parts=(0, 1)):
    for part in parts:
        a(f"s_add_u32 m0, s62, {WOC[c] + 3072*part}")
        a(f"s_mov_b32 s56, {20480*c + 3072*part}")
        for e in range(3 - part): a(f"buffer_load_dwordx4 v4, s[64:67], s56 offen offset:{1024*e} {SC} lds")

def gen_k4(a):
    vm = Cnt(a, "vmcnt", 63)
    ACC = lambda mt, p: 32 + 24*mt + 4*p
    FZ = lambda b, p: 80 + 24*b + 4*p
    a(f"""
PH4:
    s_lshr_b32 s60, s8, 2
    s_lshl_b32 s60, s60, 1
    s_add_u32 s60, s60, s11
    s_mul_i32 s12, s60, 6144
    v_lshl_add_u32 v12, v1, 4, s12
    v_add_u32 v13, {2*SLOT}, v12
    s_mul_i32 s13, s10, 3072
    s_add_u32 s61, s12, s13
    s_mul_i32 s12, s60, {16*6144}
    s_add_u32 s12, s12, s13
    s_mul_i32 s13, s47, {32*12288}
    s_add_u32 s12, s12, s13
    v_lshl_add_u32 v6, v1, 4, s12
    s_lshl_b32 s12, s46, 7
    s_lshl_b32 s13, s3, 5
    s_add_u32 s12, s12, s13
    v_lshl_add_u32 v11, v2, 1, s12
    global_load_ushort v16, v11, s[36:37]
    """)
    srd(a, 52, 42, WS_Z2, 2048 * 768 * 2)
    def dma(i):
        r = [f"s_add_u32 m0, s61, {SLOT*(i % K4_NS)}\ns_mov_b32 s57, {6144*i}\nbuffer_load_dwordx4 v6, s[52:55], s57 offen {SC} lds"]
        r += [f"buffer_load_dwordx4 v6, s[52:55], s57 offen offset:{1024*e} {SC} lds" for e in (1, 2)]
        return r if i < 16 else []
    def reads(i):
        so = SLOT * (i % K4_NS); hi = 0
        if so >= 2*SLOT: so -= 2*SLOT; hi = 1
        return [((i, p), f"ds_read_b128 {Q(FZ(i & 1, p))}, v{12+hi} offset:{so + 1024*p}") for p in range(6)]
    a("s_barrier")
    stamp(a, 8); stamp(a, 5, "cv2"); stamp(a, 1, "p4s")
    LA = OPT.get("la", 4)
    for i in range(LA - 1):
        for r in dma(i): a(r)
    a(f"""
    s_mul_i32 s12, s3, 9216
    s_add_u32 s12, s12, {RED}
    v_lshl_add_u32 v9, v1, 4, s12
    s_xor_b32 s12, s3, 1
    s_mul_i32 s12, s12, 9216
    s_add_u32 s12, s12, {RED}
    v_lshl_add_u32 v7, v1, 4, s12
    """)
    wo_setup(a)
    stamp(a, 2, "p4s")
    a(f"s_waitcnt vmcnt({3*(LA - 2)})")
    stamp(a, 3, "p4s")
    a("s_barrier")
    for t, r in reads(0): a(r)
    for r in dma(LA - 1): a(r)
    a("s_cmp_ge_u32 s8, 4\ns_cbranch_scc1 K4_Y")
    def send(mt, q, addr, off):
        d = ACC(mt, 2*q)
        return "\n".join(f"v_cvt_pk_bf16_f32 v{d + k}, v{d + 2*k}, v{d + 2*k + 1}" for k in range(4)) + f"\nds_write_b128 {addr}, {Q(d)} offset:{off + 1024*q}"
    def mainloop(first, sends):
        vm = Cnt(a, "vmcnt", 63)
        for i in range(1, LA): vm.issue(i, 3)
        for i in range(16):
            if i >= 6: stamp(a, i - 5, "p4a")
            if i < 7: stamp(a, i + 4, "p4s")
            a("s_waitcnt lgkmcnt(0)")
            vm.wait({i + 1})
            if i == 15 and first: a("s_setprio 2")
            a("s_barrier")
            nxt = reads(i + 1) if i < 15 else []
            def issue():
                for r in dma(i + LA): a(r); vm.issue(i + LA)
                if 12 <= i < 15: wo(a, i - 9, (0,) if first else (1,)); vm.issue("o", 3 if first else 2)
            if first: issue()
            tiles = [(mt, p) for mt in (1, 0) for p in range(6)] if i == 15 else [(mt, p) for p in range(6) for mt in range(2)]
            for k, (mt, p) in enumerate(tiles):
                c = "0" if i == 0 else Q(ACC(mt, p))
                a(f"v_mfma_f32_16x16x32_bf16 {Q(ACC(mt, p))}, {Q(FZ(i & 1, p))}, {Q(WF(mt, i))}, {c}")
                if nxt: a(nxt.pop(0)[1])
                if i == 15 and k >= 9 and not first: a(sends.pop(0))
            if not first: issue()
        stamp(a, 9); stamp(a, 1, 't')
        for r in sends: a(r)
    a("s_mul_i32 s13, s11, 3072\nv_add_u32 v7, s13, v7\nv_add_u32 v9, s13, v9")
    mainloop(True, [send(mt, q, ("v9", "v7")[mt], 0) for mt in (1, 0) for q in range(3)])
    a("s_waitcnt lgkmcnt(0)\ns_setprio 0\ns_barrier")
    for c in range(OPT.get("ns2", 2), 3): wo(a, c)
    stamp(a, 2, 't')
    A5 = lambda nt: 32 + 4*nt
    FW = lambda b, nt: 52 + 20*b + 4*nt
    a(f"""
    s_lshl_b32 s12, s46, 2
    s_add_u32 s12, s12, s3
    s_mul_i32 s12, s12, 24576
    v_lshl_add_u32 v12, v1, 4, s12
    v_lshlrev_b32 v14, 4, v1
    v_add_u32 v15, 98304, v14
    s_mul_i32 s12, s46, {64*1280}
    s_mul_i32 s13, s3, {16*1280}
    s_add_u32 s12, s12, s13
    s_mul_i32 s13, s47, 160
    s_add_u32 s12, s12, s13
    v_mul_u32_u24 v17, 1280, v2
    v_add_u32 v17, s12, v17
    v_and_b32 v9, 1, v3
    v_lshlrev_b32 v9, 5, v9
    v_lshrrev_b32 v10, 1, v3
    v_lshl_add_u32 v9, v10, 4, v9
    v_add_u32 v18, v17, v9
    v_lshl_add_u32 v17, v3, 3, v17
    s_lshl_b32 s12, s46, 7
    s_add_u32 s12, s12, {C_S3}
    v_mov_b32 v8, s12
    """)
    for nt in range(5):
        for h in range(2):
            a(f"v_lshlrev_b32 v{A5(nt)+2*h}, 16, v{HR+2*nt+h}")
            a(f"v_and_b32 v{A5(nt)+2*h+1}, 0xffff0000, v{HR+2*nt+h}")
    srd(a, 52, 42, WS_P, 2048 * 768 * 2)
    def reads5(j):
        o = WOC[j // 4] + (j % 4) * 5120; hi = 0
        if o >= 98304: o -= 98304; hi = 1
        return [((j, nt), f"ds_read_b128 {Q(FW(j % 3, nt))}, v{14+hi} offset:{o + 1024*nt}") for nt in range(5)]
    vm = Cnt(a, "vmcnt", 63)
    PF = lambda ks: 128 + 4*ks
    def pl(ks):
        if ks >= 24: return
        if ks % 4 == 0: a(f"s_mov_b32 s57, {1024*ks}")
        a(f"buffer_load_dwordx4 {Q(PF(ks))}, v12, s[52:55], s57 offen offset:{1024*(ks % 4)} {SC}")
        vm.issue(ks)
    NP = OPT.get("np", 12)
    def sync3():
        a("s_waitcnt vmcnt(0)\ns_barrier")
        stamp(a, 4, 't')
        a("s_cmp_lg_u32 s8, 0\ns_cbranch_scc1 S3_OK")
        poll(a, "S3", 8, 8, 9, sleep=1)
        a("s_barrier")
        stamp(a, 10); stamp(a, 5, 't')
        for ks in range(NP): pl(ks)
        stamp(a, 6, 't')
    def mf(j):
        return [({(j, nt)}, f"v_mfma_f32_16x16x32_bf16 {Q(A5(nt))}, {Q(FW(j % 3, nt))}, {Q(PF(j))}, {Q(A5(nt))}") for nt in range(5)]
    def pre5(j):
        pl(NP + j)
        vm.wait({j})
        if j == 0: stamp(a, 7, 't')
    pipeline(a, 0, 24, reads5, mf, pre5, after_prologue=sync3)
    stamp(a, 8, 't')
    O = 112
    for nt in range(5):
        acc = A5(nt)
        a(f"v_cvt_pk_bf16_f32 v{O+2*nt}, v{acc}, v{acc+1}")
        a(f"v_cvt_pk_bf16_f32 v{O+2*nt+1}, v{acc+2}, v{acc+3}")
        if nt & 1:
            o = O + 2*nt - 2
            a(f"v_permlane16_swap_b32 v{o}, v{o+2}\nv_permlane16_swap_b32 v{o+1}, v{o+3}")
            a(f"global_store_dwordx4 v18, {Q(o)}, s[44:45] offset:{32*(nt-1)} {OPT.get('of', '')}")
    a(f"global_store_dwordx2 v17, {P(O+8)}, s[44:45] offset:128 {OPT.get('of', '')}")
    padto(a, "pe", "E")
    stamp_out(a, "X")
    a("s_endpgm")
    a(f"""
K4_Y:
    v_lshlrev_b32 v16, 16, v16
    s_lshl_b32 s12, s46, 2
    s_add_u32 s12, s12, s3
    s_mul_i32 s12, s12, 24576
    s_mul_i32 s13, s47, 3072
    s_add_u32 s12, s12, s13
    s_add_u32 s12, s12, {WS_P}
    v_lshl_add_u32 v10, v1, 4, s12
    s_mov_b32 s58, 0x00003f80
    s_mov_b32 s59, 0x3f800000
    s_lshl_b32 s63, s46, 7
    s_add_u32 s63, s63, {C_S3}
    """)
    mainloop(False, [send(1, q, "v7", 6144) for q in range(3)])
    T = 80
    for p in range(6):
        for h in range(2):
            a(f"v_lshlrev_b32 v{T + 4*p + 2*h}, 16, v{Z1R + 2*p + h}")
            a(f"v_and_b32 v{T + 4*p + 2*h + 1}, 0xffff0000, v{Z1R + 2*p + h}")
    for p in range(6):
        for h in (0, 2): a(f"v_pk_add_f32 {P(ACC(0, p)+h)}, {P(ACC(0, p)+h)}, v[16:17] op_sel:[0,0] op_sel_hi:[1,0]")
    a("s_waitcnt lgkmcnt(0)\ns_barrier")
    stamp(a, 2, 't')
    R = lambda q, j: 128 + 12*q + 4*j
    for q in range(3):
        for j in range(3): a(f"ds_read_b128 {Q(R(q, j))}, v9 offset:{3072*j + 1024*q}")
    O = 104
    for q in range(3):
        d = ACC(0, 2*q)
        for j in range(3):
            a(f"s_waitcnt lgkmcnt({8 - 3*q - j})")
            for e in range(8): a(f"v_dot2_f32_bf16 v{d + e}, v{R(q, j) + (e >> 1)}, s{58 + (e & 1)}, v{d + e}")
        for h in range(0, 8, 2): a(f"v_pk_mul_f32 {P(d+h)}, {P(d+h)}, {P(T + 8*q + h)}")
        for k in range(4): a(f"v_cvt_pk_bf16_f32 v{O + 4*q + k}, v{d + 2*k}, v{d + 2*k + 1}")
        a(f"global_store_dwordx4 v10, {Q(O + 4*q)}, s[42:43] offset:{1024*q} {SC}")
    stamp(a, 3, 't')
    a("s_waitcnt vmcnt(0)")
    stamp(a, 4, 't')
    arrive_last(a, "K4A", LDS_FLAG + 24, 63, 8)
    if OPT.get("yb", 1): a("s_barrier\ns_barrier")
    stamp(a, 10)
    stamp_out(a, "Y")
    a("K_END:\ns_endpgm")
```

```python
from asmgen import Asm
from layout import *

LOG2E = "0x3fb8aa3b"
NLOG2E = "0xbfb8aa3b"
INV2PI = "0x3e22f983"

CP = 2752
TB = (1088, 1176, 1264)
KW_STRIDE = 4 * CP
U0 = 4 * KW_STRIDE; U_STRIDE = 4608
X0 = U0 + 4 * U_STRIDE
BS0 = X0 + 16384; BS_STRIDE = 4352
KC0 = BS0 + 4 * BS_STRIDE; KC_STRIDE = 4224
AS0 = KC0 + 4 * KC_STRIDE; AS_STRIDE = 8448
WST = 163328 - 65536
WS2 = 16384
assert BS0 <= WST and AS0 + 4 * AS_STRIDE <= LDS_FLAG and WST % 128 == 0 and KC0 % 16 == 0 and KC0 - 32768 < 65536
FLAG0 = LDS_FLAG

def cmul(a, sets):
    for d, x, y, t in sets:
        a(f"v_pk_mul_f32 {P(t)}, {P(x)}, {P(y)} op_sel:[0,0] op_sel_hi:[0,1]")
    for d, x, y, t in sets:
        a(f"v_pk_fma_f32 {P(d)}, {P(x)}, {P(y)}, {P(t)} op_sel:[1,1,0] op_sel_hi:[1,0,1] neg_lo:[1,0,0]")

def kgen(a, ns, erow, vwr, vrd, SB, PKS, ACC, AF, BF, unpack, maxsrc, mid=None, fill=None):
    AR, Z1, W, ZZ, CUR, R2, R4, R6, PW, T = [lambda s, k=k: SB[s] + 2 * k for k in range(10)]
    S = range(ns); nks = 4 * ns
    unpack(AR, CUR)
    for s in S: a(f"v_mul_f32 v{AR(s)}, {LOG2E}, v{AR(s)}")
    for s in S: a(f"v_exp_f32 v{AR(s)}, v{AR(s)}")
    m = maxsrc(CUR)
    a(f"v_max3_f32 v13, abs(v{m[0]}), abs(v{m[1]}), abs(v{m[2]})")
    a(f"v_max3_f32 v14, abs(v{m[3]}), abs(v{m[4]}), abs(v{m[5]})")
    a("v_max_u32 v13, v13, v14")
    for s in S: a(f"v_cvt_pk_bf16_f32 v{AR(s)}, 0, v{AR(s)}")
    a("v_max_u32_dpp v13, v13, v13 row_ror:8 row_mask:0xf bank_mask:0xf")
    for s in S: a(f"v_pk_mul_f32 {P(AR(s))}, {P(AR(s))}, v[12:13] op_sel:[0,0] op_sel_hi:[1,0]")
    a("v_max_u32_dpp v13, v13, v13 row_ror:4 row_mask:0xf bank_mask:0xf")
    for s in S: a(f"v_mul_f32 v{AR(s)}, {NLOG2E}, v{AR(s)}")
    a("v_max_u32_dpp v13, v13, v13 row_ror:2 row_mask:0xf bank_mask:0xf")
    for s in S: a(f"v_mul_f32 v{AR(s)+1}, {INV2PI}, v{AR(s)+1}")
    a("v_max_u32_dpp v13, v13, v13 row_ror:1 row_mask:0xf bank_mask:0xf")
    def anchor(dst, p, conj=False):
        for s in S:
            if p == 1:
                a(f"v_exp_f32 v{PW(s)}, v{AR(s)}")
                a(f"v_fract_f32 v{T(s)+1}, v{AR(s)+1}")
            else:
                a(f"v_mul_f32 v{T(s)}, {fhex(p)}, v{AR(s)}")
                a(f"v_mul_f32 v{T(s)+1}, {fhex(p)}, v{AR(s)+1}")
        if p != 1:
            for s in S:
                a(f"v_exp_f32 v{PW(s)}, v{T(s)}")
                a(f"v_fract_f32 v{T(s)+1}, v{T(s)+1}")
        for s in S:
            a(f"v_cos_f32 v{dst(s)}, v{T(s)+1}")
            a(f"v_sin_f32 v{dst(s)+1}, v{T(s)+1}")
        for s in S:
            a(f"v_pk_mul_f32 {P(dst(s))}, {P(dst(s))}, {P(PW(s))} op_sel:[0,0] op_sel_hi:[1,0]" + (" neg_hi:[1,0]" if conj else ""))
    anchor(Z1, 1)
    a("""
    v_readlane_b32 s48, v13, 0
    v_readlane_b32 s49, v13, 16
    v_readlane_b32 s50, v13, 32
    v_readlane_b32 s51, v13, 48
    """)
    anchor(ZZ, 256)
    a("""
    s_max_u32 s48, s48, s49
    s_max_u32 s50, s50, s51
    s_max_u32 s48, s48, s50
    s_and_b32 s48, s48, 0x7f800000
    s_max_u32 s48, s48, 0x01000000
    s_min_u32 s48, s48, 0x7e000000
    s_sub_u32 s49, 0x7f000000, s48
    """)
    anchor(W, 8, conj=True)
    for s in S:
        a(f"v_mul_f32 v{CUR(s)}, s49, v{CUR(s)}")
        a(f"v_mul_f32 v{CUR(s)+1}, s49, -v{CUR(s)+1}")
    cnt = [0]
    def row(slot, reg):
        pk = PKS[cnt[0] & 1]; cnt[0] += 1
        for s in S:
            if reg is None: a(f"v_mov_b32 v{pk+s}, 0x3c00")
            else: a(f"v_cvt_pk_f16_f32 v{pk+s}, v{reg(s)}, v{reg(s)+1}")
        if ns == 2: a(f"ds_write_b64 {vwr}, {P(pk)} offset:{slot*erow}")
        else: a(f"ds_write_addtid_b32 v{pk} offset:{slot*erow + 32768}")
        if fill and cnt[0] % OPT.get('gp', 12) == 1: a(fill.pop(0))
    def cm(d, x, y): cmul(a, [(d(s), x(s), y(s), T(s)) for s in S])
    TMP = AR
    row(0, None); row(1, Z1)
    cm(R2, Z1, Z1); row(2, R2)
    cm(TMP, R2, Z1); row(3, TMP)
    cm(R4, R2, R2); row(4, R4)
    cm(TMP, R4, Z1); row(5, TMP)
    cm(R6, R4, R2); row(6, R6)
    cm(TMP, R6, Z1); row(7, TMP)
    row(8, ZZ)
    cm(TMP, ZZ, R2); row(9, TMP)
    cm(TMP, ZZ, R4); row(10, TMP)
    cm(TMP, ZZ, R6); row(11, TMP)
    cm(PW, ZZ, ZZ); row(12, PW)
    cm(TMP, PW, R4); row(13, TMP)
    cm(PW, PW, ZZ); row(14, PW)
    cm(TMP, PW, R4); row(15, TMP)
    for ks in range(nks): a(f"ds_read_b128 {Q(AF + 4*ks)}, {vrd} offset:{64*ks}")
    for i in range(5):
        cm(PW, PW, ZZ); row(i, PW)
    for ks in range(nks): a(f"ds_read_b128 {Q(AF + 4*nks + 4*ks)}, {vrd} offset:{64*ks}")
    for j in range(16):
        row(j, CUR); cm(CUR, CUR, W)
    for ks in range(nks): a(f"ds_read_b128 {Q(BF + 4*ks)}, {vrd} offset:{64*ks}")
    def kmfma(nt, ks):
        for mt in range(2):
            acc = ACC + 8 * nt + 4 * mt
            c = "0" if (ks == 0 and not (mid and nt == 1)) else Q(acc)
            a(f"v_mfma_f32_16x16x32_f16 {Q(acc)}, {Q(AF + 4*nks*mt + 4*ks)}, {Q(BF + 4*ks)}, {c}")
    for j in range(16):
        row(j, CUR)
        if j == 3: a("s_waitcnt lgkmcnt(4)")
        if 3 <= j < 3 + nks: kmfma(0, j - 3)
        if mid: mid(j)
        if j < 15: cm(CUR, CUR, W)
    for ks in range(nks): a(f"ds_read_b128 {Q(BF + 4*ks)}, {vrd} offset:{64*ks}")
    young = 0
    for ks in range(nks):
        a(f"s_waitcnt lgkmcnt({nks - 1 - ks + young})")
        kmfma(1, ks)
        if mid: young += mid(16 + ks)

def dt_code(a):
    a(f"""
    s_waitcnt lgkmcnt(0)
    s_lshl_b32 s14, s74, 16
    s_and_b32 s13, s74, 0xffff0000
    s_bitcmp1_b32 s10, 0
    s_cselect_b32 s13, s13, s14
    v_mov_b32 v12, {LOG2E}
    v_mul_f32 v12, s13, v12
    v_exp_f32 v12, v12
    v_cvt_pk_bf16_f32 v12, 0, v12
    """)

def wait_init(a, tag, vtmp):
    a(f"v_mov_b32 v{vtmp}, 0")
    poll(a, tag + "I", vtmp, 1, vtmp + 1, base="s[40:41]", sleep=4)

def slab(a, lds_off, FR, ct0, mul, per, nks, dsrd, stores=True):
    for c in range(4):
        for h in range(2):
            a(f"ds_read_b64_tr_b16 {P(FR + 4*c + 2*h)}, v8 offset:{lds_off + 32*c + 2048*h}")
    for c in range(4):
        a(f"""
        s_add_u32 s53, s{ct0}, {c}
        s_mul_i32 s54, s53, {mul}
        s_lshr_b32 s54, s54, 8
        s_mul_i32 s55, s54, {nks - 1}
        s_add_u32 s55, s55, s52
        s_mul_i32 s55, s55, {per}
        s_add_u32 s55, s55, s53
        s_lshl_b32 s55, s55, 10
        s_waitcnt lgkmcnt({6 - 2*c})
        buffer_store_dwordx4 {Q(FR + 4*c)}, v9, s[{dsrd}:{dsrd+3}], s55 offen {SC}
        """)

def slab_addr(a, stride):
    a(f"""
    v_lshrrev_b32 v7, 3, v1
    v_mul_u32_u24 v7, {stride}, v7
    v_and_b32 v8, 7, v1
    v_lshl_add_u32 v7, v8, 4, v7
    v_lshrrev_b32 v8, 2, v1
    v_lshlrev_b32 v8, 7, v8
    v_and_b32 v9, 3, v1
    v_lshl_add_u32 v8, v9, 3, v8
    s_mul_i32 s56, s8, 12288
    v_add_u32 v8, s56, v8
    v_lshlrev_b32 v9, 4, v1
    """)

def gen_k1(a):
    NG0 = OPT.get('ng0', 3)
    a(f"""
    s_lshl_b32 s9, s8, 2
    s_add_u32 s9, s9, {FLAG0}
    v_mov_b32 v2, s9
    v_mov_b32 v3, 0
    ds_write_b32 v2, v3
    ds_write_b32 v2, v3 offset:32
    s_sub_u32 s9, s7, 8
    s_cmp_ge_u32 s9, 4
    s_cbranch_scc1 K1_NOPF
    s_cmp_eq_u32 s2, 95
    s_cbranch_scc1 K1_INIT
    s_getpc_b64 s[10:11]
K1_PC:
    v_lshlrev_b32 v2, 7, v0
    v_min_u32 v2, CODE_END-K1_PC-4, v2
    global_load_dword v255, v2, s[10:11]
    s_branch K1_NOPF
K1_INIT:
    v_lshlrev_b32 v2, 4, v0
    v_add_u32 v2, {WS_STAT1}, v2
    v_mov_b32 v4, 0
    v_mov_b32 v5, 0
    v_mov_b32 v6, 0
    v_mov_b32 v7, 0
    s_waitcnt lgkmcnt(0)
    global_store_dwordx4 v2, v[4:7], s[42:43] sc1
    v_add_u32 v2, 0x2000, v2
    global_store_dwordx4 v2, v[4:7], s[42:43] sc1
    v_add_u32 v2, 0x2000, v2
    global_store_dwordx4 v2, v[4:7], s[42:43] sc1
    v_add_u32 v2, 0x2000, v2
    global_store_dwordx4 v2, v[4:7], s[42:43] sc1
    v_add_u32 v2, 0x2000, v2
    global_store_dwordx4 v2, v[4:7], s[42:43] sc1
    s_waitcnt vmcnt(0)
    s_barrier
    s_cmp_lg_u32 s8, 0
    s_cbranch_scc1 K1_NOPF
    v_mov_b32 v5, 1
    s_mov_b64 exec, 1
    global_store_dword v4, v5, s[40:41] sc1
    s_mov_b64 exec, -1
K1_NOPF:
    s_waitcnt lgkmcnt(0)
    s_cmp_lt_u32 s7, 12
    s_cbranch_scc1 K1_HELPER
    s_mul_i32 s9, s6, 20
    s_add_u32 s9, s9, s7
    s_sub_u32 s9, s9, 12
    s_lshl_b32 s10, s9, 2
    s_add_u32 s10, s10, s3
    s_mul_i32 s11, s10, 384
    v_lshl_add_u32 v14, v1, 2, s11
    s_add_u32 s11, s11, 256
    v_lshl_add_u32 v15, v1, 1, s11
    s_lshl_b32 s12, s10, 1
    s_and_b32 s12, s12, -4
    s_load_dword s74, s[26:27], s12
    s_load_dword s58, s[28:29], s12
    global_load_dword v20, v14, s[22:23] {OPT.get('nt','nt')}
    global_load_ushort v21, v15, s[22:23] {OPT.get('nt','nt')}
    global_load_dword v22, v14, s[24:25] {OPT.get('nt','nt')}
    global_load_ushort v23, v15, s[24:25] {OPT.get('nt','nt')}
    s_mul_i32 s59, s3, {BS_STRIDE}
    s_add_u32 s59, s59, {BS0}
    v_and_b32 v10, 15, v1
    v_lshrrev_b32 v11, 4, v1
    s_cmp_lt_u32 s8, 4
    s_cbranch_scc1 K1_AW
    """)
    XG = 160
    a(f"""
    global_load_ushort v16, v15, s[18:19] {OPT.get('nt','nt')}
    global_load_ushort v18, v15, s[20:21] {OPT.get('nt','nt')}
    s_barrier
    v_subrev_u32 v2, 256, v0
    v_mul_u32_u24 v3, 10240, v2
    s_lshl_b32 s11, s9, 3
    v_add_u32 v3, s11, v3
    v_add_u32 v5, 5120, v3
    """)
    gath = [f"global_load_dwordx2 {P(XG + 2*i)}, v{(3, 5)[i >> 2]}, s[16:17] offset:{1280*(i & 3)}" for i in range(8)]
    NGE = OPT.get("nge", 1)
    for i in range(NGE): a(gath.pop(0))
    a("s_branch K1_BW\nK1_AW:")
    a(f"""
    global_load_dword v16, v14, s[18:19] {OPT.get('nt','nt')}
    global_load_dword v18, v14, s[20:21] {OPT.get('nt','nt')}
    s_sub_u32 s48, s7, 12
    s_lshl_b32 s48, s48, 7
    v_lshrrev_b32 v2, 1, v0
    v_add_u32 v2, s48, v2
    v_min_u32 v2, 0x7ff, v2
    v_mul_u32_u24 v2, 1280, v2
    v_and_b32 v3, 1, v0
    v_lshl_add_u32 v2, v3, 7, v2
    s_mul_i32 s48, s6, 160
    s_and_b32 s48, s48, -128
    v_add_u32 v2, s48, v2
    s_barrier
    global_load_dword v255, v2, s[16:17] {OPT.get('ntx','')}
    s_mul_i32 s61, s3, {KC_STRIDE}
    s_add_u32 s61, s61, {KC0 + 96}
    s_mul_i32 s62, s3, {U_STRIDE}
    s_add_u32 s62, s62, {U0}
    s_lshl_b32 s63, s3, 12
    s_add_u32 s63, s63, {X0}
    s_mul_i32 s60, s3, {AS_STRIDE}
    s_add_u32 s60, s60, {AS0}
    v_lshl_add_u32 v2, v1, 3, s60
    v_mul_u32_u24 v4, 528, v10
    v_lshl_add_u32 v4, v11, 4, v4
    v_add_u32 v4, s60, v4
    s_mul_i32 s60, s3, {KW_STRIDE}
    v_mov_b32 v12, 0
    v_mov_b32 v13, 0
    v_mov_b32 v14, 0
    v_mov_b32 v15, 0
    v_lshl_add_u32 v5, v1, 4, s60
    ds_write_b128 v5, v[12:15]
    ds_write_b128 v5, v[12:15] offset:{2*TB[0]}
    ds_write_b128 v5, v[12:15] offset:{2*TB[0] + CP}
    ds_write_b128 v5, v[12:15] offset:{2*TB[0] + 2*CP}
    ds_write_b128 v5, v[12:15] offset:{2*TB[0] + 3*CP}
    v_lshl_add_u32 v5, v1, 3, s62
    ds_write_b64 v5, v[12:13]
    s_sub_u32 s48, s61, 96
    v_lshl_add_u32 v5, v1, 2, s48
    ds_write_b32 v5, v12
    v_max_u32 v12, 1, v11
    v_sub_u32 v12, 6, v12
    v_lshlrev_b32 v5, v12, v10
    v_lshlrev_b32 v13, 4, v11
    v_lshlrev_b32 v6, 9, v11
    v_cmp_gt_u32 vcc, 2, v11
    v_cndmask_b32 v13, v6, v13, vcc
    v_add3_u32 v5, v5, v13, s61
    v_mov_b32 v13, 0x100
    v_cmp_eq_u32 vcc, 3, v11
    v_cndmask_b32 v13, 8, v13, vcc
    v_lshlrev_b32 v12, v12, 16
    v_add_u32 v7, v5, v12
    v_add_u32 v8, v7, v13
    v_lshl_add_u32 v9, v10, 2, v6
    v_add_u32 v6, v5, v13
    s_add_u32 s48, s61, 2048
    v_add_u32 v9, s48, v9
    """)
    VA, VB, VX, VO, VT, VU, BAND = 200, 201, 202, 203, 224, 225, 212
    a(f"""
    v_add_u32 v12, 1, v10
    v_and_b32 v12, 3, v12
    v_mul_u32_u24 v13, {CP + 2}, v12
    v_lshlrev_b32 v12, 3, v11
    v_sub_u32 v12, v12, v10
    v_lshl_add_u32 v13, v12, 1, v13
    s_add_u32 s48, s60, 30
    v_add_u32 v{VA}, s48, v13
    v_lshlrev_b32 v13, 3, v11
    v_sub_u32 v{VT}, v{VA}, v13
    v_sub_u32 v199, 48, v12
    v_lshlrev_b32 v12, 5, v10
    v_lshl_add_u32 v12, v11, 4, v12
    s_add_u32 s48, s62, 32
    v_add_u32 v{VB}, s48, v12
    v_lshlrev_b32 v12, 2, v10
    v_add_u32 v12, v12, v11
    v_lshl_add_u32 v{VX}, v12, 3, s63
    s_add_u32 s48, s62, 512
    v_lshl_add_u32 v{VU}, v12, 3, s48
    v_and_b32 v12, 1, v11
    v_lshrrev_b32 v13, 2, v10
    v_lshl_add_u32 v12, v12, 2, v13
    v_mul_u32_u24 v12, 81920, v12
    v_and_b32 v13, 3, v10
    v_lshl_add_u32 v12, v13, 5, v12
    v_lshrrev_b32 v13, 1, v11
    v_lshl_add_u32 v12, v13, 4, v12
    s_lshl_b32 s48, s10, 7
    v_add_u32 v{VO}, s48, v12
    s_sub_u32 s48, s61, 96
    v_lshl_add_u32 v204, v1, 5, s48
    v_cmp_eq_u32 vcc, 34, v1
    s_add_u32 s48, s61, 1024
    v_lshl_add_u32 v206, v1, 3, s48
    v_cndmask_b32 v205, 0, 4, vcc
    v_sub_u32 v205, v204, v205
    v_cmp_eq_u32 vcc, 63, v1
    v_lshlrev_b32 v208, 4, v1
    v_add_u32 v211, s59, v208
    s_add_u32 s48, s60, 1072
    v_cndmask_b32 v207, 0, 4, vcc
    v_sub_u32 v207, v206, v207
    v_sub_u32 v208, s48, v208
    v_lshlrev_b32 v209, 3, v1
    s_add_u32 s48, s60, 1592
    v_sub_u32 v209, s48, v209
    v_lshlrev_b32 v210, 1, v1
    s_add_u32 s48, s60, {126 + CP + 2}
    v_sub_u32 v210, s48, v210
    v_and_b32 v12, 1, v1
    v_mul_u32_u24 v12, {CP + 2}, v12
    v_sub_u32 v210, v210, v12
    s_lshl_b32 s48, s3, 2
    s_add_u32 s48, s48, {FLAG0}
    v_mov_b32 v3, s48
    """)
    def band():
        a("v_mov_b32 v29, 0\nv_mov_b32 v30, 0x3c00")
        for w, (lo, hi) in enumerate(((0, 4), (5, 11), (12, 15))):
            a(f"v_subrev_u32 v25, {hi}, v199\nv_mov_b32 v28, {(1 << (hi - lo + 1)) - 1}\nv_lshlrev_b64 v[26:27], v25, v[28:29]")
            for d in range(4):
                a(f"v_bfe_u32 v25, v27, {2*d}, 2\nv_lshl_or_b32 v25, v25, 15, v25\nv_and_b32 v25, 0x10001, v25\nv_mul_u32_u24 v{BAND + 4*w + d}, v25, v30")
    band()
    stamp(a, 1, "kg")
    dt_code(a)
    a("s_lshl_b32 s57, s58, 16\ns_and_b32 s58, s58, 0xffff0000\ns_bitcmp1_b32 s10, 0\ns_cselect_b32 s58, s58, s57")
    a("s_waitcnt vmcnt(1)")
    stamp(a, 1); stamp(a, 2, "kg")
    def unpackA(AR, CUR):
        for dst, raw in ((AR, 16), (lambda s: AR(s) + 1, 18), (CUR, 20), (lambda s: CUR(s) + 1, 22)):
            a(f"v_lshlrev_b32 v{dst(0)}, 16, v{raw}")
            a(f"v_and_b32 v{dst(1)}, 0xffff0000, v{raw}")
        a("v_lshlrev_b32 v21, 16, v21\nv_lshlrev_b32 v23, 16, v23")
    ACC = 68
    def midA(j):
        if j == 12: a("ds_read_b32 v17, v3")
        if j == 14:
            a("""
            s_waitcnt lgkmcnt(2)
K1_PW:
            v_readfirstlane_b32 s50, v17
            s_cmp_lg_u32 s50, 0
            s_cbranch_scc1 K1_PR
            ds_read_b32 v17, v3
            s_waitcnt lgkmcnt(0)
            s_branch K1_PW
K1_PR:
            """)
            for k in range(4): a(f"ds_read_b128 {Q((180, 184, ACC + 8, ACC + 12)[k])}, v211 offset:{1024*k}")
        if j in (16, 17):
            for r in range(4*(j - 16), 4*(j - 16) + 4): a(f"v_add_f32 v{ACC + r}, v{ACC + r}, v{180 + r}")
        if j == 18: a(f"ds_write_b64 v5, {P(ACC)}"); return 1
        if j == 19: a(f"ds_write_b64 v6, {P(ACC+2)}"); return 1
        if j == 20: a(f"ds_write2_b32 v9, v{ACC+4}, v{ACC+5} offset0:0 offset1:32"); return 1
        if j == 21: a(f"ds_write2_b32 v9, v{ACC+6}, v{ACC+7} offset0:64 offset1:96"); return 1
        if j == 22: a("v_mul_f32 v15, s48, v12\nv_add_f32 v15, v15, v15")
        return 0
    if OPT.get("krep"): a("s_mov_b32 s73, 0\nKA_REP:")
    kgen(a, 2, 528, "v2", "v4", [24, 44], [64, 66], ACC, 84, 148, unpackA,
         lambda CUR: [CUR(0), CUR(0)+1, CUR(1), CUR(1)+1, 21, 23], midA)
    if OPT.get("krep"):
        a("s_cmp_lg_u32 s73, 0\ns_cbranch_scc1 KA_DN"); stamp(a, 8); a("s_mov_b32 s73, 1\ns_nop 7\ns_barrier\ns_branch KA_REP\nKA_DN:"); stamp(a, 9)
    stamp(a, 3, "kg")
    a(f"""
    ds_write_b64 v7, {P(ACC+8)}
    ds_write_b64 v8, {P(ACC+10)}
    ds_write2_b32 v9, v{ACC+12}, v{ACC+13} offset0:16 offset1:48
    ds_write2_b32 v9, v{ACC+14}, v{ACC+15} offset0:80 offset1:112
    ds_read_b64 v[44:45], v206 offset:512
    ds_read_b32 v46, v206 offset:520
    ds_read_b64 v[48:49], v206
    ds_read_b32 v50, v206 offset:8
    ds_read_b32 v51, v207 offset:12
    ds_read_b128 v[24:27], v204
    ds_read_b128 v[28:31], v204 offset:16
    ds_read_b32 v32, v204 offset:32
    ds_read2_b32 v[34:35], v205 offset0:9 offset1:10
    ds_read2_b64 v[36:39], v206 offset0:127 offset1:128
    ds_read_b32 v42, v206 offset:1032
    """)
    def emit_region(e, n, addr, off0, regs):
        cur = [None] * (n // 2)
        for sg in range(4):
            for d in range(n // 2):
                want = (e[sg + n - 1 - 2 * d], e[sg + n - 2 - 2 * d])
                if cur[d] != want:
                    a(f"v_cvt_pk_f16_f32 v{regs + d}, v{want[0]}, v{want[1]}")
                    cur[d] = want
            if n == 4:
                a(f"ds_write_b64 {addr}, {P(regs)} offset:{off0 + CP*sg}")
            else:
                for h in range(n // 8):
                    a(f"ds_write_b128 {addr}, {Q(regs + 4*h)} offset:{off0 + CP*sg + 16*h}")
            if n <= 8 and len(set(e)) > 4:
                regs += n // 2; cur = [None] * (n // 2)
    a("s_waitcnt lgkmcnt(9)\nv_mov_b32 v47, v46\nv_writelane_b32 v47, 0, 63")
    emit_region([44]*3 + [45]*3 + [46]*2 + [47]*3, 8, "v208", 0, 92)
    a("s_waitcnt lgkmcnt(10)")
    emit_region([48, 48, 49, 50, 50, 50, 51], 4, "v209", 0, 96)
    a("s_waitcnt lgkmcnt(8)\ns_mov_b32 exec_hi, 7")
    emit_region([24, 25, 26, 27, 28, 29, 30, 31, 32, 34, 35], 8, "v208", 1072, 100)
    a("s_mov_b64 exec, -1")
    a("""
    v_mov_b32 v40, v38
    v_writelane_b32 v36, 0, 0
    v_writelane_b32 v37, 0, 0
    v_writelane_b32 v40, 0, 0
    v_cvt_pk_f16_f32 v226, v38, v36
    v_cvt_pk_f16_f32 v227, v39, v37
    v_cvt_pk_f16_f32 v211, v42, v40
    """)
    tw = [("W", f"ds_write_b32 v210, v{(226, 227, 211)[w]} offset:{2*(CP + 2)*sg + 2*TB[w]}") for w in range(3) for sg in range(2)]
    for t_ in tw: a(t_[1])
    stamp(a, 2); stamp(a, 5, "kg")
    CA = 24; XR = 88; SR = 152; HH = 228; HB = 152
    AA = lambda q, s: (56 + 16*(s & 1) + 4*q) if q < 4 else 252
    BB = lambda d, s: 88 + 32*(s & 1) + 4*d
    lg = Cnt(a, "lgkmcnt", 15)
    def rdA(q, s, h): return (("A", q, s), f"ds_read_b64 {P(AA(q, s) + 2*h)}, v{VA} offset:{64*(32 - 8*q - s) + 8*h}")
    def rdB(d, s): return (("B", d, s), f"ds_read_b128 {Q(BB(d, s))}, v{VB} offset:{512*d + 64*(7 - s)}")
    UD = lambda c: 152 + 4*c
    XF32 = lambda c: (184 + 4*c) if c < 4 else (228 + 4*(c - 4))
    def epi_pre(c):
        u, x = UD(c), XF32(c)
        r = [(("U", c), f"ds_read_b64 {P(u + 2)}, v{VU} offset:{512*c}"), (("X", c), f"ds_read_b64 {P(x + 2)}, v{VX} offset:{512*c}")]
        v = [("X", f"v_lshlrev_b32 v{x}, 16, v{x+2}\nv_and_b32 v{x+1}, 0xffff0000, v{x+2}"),
             ("X", f"v_lshlrev_b32 v{x+2}, 16, v{x+3}\nv_and_b32 v{x+3}, 0xffff0000, v{x+3}"),
             ("X", f"v_fma_mix_f32 v{x}, v{u+2}, s58, v{x} op_sel:[0,0,0] op_sel_hi:[1,0,0]\nv_fma_mix_f32 v{x+1}, v{u+2}, s58, v{x+1} op_sel:[1,0,0] op_sel_hi:[1,0,0]"),
             ("X", f"v_fma_mix_f32 v{x+2}, v{u+3}, s58, v{x+2} op_sel:[0,0,0] op_sel_hi:[1,0,0]\nv_fma_mix_f32 v{x+3}, v{u+3}, s58, v{x+3} op_sel:[1,0,0] op_sel_hi:[1,0,0]")]
        return r, [(None, t, (k, c)) for k, t in v]
    def rdT(w, e): return (("T", w), f"ds_read_b64 {P(HB + 10*w + 2*(3 - e))}, v{VT} offset:{2*TB[w] + 96 - 32*e}")
    def emit(r):
        if len(r) > 2: lg.wait({r[2]})
        a(r[1])
        if r[0] is not None: lg.issue(r[0])
    a("s_waitcnt vmcnt(0)\ns_setprio " + str(OPT.get("cprio", 2)))
    for q in range(4, -1, -1):
        emit(rdA(q, 0, 0)); emit(rdA(q, 0, 1))
    padto(a, "p0", "Z")
    a("s_barrier")
    stamp(a, 3)
    for d in range(4): emit(rdB(d, 0))
    fifo = [rdB(d, 0) for d in range(4, 8)]
    touched = set()
    def mm(c, ra, rb, tags):
        assert not any(t[0] in tags for t in fifo), tags
        lg.wait(tags)
        cin = Q(c) if c in touched else "0"
        touched.add(c)
        a(f"v_mfma_f32_16x16x32_f16 {Q(c)}, {Q(ra)}, {Q(rb)}, {cin}")
        if fifo: emit(fifo.pop(0))
    look = lambda n: [rdA(3, n, 0), rdA(3, n, 1)] + [rdB(d, n) for d in range(5)] + [rdA(2, n, 0), rdA(2, n, 1), rdB(5, n), rdA(1, n, 0), rdA(1, n, 1), rdB(6, n), rdA(0, n, 0), rdA(0, n, 1), rdB(7, n)]
    fifo += look(1)
    for x in range(4):
        for w in range(3): mm(SR + 16*w + 4*x, BB(x, 0), BAND + 4*w, {("B", x, 0)})
    for d in range(4): mm(CA + 4*(4 + d), AA(4, 0), BB(d, 0), {("A", 4, 0), ("B", d, 0)})
    for s in range(8):
        stamp(a, s + 1, "bs")
        if 0 < s < 7: fifo[0:0] = look(s + 1)
        if s == 0:
            fifo += [(None, f"v_cvt_pk_f16_f32 v{HH + 8*w + 2*x}, v{SR + 16*w + 4*x}, v{SR + 16*w + 4*x + 1}\nv_cvt_pk_f16_f32 v{HH + 8*w + 2*x + 1}, v{SR + 16*w + 4*x + 2}, v{SR + 16*w + 4*x + 3}") for w in range(3) for x in range(4)]
            fifo += [rdT(w, e) for w in range(3) for e in range(4)] + [(None, f"v_mov_b32 v{HB + 10*w + 8}, 0\nv_mov_b32 v{HB + 10*w + 9}, 0") for w in range(3)]
        if s == 4:
            pr = [epi_pre(c) for c in range(8)]
            for c in range(8): fifo += pr[c][0]
            for c in range(8): fifo += pr[c][1]
        for q in range(3, -1, -1):
            for d in range(0, 8 - q):
                mm(CA + 4*(q + d), AA(q, s), BB(d, s), {("A", q, s), ("B", d, s)})
        if s == 3:
            assert not fifo
            for w in range(3):
                for cc in range(4):
                    for kb in range(cc // 2 + 1):
                        e = cc - 2*kb
                        mm(CA + 4*(4 + cc), HH + 8*w + 4*kb, HB + 10*w + 2*(3 - e), {("T", w)})
    stamp(a, 1, "cv"); stamp(a, 9, "bs")
    a("v_mov_b32 v14, v15")
    while fifo: emit(fifo.pop(0))
    for c in range(8):
        acc = CA + 4*c
        for h in (0, 2): a(f"v_pk_fma_f32 {P(acc+h)}, {P(acc+h)}, v[14:15], {P(XF32(c)+h)}")
        o = 56 + 2*c
        a(f"v_cvt_pk_bf16_f32 v{o}, v{acc}, v{acc+1}")
        a(f"v_cvt_pk_bf16_f32 v{o+1}, v{acc+2}, v{acc+3}")
        if c & 1:
            a(f"v_permlane16_swap_b32 v{o-2}, v{o}\nv_permlane16_swap_b32 v{o-1}, v{o+1}")
            a(f"global_store_dwordx4 v{VO}, {Q(o-2)}, s[42:43] {SC}")
            if c < 7: a(f"v_add_u32 v{VO}, {8*81920}, v{VO}")
    a("s_setprio 0")
    stamp(a, 3, "cv")
    wsetup(a, 112, WST, 16384)
    a(f"s_lshl_b32 s9, s6, 7\ns_add_u32 s9, s9, {C_S1}\ns_waitcnt vmcnt(0)")
    stamp(a, 4, "cv"); stamp(a, 10, "bs")
    arrive_last(a, "K1A", FLAG0 + 16, 9, 20, rep=True)
    stamp(a, 4)
    a("s_barrier")
    for u in range(4): wread(a, 112, u, u)
    a("s_branch PH3X")

    XG = 160
    a("K1_BW:")
    a(f"""
    s_mov_b32 s60, s59
    s_sub_u32 m0, s60, 32768
    v_mul_u32_u24 v4, 272, v10
    v_lshl_add_u32 v4, v11, 4, v4
    v_add_u32 v4, s60, v4
    v_lshl_add_u32 v9, v1, 4, s60
    v_lshlrev_b32 v6, 5, v2
    v_add_u32 v7, {WS_STAT1}, v6
    v_lshlrev_b32 v8, 4, v2
    v_add_u32 v6, {X0}, v8
    v_add_u32 v8, {U0 + 512}, v8
    """)
    wsetup(a, 112, WST, 16384)
    a(f"""
    v_mov_b32 v119, 0
    """)
    for i in range(NGE, NG0): a(gath.pop(0))
    gath += [""] * OPT.get('gz', 0) + ["global_load_dword v118, v119, s[40:41] sc1"]
    a(f"s_setprio {OPT.get('bp', 3)}")
    dt_code(a)
    a(f"s_waitcnt vmcnt({NG0})")
    stamp(a, 1, "kg")
    def unpackB(AR, CUR):
        for dst, raw in ((AR(0), 16), (AR(0) + 1, 18), (CUR(0), 21), (CUR(0) + 1, 23), (17, 20), (19, 22)):
            a(f"v_lshlrev_b32 v{dst}, 16, v{raw}")
    ACC = 48
    if OPT.get("krep"): stamp(a, 7); a("s_mov_b32 s73, 0\nKB_REP:")
    kgen(a, 1, 272, None, "v4", [24], [44, 45], ACC, 64, 96, unpackB, lambda CUR: [CUR(0), CUR(0)+1, 17, 19, 20, 22], fill=gath)
    if OPT.get("krep"):
        a("s_cmp_lg_u32 s73, 0\ns_cbranch_scc1 KB_DN"); stamp(a, 8); a("s_mov_b32 s73, 1\ns_nop 7\ns_barrier\ns_branch KB_REP\nKB_DN:"); stamp(a, 9)
    for k in range(4): a(f"ds_write_b128 v9, {Q(ACC + 4*k)} offset:{1024*k}")
    a(f"""
    s_lshl_b32 s48, s3, 2
    s_add_u32 s48, s48, {FLAG0}
    v_mov_b32 v3, s48
    v_mov_b32 v5, 1
    ds_write_b32 v3, v5
    s_mov_b32 s64, 0x05040100
    s_mov_b32 s65, 0x07060302
    """)
    stamp(a, 1); stamp(a, 2, "kg")
    a(f"s_setprio {OPT.get('bp2', 3)}")
    assert len(gath) <= 1
    for g_ in gath: a(g_)
    a("s_waitcnt vmcnt(0)")
    stamp(a, 3, "kg")
    a("v_cmp_eq_u32 vcc, 0, v118\ns_cbranch_vccz K1BI_OK")
    wait_init(a, "K1B", 10)
    if OPT.get("st2"): stamp(a, 3)
    XF = lambda i, c: 64 + 4*i + c
    UF = XF
    MR = lambda i: 40 + 2*i
    ldst = f"global_load_dwordx4 v[32:35], v7, s[42:43] sc1\nglobal_load_dwordx4 v[36:39], v7, s[42:43] offset:16 sc1"
    a(ldst)
    for i in range(8):
        for h in range(2):
            a(f"v_lshlrev_b32 v{XF(i, 2*h)}, 16, v{XG + 2*i + h}")
            a(f"v_and_b32 v{XF(i, 2*h+1)}, 0xffff0000, v{XG + 2*i + h}")
    for c in range(4):
        for i in range(0, 8, 2):
            a(f"v_perm_b32 v{16 + 4*c + i//2}, v{XG + 2*i + 2 + (c >> 1)}, v{XG + 2*i + (c >> 1)}, s{64 + (c & 1)}")
        a(f"ds_write_b128 v6, {Q(16 + 4*c)} offset:{4096*c}")
    a(f"""
    s_mov_b32 s15, 0
K1_POLL:
    s_waitcnt vmcnt(0)
    v_min3_u32 v10, v32, v33, v34
    v_min3_u32 v11, v35, v36, v37
    v_min3_u32 v10, v10, v38, v39
    v_min_u32 v10, v10, v11
    v_cmp_eq_u32 vcc, 0, v10
    s_add_u32 s15, s15, 1
    s_cbranch_vccz K1_READY
    s_cmp_ge_u32 s15, {SPIN}
    s_cbranch_scc1 K1_READY
    s_sleep 4
    {ldst}
    s_branch K1_POLL
K1_READY:
    """)
    stamp(a, 2)
    for i in range(8):
        a(f"v_lshlrev_b32 v{MR(i)+1}, 16, v{32+i}")
        a(f"v_and_b32 v{MR(i)}, 0xffff0000, v{32+i}")
        a(f"v_rcp_f32 v{MR(i)+1}, v{MR(i)+1}")
    for i in range(8): a(f"v_mul_f32 v{MR(i)}, v{MR(i)}, -v{MR(i)+1}")
    for i in range(8):
        for h in range(2):
            a(f"v_pk_fma_f32 {P(UF(i, 2*h))}, {P(XF(i, 2*h))}, {P(MR(i))}, {P(MR(i))} op_sel:[0,1,0] op_sel_hi:[1,1,0]")
    for c in range(4):
        for i in range(0, 8, 2):
            a(f"v_cvt_pk_f16_f32 v{16 + 4*c + i//2}, v{UF(i,c)}, v{UF(i+1,c)}")
        a(f"ds_write_b128 v8, {Q(16 + 4*c)} offset:{U_STRIDE*c}")
    a("s_waitcnt lgkmcnt(0)")
    if not OPT.get("st2"): stamp(a, 3)
    stamp(a, 4, "kg")
    a("s_setprio 0\ns_barrier")
    for u in range(4): wdma(a, 112, u, u)
    for u in range(8):
        a(f"s_waitcnt vmcnt(12)")
        stamp(a, u + 1, "bs")
        wread(a, 112, u, u & 3)
        a("s_waitcnt lgkmcnt(0)")
        wdma(a, 112, u + 4 if u < 4 else u - 20, u & 3)
    a("s_cmp_lg_u32 s8, 4\ns_cbranch_scc1 K1V_OK")
    poll8(a, "K1V", C_WI, 4, 14, sleep=2)
    a("s_waitcnt vmcnt(0)")
    stamp(a, 9, "bs")
    a("s_barrier\ns_branch PH3Y")

    a(f"""
K1_HELPER:
    s_lshl_b32 s9, s7, 3
    s_add_u32 s9, s9, s6
    s_cmp_ge_u32 s7, 8
    s_cbranch_scc1 K1_H2
    v_lshrrev_b32 v2, 4, v0
    s_lshl_b32 s10, s9, 5
    v_add_u32 v3, s10, v2
    v_mul_u32_u24 v3, 1280, v3
    v_and_b32 v4, 15, v0
    v_lshl_add_u32 v3, v4, 4, v3
    """)
    for j in range(5): a(f"global_load_dwordx4 {Q(16 + 4*j)}, v3, s[16:17] offset:{256*j} {OPT.get('ntx','')}")
    a(f"""
    s_mov_b32 s11, 0x3f803f80
    v_lshlrev_b32 v2, 2, v2
    v_add_u32 v2, 0x18000, v2
    v_mov_b32 v10, 0
    v_mov_b32 v11, 0
    v_mov_b32 v12, 0
    v_mov_b32 v13, 0
    """)
    for j in range(5):
        a(f"s_waitcnt vmcnt({4-j})")
        for r in range(4):
            a(f"v_dot2_f32_bf16 v{10 + (r & 1)}, v{16 + 4*j + r}, s11, v{10 + (r & 1)}")
            a(f"v_dot2_f32_bf16 v{12 + (r & 1)}, v{16 + 4*j + r}, v{16 + 4*j + r}, v{12 + (r & 1)}")
    stamp(a, 1)
    a("v_add_f32 v10, v10, v11\nv_add_f32 v12, v12, v13")
    for sh in (8, 4, 2, 1):
        for r in (10, 12): a(f"v_add_f32_dpp v{r}, v{r}, v{r} row_ror:{sh} row_mask:0xf bank_mask:0xf")
    ln_finish(a, 10, 12, 640, 11, rcp=False)
    a(f"""
    v_cvt_pk_bf16_f32 v12, v12, v10
    ds_write_b32 v2, v12
    s_cmp_lg_u32 s8, 4
    s_cbranch_scc1 K1_NI
    """)
    wait_init(a, "K1H", 10)
    a(f"""
K1_NI:
    s_waitcnt lgkmcnt(0)
    s_barrier
    s_cmp_lg_u32 s8, 4
    s_cbranch_scc1 K1_WO
    v_lshlrev_b32 v2, 2, v1
    v_add_u32 v3, 0x18000, v2
    ds_read_b32 v12, v3
    s_lshl_b32 s12, s9, 7
    s_add_u32 s12, s12, {WS_STAT1}
    v_add_u32 v2, s12, v2
    s_waitcnt lgkmcnt(0)
    s_mov_b32 exec_hi, 0
    global_store_dword v2, v12, s[42:43] sc1
    s_mov_b32 exec_hi, -1
    """)
    stamp(a, 2)
    a(f"""
K1_WO:
    s_barrier
    s_lshl_b32 s12, s7, {20 - LG()}
    s_lshl_b32 s13, s4, {23 - LG()}
    s_add_u32 s12, s12, s13
    v_lshrrev_b32 v2, 4, v0
    v_lshlrev_b32 v2, 12, v2
    v_lshl_add_u32 v2, v4, 7, v2
    v_add_u32 v2, s12, v2
    v_add_u32 v3, 0x20000, v2
    global_load_dword v255, v2, s[34:35] offset:2048 {OPT.get('ntu', 'nt')}
    {"global_load_dword v255, v3, s[34:35] offset:2048 " + OPT.get('ntu', 'nt') if LG() == 2 else ""}
    s_barrier
    v_and_b32 v3, 0xfffffdff, v2
    global_load_dword v255, v3, s[34:35] nt
    s_barrier
    """)
    a(f"""
    v_or_b32 v2, 0x200, v2
    global_load_dword v255, v2, s[34:35] {OPT.get('ntq', '')}
    s_waitcnt vmcnt(1)
    """)
    stamp(a, 3)
    a(f"""
    s_barrier
    s_cmp_lt_u32 s8, 4
    s_cbranch_scc1 K1_HX
    s_branch K1_HW
K1_H2:
    s_sub_u32 s10, s9, 64
    s_lshl_b32 s14, s10, 13
    s_lshl_b32 s10, s10, 3
    s_add_u32 s10, s10, s8
    s_cmp_ge_u32 s10, 240
    s_cbranch_scc1 K1_H3
    s_mul_i32 s52, s10, 171
    s_lshr_b32 s52, s52, 11
    s_mul_i32 s60, s52, 12
    s_sub_u32 s60, s10, s60
    s_mul_i32 s12, s52, {32*3072}
    s_lshl_b32 s13, s60, 7
    s_add_u32 s12, s12, s13
    """)
    slab_addr(a, 3072)
    srd(a, 68, 32, 0, 640 * 3072)
    srd(a, 64, 42, WS_WI, 640 * 3072)
    for r in range(2):
        for e in range(4):
            a(f"s_add_u32 m0, s56, {4096*r + 1024*e}")
            a(f"s_add_u32 s13, s12, {1536*(1 - r) + 8*3072*e}")
            a(f"buffer_load_dwordx4 v7, s[68:71], s13 offen nt lds")
    a(f"""
    s_mul_i32 s61, s10, 205
    s_lshr_b32 s61, s61, 11
    s_mul_i32 s62, s61, 10
    s_sub_u32 s62, s10, s62
    s_mul_i32 s58, s61, {32*1280}
    s_lshl_b32 s15, s62, 7
    s_add_u32 s58, s58, s15
    s_lshl_b32 s62, s62, 2
    """)
    stamp(a, 1, "hi")
    a(f"""
    s_mov_b32 s11, 0x3f803f80
    s_mul_i32 s12, s60, {16*320}
    s_lshl_b32 s13, s52, 4
    s_add_u32 s12, s12, s13
    s_add_u32 s12, s12, {WS_CSUM}
    v_lshrrev_b32 v2, 2, v1
    v_mul_u32_u24 v2, 320, v2
    v_and_b32 v3, 3, v1
    v_lshl_add_u32 v2, v3, 2, v2
    v_add_u32 v2, s12, v2
    v_add_u32 v3, {192*320}, v2
    """)
    for r in range(2):
        a(f"s_waitcnt vmcnt({4 + r})")
        stamp(a, 2 + r, "hi")
        a(f"s_lshl_b32 s57, s60, 2\ns_add_u32 s57, s57, {48*(1 - r)}")
        slab(a, 4096*r, 16 + 16*r, 57, 43, 6, 20, 64)
        C = 48 + 4*r
        for k in range(4):
            for c in range(4):
                a(f"v_dot2_f32_bf16 v{C+c}, v{16 + 16*r + 4*c + k}, s11, " + ("0" if k == 0 else f"v{C+c}"))
        a(f"""
        v_permlane16_swap_b32 v{C}, v{C+1}
        v_permlane16_swap_b32 v{C+2}, v{C+3}
        v_add_f32 v{C}, v{C}, v{C+1}
        v_add_f32 v{C+2}, v{C+2}, v{C+3}
        v_permlane32_swap_b32 v{C}, v{C+2}
        v_add_f32 v{C}, v{C}, v{C+2}
        global_store_dword v{3 - r}, v{C}, s[42:43] {SC}
        """)
    a(f"""
K1_H3:
    s_add_u32 s14, s14, {WS_PST}
    v_lshl_add_u32 v2, v0, 4, s14
    v_mov_b32 v4, -1
    v_mov_b32 v5, -1
    v_mov_b32 v6, -1
    v_mov_b32 v7, -1
    global_store_dwordx4 v2, v[4:7], s[42:43] {SC}
    """)
    a(f"""
K1_PF:
    s_cmp_lg_u32 s8, 4
    s_cbranch_scc1 K1_PG
    """)
    wait_init(a, "K1P", 10)
    a(f"""
K1_PG:
    """)
    stamp(a, 6, "hi")
    a("s_waitcnt vmcnt(0)")
    stamp(a, 7, "hi")
    a(f"""
    s_barrier
    s_cmp_lg_u32 s8, 4
    s_cbranch_scc1 K1_NA
    s_lshl_b32 s12, s6, 7
    s_add_u32 s9, s12, {C_WI}
    """)
    arrive(a, 9, 10)
    stamp(a, 3)
    a("K1_NA:\ns_cmp_ge_u32 s10, 240\ns_cbranch_scc1 K1_NS")
    slab_addr(a, 1280)
    srd(a, 68, 38, 0, 768 * 1280)
    for e in range(4):
        a(f"s_add_u32 m0, s56, {8192 + 1024*e}")
        a(f"s_add_u32 s13, s58, {8*1280*e}")
        a(f"buffer_load_dwordx4 v7, s[68:71], s13 offen nt lds")
    srd(a, 64, 42, WS_WO, 768 * 1280)
    a("s_mov_b32 s52, s61\ns_waitcnt vmcnt(0)")
    slab(a, 8192, 16, 62, 52, 5, 24, 64)
    a("K1_NS:\ns_barrier\ns_cmp_lt_u32 s8, 4\ns_cbranch_scc1 K1_HX")
    a("K1_HW:")
    stamp(a, 1, "cv"); stamp(a, 8, "hi")
    wsetup(a, 10, WST, 16384)
    for u in range(4): wdma(a, 10, u, u)
    for u in range(8):
        a(f"s_waitcnt vmcnt({12 if u < 5 else 4*(7 - u)})")
        wread(a, 10, u, u & 3)
        if u < 4:
            a("s_waitcnt lgkmcnt(0)")
            wdma(a, 10, u + 4, u)
    stamp(a, 2, "cv"); stamp(a, 9, "hi")
    a("s_cmp_lg_u32 s8, 4\ns_cbranch_scc1 K1_NW")
    poll8(a, "K1W", C_WI, 4, 14, sleep=4)
    a("K1_NW:")
    stamp(a, 3, "cv"); stamp(a, 10, "hi"); stamp(a, 9, "bs")
    a(f"""
    s_waitcnt lgkmcnt(0)
    s_barrier
    """)
    stamp(a, 4)
    a(f"""
    s_cmp_lg_u32 s8, 4
    s_cbranch_scc1 PH3Y
    s_cmp_lt_u32 s7, 8
    s_cbranch_scc1 PH3Y
    s_lshl_b32 s12, s6, 7
    s_add_u32 s9, s12, {C_WO}
    """)
    arrive(a, 9, 14)
    a("s_branch PH3Y\nK1_HX:")
    wsetup(a, 112, WS2, 16384)
    for u in range(4): wdma(a, 112, u, u)
    for u in range(4):
        a(f"s_waitcnt vmcnt({12 - 4*u})")
        wread(a, 112, u, u)
    stamp(a, 4)
    a("s_barrier")
```

```python
import struct
WS_HT = 0
WS_STAT1 = 0x280000
WS_CNT = 0x282000
C_S1 = WS_CNT + 192*128
C_WI = WS_CNT + 8*128
C_WO = WS_CNT + 16*128
C_S2 = WS_CNT + 64*128
C_S3 = WS_CNT + 128*128
WS_CSUM = 0x2d0000
WS_PST = 0x290000
WS_Z2 = 0x300000
WS_P = 0x600000
WS_WI = 0x900000
WS_WO = WS_WI + 640*3072
WS_STAMP = 0x1000000
LDS_FLAG = 163840 - 64
SC = "sc1"
SPIN = "0x20000"
OPT = {}
def fhex(x): return "0x%08x" % struct.unpack("<I", struct.pack("<f", x))[0]
def P(r): return f"v[{r}:{r+1}]"
def Q(r): return f"v[{r}:{r+3}]"

class Cnt:
    def __init__(self, a, name, mx): self.a = a; self.name = name; self.mx = mx; self.q = []
    def issue(self, tag, n=1): self.q.extend([tag] * n)
    def wait(self, tags):
        last = max((i for i, t in enumerate(self.q) if t in tags), default=-1)
        if last < 0: return
        n = min(len(self.q) - 1 - last, self.mx)
        self.a(f"s_waitcnt {self.name}({n})")
        del self.q[:len(self.q) - n]
    def all(self):
        self.a(f"s_waitcnt {self.name}(0)"); self.q = []

def LG(): return OPT.get('lg', 3)
NSTAMP = 12
def stamp(a, k, grp="main"):
    if not OPT.get("stamp"): return
    if k not in (0, NSTAMP - 1) and OPT.get("sg", "main") != grp: return
    a(f"s_memrealtime s[{76+2*k}:{77+2*k}]")

def padto(a, key, tag):
    if not OPT.get(key): return
    a(f"""
PAD_{tag}:
    s_memrealtime s[100:101]
    s_waitcnt lgkmcnt(0)
    s_sub_u32 s100, s100, s76
    s_cmp_lt_u32 s100, {OPT[key]}
    s_cbranch_scc1 PAD_{tag}
    """)

def stamp_out(a, tag):
    if not OPT.get("stamp"): return
    a("s_waitcnt vmcnt(0)")
    stamp(a, NSTAMP - 1)
    a("s_waitcnt lgkmcnt(0)")
    for i in range(NSTAMP): a(f"v_mov_b32 v{4+i}, s{76+2*i}")
    if OPT.get("dbg"):
        if tag == OPT["dbg"]:
            for i in range(1, NSTAMP): a(f"v_subrev_u32 v{4+i}, s76, v{4+i}")
            a(f"""
            v_mov_b32 v2, 16
            s_cmp_lg_u32 s3, 0
            s_cbranch_scc1 ST_{tag}
            s_cmp_lg_u32 s2, 200
            s_cbranch_scc1 ST_{tag}
            s_mov_b64 exec, 1
            global_store_dwordx4 v2, v[4:7], s[40:41]
            global_store_dwordx4 v2, v[8:11], s[40:41] offset:16
            global_store_dwordx4 v2, v[12:15], s[40:41] offset:32
ST_{tag}:
            """)
        return
    a(f"""
    s_lshl_b32 s74, s2, 7
    s_lshl_b32 s5, s8, 4
    s_add_u32 s74, s74, s5
    s_add_u32 s74, s74, {WS_STAMP}
    v_mov_b32 v2, s74
    s_cmp_lg_u32 s3, 0
    s_cbranch_scc1 ST_{tag}
    s_mov_b64 exec, 1
    global_store_dwordx4 v2, v[4:7], s[42:43]
    global_store_dwordx4 v2, v[8:11], s[42:43] offset:16
    global_store_dwordx4 v2, v[12:15], s[42:43] offset:32
ST_{tag}:
    """)

def entry(a, name):
    a(f"{name}:")
    if OPT.get("diag"): a("s_memrealtime s[76:77]")
    if OPT.get("stamp"):
        for k in range(1, NSTAMP): a(f"s_mov_b32 s{76+2*k}, 0")
        stamp(a, 0)
    a(f"""
    s_cmp_ge_u32 s2, 256
    s_cbranch_scc1 K_END
    s_load_dwordx16 s[16:31], s[0:1], 0
    s_load_dwordx8 s[32:39], s[0:1], 64
    s_load_dwordx4 s[40:43], s[0:1], 104
    s_load_dwordx2 s[44:45], s[0:1], 96
    v_and_b32 v1, 63, v0
    v_lshrrev_b32 v2, 6, v0
    s_and_b32 s6, s2, 7
    s_lshr_b32 s7, s2, 3
    v_readfirstlane_b32 s8, v2
    s_and_b32 s4, s6, {(1 << LG()) - 1}
    s_lshl_b32 s46, s4, {5 - LG()}
    s_lshr_b32 s9, s7, {LG()}
    s_add_u32 s46, s46, s9
    s_lshr_b32 s47, s6, {LG()}
    s_lshl_b32 s47, s47, {LG()}
    s_and_b32 s9, s7, {(1 << LG()) - 1}
    s_add_u32 s47, s47, s9
    s_and_b32 s3, s8, 3
    """)

def srd(a, r, base, off, nbytes):
    if off:
        a(f"s_add_u32 s{r}, s{base}, {off}\ns_addc_u32 s{r+1}, s{base+1}, 0")
    else:
        a(f"s_mov_b32 s{r}, s{base}\ns_mov_b32 s{r+1}, s{base+1}")
    a(f"s_mov_b32 s{r+2}, {nbytes}\ns_mov_b32 s{r+3}, 0x20000")

def allred_g(a, regs, tmp):
    for swap in ("v_permlane32_swap_b32", "v_permlane16_swap_b32"):
        for k, r in enumerate(regs): a(f"v_mov_b32 v{tmp+k}, v{r}")
        for k, r in enumerate(regs): a(f"{swap} v{r}, v{tmp+k}")
        for k, r in enumerate(regs): a(f"v_add_f32 v{r}, v{r}, v{tmp+k}")

def ln_finish(a, s, q, n, t, rcp=True):
    a(f"v_mul_f32 v{s}, {fhex(1/n)}, v{s}")
    a(f"v_mul_f32 v{t}, v{s}, v{s}")
    a(f"v_mul_f32 v{q}, {fhex(1/n)}, v{q}")
    a(f"v_sub_f32 v{q}, v{q}, v{t}")
    a(f"v_max_f32 v{q}, 0, v{q}")
    a(f"v_cvt_pk_bf16_f32 v{q}, 0, v{q}")
    a(f"v_add_f32 v{q}, {fhex(1e-5)}, v{q}")
    a(f"v_cvt_pk_bf16_f32 v{q}, 0, v{q}")
    a(f"v_sqrt_f32 v{q}, v{q}")
    if rcp:
        a(f"v_cvt_pk_bf16_f32 v{s}, 0, v{s}")
        a(f"v_cvt_pk_bf16_f32 v{q}, 0, v{q}")
        a(f"v_rcp_f32 v{q}, v{q}")

def arrive(a, sreg, vt, inc=1):
    a(f"""
    v_mov_b32 v{vt}, s{sreg}
    v_mov_b32 v{vt+1}, {inc}
    s_mov_b64 exec, 1
    global_atomic_add v{vt}, v{vt+1}, s[42:43] sc1
    s_mov_b64 exec, -1
    """)

def arrive_last(a, tag, ldsaddr, sreg, vt, rep=False):
    a(f"""
    v_mov_b32 v{vt}, {ldsaddr}
    v_mov_b32 v{vt+1}, 1
    s_mov_b64 exec, 1
    ds_add_rtn_u32 v{vt+2}, v{vt}, v{vt+1}
    s_mov_b64 exec, {"0xff" if rep else "1"}
    v_lshl_add_u32 v{vt}, v1, 10, s{sreg}
    s_waitcnt lgkmcnt(0)
    v_readfirstlane_b32 s15, v{vt+2}
    s_cmp_lg_u32 s15, 3
    s_cbranch_scc1 {tag}_NL
    global_atomic_add v{vt}, v{vt+1}, s[42:43] sc1
{tag}_NL:
    s_mov_b64 exec, -1
    """)

def warm(a, sreg, vt, rep=False):
    a(f"""
    v_lshl_add_u32 v{vt}, v1, 10, s{sreg}
    v_mov_b32 v{vt+1}, 0
    s_mov_b64 exec, {"0xff" if rep else "1"}
    global_atomic_add v{vt}, v{vt+1}, s[42:43] sc1
    s_mov_b64 exec, -1
    """)

def poll(a, tag, vaddr, want, vt, base="s[42:43]", sleep=2):
    a(f"""
    s_mov_b32 s15, 0
{tag}_PL:
    global_load_dword v{vt}, v{vaddr}, {base} sc1
    s_waitcnt vmcnt(0)
    v_cmp_gt_u32 vcc, {want}, v{vt}
    s_add_u32 s15, s15, 1
    s_cbranch_vccz {tag}_OK
    s_sleep {sleep}
    s_cmp_lt_u32 s15, {SPIN}
    s_cbranch_scc1 {tag}_PL
{tag}_OK:
    """)

def poll8(a, tag, off_expr, want, vt, sleep=2, n=8):
    a(f"v_and_b32 v{vt}, {n-1}, v1\nv_lshlrev_b32 v{vt}, 7, v{vt}\nv_add_u32 v{vt}, {off_expr}, v{vt}")
    poll(a, tag, vt, want, vt + 1, sleep=sleep)

WF = lambda mt, ks: 128 + 64*mt + 4*ks
def wsetup(a, va, lds_base, per_wave):
    a(f"""
    s_lshl_b32 s73, s46, 1
    s_lshr_b32 s13, s3, 1
    s_add_u32 s73, s73, s13
    s_lshl_b32 s73, s73, 17
    s_lshr_b32 s13, s8, 2
    s_lshl_b32 s13, s13, 1
    s_and_b32 s9, s8, 1
    s_add_u32 s13, s13, s9
    s_lshl_b32 s13, s13, 10
    s_add_u32 s73, s73, s13
    s_lshl_b32 s9, s9, 16
    s_add_u32 s73, s73, s9
    s_xor_b32 s75, s73, 0x10000
    s_mul_i32 s72, s3, {per_wave}
    s_add_u32 s72, s72, {lds_base}
    v_lshrrev_b32 v{va}, 3, v1
    v_lshrrev_b32 v{va+1}, 4, v1
    v_and_b32 v{va+2}, 7, v1
    v_xor_b32 v{va+1}, v{va+1}, v{va+2}
    v_lshlrev_b32 v{va}, 12, v{va}
    v_lshl_add_u32 v{va}, v{va+1}, 4, v{va}
    v_xor_b32 v{va+1}, 64, v{va}
    v_add_u32 v{va+1}, {8*4096 - 1024}, v{va+1}
    v_and_b32 v{va+3}, 15, v1
    v_lshrrev_b32 v{va+2}, 1, v{va+3}
    v_lshlrev_b32 v{va+2}, 4, v{va+2}
    v_lshl_add_u32 v{va+2}, v{va+3}, 7, v{va+2}
    v_and_b32 v{va+3}, 48, v1
    v_xor_b32 v{va+2}, v{va+2}, v{va+3}
    v_add_u32 v{va+2}, s72, v{va+2}
    v_xor_b32 v{va+3}, 64, v{va+2}
    """)
    srd(a, 68, 34, 0, 2048 * 4096)

def wdma(a, va, u, slot):
    for mt in range(2):
        a(f"s_add_u32 m0, s72, {4096*slot + 2048*mt}")
        a(f"s_add_u32 s13, s{(73, 75)[mt]}, {128*u}")
        a(f"buffer_load_dwordx4 v{va}, s[68:71], s13 offen lds")
        a(f"buffer_load_dwordx4 v{va+1}, s[68:71], s13 offen offset:1024 lds")

def wread(a, va, u, slot):
    for ks in range(2):
        for mt in range(2):
            a(f"ds_read_b128 {Q(WF(mt, 2*u + ks))}, v{va+2+ks} offset:{4096*slot + 2048*mt}")
```

```python
import numpy as np
from layout import *

def pipeline(a, j0, j1, reads, mfmas, pre, tail_reads=None, after_prologue=None):
    lg = Cnt(a, "lgkmcnt", 15)
    def emit(r): a(r[1]); lg.issue(r[0])
    for j in (j0, j0 + 1):
        for r in reads(j): emit(r)
    if after_prologue: after_prologue()
    for j in range(j0, j1):
        pre(j)
        nxt = reads(j + 2) if j + 2 < j1 else (list(tail_reads) if (tail_reads and j == j1 - 1) else [])
        ms = mfmas(j)
        extra = len(nxt) - len(ms)
        if OPT.get("mw", 1) and j > j0: lg.wait(set().union(*[t for t, _ in ms]))
        for k, (tags, text) in enumerate(ms):
            lg.wait(tags)
            a(text)
            if nxt: emit(nxt.pop(0))
            if extra > 0 and k >= len(ms) - extra and nxt: emit(nxt.pop(0))
    return lg

K3_NS = 5
K3_TR = 81920
K3_ST = K3_TR + 4 * 32 * 112
K3_RING = 163328 - K3_NS * 12288
K3_CS = K3_ST + 512
assert K3_ST % 256 == 0 and K3_CS + 1024 <= K3_RING

Z1R = 20

HR = 22

def gen_k3(a):
    def common():
        a("""
        v_and_b32 v2, 15, v1
        v_lshrrev_b32 v3, 4, v1
        s_lshr_b32 s10, s3, 1
        s_and_b32 s11, s3, 1
        """)
        a(f"""
        v_lshrrev_b32 v9, 3, v1
        v_and_b32 v10, 7, v1
        v_and_b32 v11, 6, v9
        v_xor_b32 v10, v10, v11
        v_lshlrev_b32 v9, 7, v9
        v_lshl_add_u32 v5, v10, 4, v9
        s_mul_i32 s12, s46, 81920
        v_add_u32 v5, s12, v5
        s_lshl_b32 s12, s3, 11
        v_add_u32 v4, s12, v5
        s_mul_i32 s59, s3, 3072
        s_mul_i32 s12, s47, {20*6144}
        s_add_u32 s12, s12, s59
        v_lshl_add_u32 v6, v1, 4, s12
        s_lshl_b32 s14, s3, 11
        s_add_u32 s59, s59, {K3_RING}
        """)
        srd(a, 48, 42, WS_HT, 640 * 4096)
        srd(a, 52, 42, WS_WI, 640 * 3072)
    def mk_dma(vm):
        def dma_h(i):
            if i >= 10: return
            a(f"s_add_u32 m0, s14, {8192*i}")
            a(f"s_mov_b32 s56, {8192*i}")
            a(f"buffer_load_dwordx4 v4, s[48:51], s56 offen {SC} lds")
            a(f"buffer_load_dwordx4 v4, s[48:51], s56 offen offset:1024 {SC} lds")
            vm.issue(i, 2)
        def dma(i):
            if i >= 20: return
            a(f"s_add_u32 m0, s59, {12288*((i + 2) % K3_NS)}")
            a(f"s_mov_b32 s57, {12288*(i % 10) + (8*20*6144 if i < 10 else 0)}")
            for e in range(3):
                a(f"buffer_load_dwordx4 v6, s[52:55], s57 offen offset:{1024*e} {SC} lds")
            vm.issue(i, 3)
        return dma, dma_h
    CS = lambda nt: 24 + 4*nt
    ACC = lambda mt, nt: 36 + 12*mt + 4*nt
    FH = lambda b, mt: 60 + 20*b + 4*mt
    FW = lambda b, nt: 68 + 20*b + 4*nt
    TMP = 100; GC = 120
    MR = lambda mt: 122 + 2*mt
    ST = 20; SA = 20; SB = 124; ONE = 8
    def csload(vm, ph, C0=24, T0=36):
        a(f"""
        s_mul_i32 s12, s47, {24*320}
        s_mul_i32 s13, s11, {12*320}
        s_add_u32 s12, s12, s13
        s_mul_i32 s13, s10, {192*320}
        s_add_u32 s12, s12, s13
        s_add_u32 s12, s12, {WS_CSUM}
        v_mul_u32_u24 v9, 320, v3
        v_lshl_add_u32 v9, v2, 4, v9
        v_add_u32 v9, s12, v9
        """)
        for r in range(12): a(f"v_mov_b32 v{T0+r}, 0")
        for nt in range(3): a(f"global_load_dwordx4 {Q(C0 + 4*nt)}, v9, s[42:43] offset:{1280*nt} {SC}")
        a("s_mov_b32 exec_lo, 0x000f000f\ns_mov_b32 exec_hi, 0x000f000f")
        for nt in range(3): a(f"global_load_dwordx4 {Q(T0 + 4*nt)}, v9, s[42:43] offset:{1280*nt + 256} {SC}")
        a("s_mov_b64 exec, -1")
        vm.issue("cs", 6)
    def csred(vm, C0=24, T0=36):
        vm.wait({"cs"})
        for r in range(12): a(f"v_add_f32 v{C0+r}, v{C0+r}, v{T0+r}")
        for sh in (8, 4, 2, 1):
            for r in range(12): a(f"v_add_f32_dpp v{C0+r}, v{C0+r}, v{C0+r} row_ror:{sh} row_mask:0xf bank_mask:0xf")
    def setup(isx):
        a(f"""
        v_lshrrev_b32 v9, 2, v1
        v_lshrrev_b32 v10, 1, v9
        v_and_b32 v10, 3, v10
        v_and_b32 v11, 3, v2
        v_lshlrev_b32 v11, 3, v11
        s_mov_b32 s63, {"s11" if isx else "0"}
        s_lshl_b32 s12, s10, 1
        s_add_u32 s12, s12, s63
        v_xor_b32 v12, s12, v10
        v_xor_b32 v13, 1, v12
        v_lshl_add_u32 v19, v9, 7, v11
        v_lshl_add_u32 v12, v12, 5, v19
        v_lshl_add_u32 v13, v13, 5, v19
        v_add_u32 v14, 40960, v12
        v_add_u32 v15, 40960, v13
        s_mul_i32 s12, s11, 3072
        s_add_u32 s12, s12, {K3_RING}
        v_lshl_add_u32 v16, v1, 4, s12
        s_lshl_b32 s12, s10, 8
        s_lshl_b32 s13, s63, 7
        s_add_u32 s12, s12, s13
        s_add_u32 s12, s12, {K3_ST}
        v_lshl_add_u32 v17, v2, 3, s12
        v_xor_b32 v7, 0x80, v17
        v_mov_b32 v{GC}, {fhex(-2.302208198)}
        v_mov_b32 v{GC+1}, {fhex(-0.1029432397)}
        """)
    def reads(j):
        st = j >> 1; b = j % 3; kk = j % 20
        ho = kk * 4096; hb = 12
        if ho >= 40960: ho -= 40960; hb = 14
        wo = 12288 * ((st + 2) % K3_NS) + (j & 1) * 6144
        h = [((j, "h", mt), f"ds_read_b64_tr_b16 {P(FH(b, mt) + 2*h)}, v{hb+mt} offset:{ho + 2048*h}") for mt in range(2) for h in range(2)]
        w = [((j, "w", nt), f"ds_read_b128 {Q(FW(b, nt))}, v16 offset:{wo + 1024*nt}") for nt in range(3)]
        return h[:2] + w + h[2:]
    WR = lambda j, nt: 128 + 12*(j - 10) + 4*nt
    NWR = OPT.get("nwr", 10)
    def wrl(vm, j):
        a(f"s_mov_b32 s57, {8*20*6144 + 6144*j}")
        for nt in range(3): a(f"buffer_load_dwordx4 {Q(WR(j, nt))}, v126, s[52:55], s57 offen offset:{1024*nt} {SC}")
        vm.issue(("wr", j), 3)
    def mainloop(j0, vm):
        def mf(j):
            b = j % 3
            return [({(j, "h", mt), (j, "w", nt)},
                     f"v_mfma_f32_16x16x32_bf16 {Q(ACC(mt, nt))}, {Q(FW(b, nt))}, {Q(FH(b, mt))}, " + ("0" if j == j0 else Q(ACC(mt, nt))))
                    for mt in range(2) for nt in range(3)] + ([] if j0 else [
                    ({(j, "h", 0)}, f"v_mfma_f32_16x16x32_bf16 {Q(SA)}, {Q(ONE)}, {Q(FH(b, 0))}, " + ("0" if j == 0 else Q(SA))),
                    ({(j, "h", 0)}, f"v_mfma_f32_16x16x32_bf16 {Q(SB)}, {Q(FH(b, 0))}, {Q(FH(b, 0))}, " + ("0" if j == 0 else Q(SB)))])
        def pre(j):
            if j in (0, 2, 4, 6, 8, 10, 12, 14, 16):
                stamp(a, (j % 20) // 2 + 1, "p3a" if j < 20 else "p3b")
                a("s_barrier")
        pipeline(a, j0, j0 + 20, reads, mf, pre)
    def gelu_tile(acc, cs, mr, t=100):
        for h in (0, 2): a(f"v_pk_fma_f32 {P(acc+h)}, {P(cs+h)}, {P(mr)}, {P(acc+h)} op_sel:[0,0,0] op_sel_hi:[1,0,1] neg_lo:[1,0,0] neg_hi:[1,0,0]")
        for h in (0, 2): a(f"v_pk_mul_f32 {P(acc+h)}, {P(acc+h)}, {P(mr)} op_sel:[0,1] op_sel_hi:[1,1]")
        for h in (0, 2): a(f"v_pk_mul_f32 {P(t+h)}, {P(acc+h)}, {P(acc+h)}")
        for h in (0, 2): a(f"v_pk_fma_f32 {P(t+h)}, {P(t+h)}, {P(GC)}, {P(GC)} op_sel:[0,1,0] op_sel_hi:[1,1,0]")
        for h in (0, 2): a(f"v_pk_mul_f32 {P(t+h)}, {P(t+h)}, {P(acc+h)}")
        for r in range(4): a(f"v_exp_f32 v{t+r}, v{t+r}")
        for r in range(4): a(f"v_add_f32 v{t+r}, 1.0, v{t+r}")
        for r in range(4): a(f"v_rcp_f32 v{t+r}, v{t+r}")
        for h in (0, 2): a(f"v_pk_mul_f32 {P(acc+h)}, {P(acc+h)}, {P(t+h)}")
    def rd_mr():
        for mt in range(2): a(f"ds_read_b64 {P(MR(mt))}, v{(17, 7)[mt]}")

    a("PH3X:")
    common(); setup(True)
    vm = Cnt(a, "vmcnt", 63); dma, dma_h = mk_dma(vm)
    a("s_cmp_lt_u32 s7, 12\ns_cbranch_scc1 K3_NA")
    a(f"s_lshl_b32 s9, s6, 7\ns_add_u32 s9, s9, {C_S1}\ns_waitcnt vmcnt(0)")
    stamp(a, 4, "cv"); stamp(a, 10, "bs")
    padto(a, "pv", "V")
    arrive_last(a, "K1A", LDS_FLAG + 16, 9, 20, rep=True)
    stamp(a, 4)
    a("s_waitcnt lgkmcnt(0)\ns_barrier\nK3_NA:")
    csload(vm, None, 60, 72)
    csred(vm, 60, 72)
    a(f"""
    s_lshl_b32 s12, s46, 13
    s_lshl_b32 s13, s10, 8
    s_add_u32 s12, s12, s13
    s_add_u32 s12, s12, {WS_PST}
    s_lshl_b32 s13, s11, 4
    v_and_b32 v19, 31, v1
    v_xor_b32 v19, s13, v19
    v_lshl_add_u32 v19, v19, 3, s12
    s_lshl_b32 s13, s47, 1
    s_add_u32 s13, s13, s11
    s_lshl_b32 s13, s13, 9
    v_add_u32 v18, s13, v19
    v_lshrrev_b32 v10, 5, v1
    v_lshl_add_u32 v19, v10, 12, v19
    v_and_b32 v122, 3, v1
    """)
    for r in range(4): a(f"v_mov_b32 v{ONE+r}, 0x3f803f80")
    a("s_cmp_ge_u32 s7, 12\ns_cbranch_scc1 K3_NB\ns_waitcnt lgkmcnt(0)\ns_barrier\ns_barrier\nK3_NB:")
    a(f"s_lshl_b32 s12, s3, 8\ns_add_u32 s12, s12, {K3_CS}\nv_lshl_add_u32 v4, v3, 4, s12")
    for nt in range(3): a(f"ds_write_b128 v4, {Q(60 + 4*nt)} offset:{64*nt}")
    a(f"s_lshl_b32 s12, s11, 8\ns_add_u32 s12, s12, {K3_CS + 512}\nv_lshl_add_u32 v4, v3, 4, s12")
    stamp(a, 10, "p3a")
    a(f"s_setprio {OPT.get('xp', 3)}\ns_barrier\ns_barrier")
    stamp(a, 5)
    mainloop(0, vm)
    for nt in range(3): a(f"ds_read_b128 {Q(CS(nt))}, v4 offset:{64*nt}")
    padto(a, "pa", "M")
    stamp(a, 6)
    a(f"""
    v_cmp_eq_u32 vcc, 1, v122
    v_cndmask_b32 v{SA+1}, v{SB}, v{SB+1}, vcc
    v_cmp_eq_u32 vcc, 2, v122
    v_cndmask_b32 v{SA+1}, v{SA+1}, v{SB+2}, vcc
    v_cmp_eq_u32 vcc, 3, v122
    v_cndmask_b32 v{SA+1}, v{SA+1}, v{SB+3}, vcc
    """)
    ln_finish(a, SA, SA+1, 640, TMP)
    a(f"""
    s_mov_b32 exec_lo, 0x00f0000f
    s_mov_b32 exec_hi, 0xf0000f00
    ds_write_b64 v17, {P(SA)}
    s_mov_b64 exec, -1
    s_waitcnt lgkmcnt(0)
    s_barrier
    """)
    rd_mr()
    a("s_waitcnt lgkmcnt(0)")
    SQ = lambda mt: 104 + 4*mt
    for mt in range(2):
        for nt in range(3):
            acc = ACC(mt, nt)
            gelu_tile(acc, CS(nt), MR(mt))
            if nt == 0:
                a(f"v_pk_add_f32 {P(SQ(mt))}, {P(acc)}, {P(acc+2)}")
                a(f"v_pk_mul_f32 {P(SQ(mt)+2)}, {P(acc)}, {P(acc)}")
                a(f"v_pk_fma_f32 {P(SQ(mt)+2)}, {P(acc+2)}, {P(acc+2)}, {P(SQ(mt)+2)}")
            else:
                for h in (0, 2):
                    a(f"v_pk_add_f32 {P(SQ(mt))}, {P(SQ(mt))}, {P(acc+h)}")
                    a(f"v_pk_fma_f32 {P(SQ(mt)+2)}, {P(acc+h)}, {P(acc+h)}, {P(SQ(mt)+2)}")
    for mt in range(2):
        a(f"v_add_f32 v{ST+2*mt}, v{SQ(mt)}, v{SQ(mt)+1}")
        a(f"v_add_f32 v{ST+2*mt+1}, v{SQ(mt)+2}, v{SQ(mt)+3}")
    a(f"""
    v_permlane16_swap_b32 v{ST}, v{ST+2}
    v_permlane16_swap_b32 v{ST+1}, v{ST+3}
    v_pk_add_f32 {P(ST)}, {P(ST)}, {P(ST+2)}
    v_mov_b32 v{ST+2}, v{ST}
    v_mov_b32 v{ST+3}, v{ST+1}
    v_permlane32_swap_b32 v{ST}, v{ST+2}
    v_permlane32_swap_b32 v{ST+1}, v{ST+3}
    v_pk_add_f32 {P(ST)}, {P(ST)}, {P(ST+2)}
    v_max_f32 v{ST+1}, 0, v{ST+1}
    s_mov_b32 exec_hi, 0
    global_store_dwordx2 v18, {P(ST)}, s[42:43] sc1
    s_mov_b32 exec_hi, -1
    """)
    vm.issue("pst")
    stamp(a, 1, "cv2")
    a("s_barrier")
    a(f"s_mul_i32 s12, s47, 10240\nv_add_u32 v9, s12, v12")
    for nt in range(5): a(f"ds_read_b64_tr_b16 {P(HR + 2*nt)}, v9 offset:{2048*nt}")
    a(f"""
    s_mul_i32 s12, s3, {32*112}
    s_add_u32 s12, s12, {K3_TR}
    v_mul_u32_u24 v11, 112, v2
    v_lshl_add_u32 v11, v3, 3, v11
    v_add_u32 v11, s12, v11
    s_lshl_b32 s13, s11, 1
    v_xor_b32 v13, s13, v3
    v_lshrrev_b32 v12, 2, v2
    v_lshl_add_u32 v12, v13, 3, v12
    v_mul_u32_u24 v12, 112, v12
    v_and_b32 v13, 3, v2
    v_lshl_add_u32 v12, v13, 3, v12
    v_add_u32 v12, s12, v12
    s_lshl_b32 s12, s47, 5
    s_add_u32 s12, s12, s46
    s_mul_i32 s12, s12, 12288
    s_mul_i32 s13, s3, 3072
    s_add_u32 s12, s12, s13
    s_add_u32 s12, s12, {WS_Z2}
    v_lshl_add_u32 v10, v1, 4, s12
    """)
    G = 60
    def pstl():
        for k in range(8): a(f"global_load_dwordx2 {P(G + 2*k)}, v19, s[42:43] offset:{512*k} sc1")
    NE = OPT['ne'] if 'ne' in OPT else 2 if OPT.get('qs', 14) >= 14 else (1 if OPT.get('qs', 14) >= 12 else 0)
    wsetup(a, 112, 0, 4096)
    stamp(a, 1, "x2")
    a("s_waitcnt lgkmcnt(0)\ns_barrier")
    stamp(a, 2, "x2")
    pstl()
    for u in range(NE): wdma(a, 112, 4 + u, 4*u)
    a(f"s_mov_b32 s58, 0\ns_waitcnt vmcnt({4*NE})")
    a("K3_POLL:")
    a(f"v_max_u32 v13, v{G}, v{G+1}")
    for k in range(1, 8): a(f"v_max3_u32 v13, v13, v{G+2*k}, v{G+2*k+1}")
    a(f"""
    v_cmp_eq_u32 vcc, -1, v13
    s_add_u32 s58, s58, 1
    s_cbranch_vccz K3_READY
    s_cmp_ge_u32 s58, {SPIN}
    s_cbranch_scc1 K3_READY
    s_sleep 1
    """)
    pstl()
    a("s_waitcnt vmcnt(0)\ns_branch K3_POLL\nK3_READY:")
    padto(a, "pb", "N")
    stamp(a, 2, "cv2"); stamp(a, 3, "x2")
    for d, e in ((0, 2), (4, 6), (8, 10), (12, 14), (0, 4), (8, 12), (0, 8)):
        for h in range(2): a(f"v_add_f32 v{G+d+h}, v{G+d+h}, v{G+e+h}")
    a(f"""
    v_mov_b32 v{G+2}, v{G}
    v_mov_b32 v{G+3}, v{G+1}
    v_permlane32_swap_b32 v{G}, v{G+2}
    v_permlane32_swap_b32 v{G+1}, v{G+3}
    v_add_f32 v{G}, v{G}, v{G+2}
    v_add_f32 v{G+1}, v{G+1}, v{G+3}
    """)
    ln_finish(a, G, G+1, 768, G+4)
    a(f"v_mul_f32 v{G}, v{G}, -v{G+1}")
    a(f"""
    v_mov_b32 v{G+2}, v{G}
    v_mov_b32 v{G+3}, v{G+1}
    v_permlane16_swap_b32 v{G}, v{G+2}
    v_permlane16_swap_b32 v{G+1}, v{G+3}
    """)
    O = 80
    stamp(a, 4, "x2")
    for nt in range(3):
        for mt in range(2):
            acc = ACC(mt, nt); mr = G + 2*mt
            for r in range(4): a(f"v_fma_f32 v{acc+r}, v{acc+r}, v{mr+1}, v{mr}")
            a(f"v_cvt_pk_bf16_f32 v{acc}, v{acc}, v{acc+1}")
            a(f"v_cvt_pk_bf16_f32 v{acc+1}, v{acc+2}, v{acc+3}")
            a(f"ds_write_b64 v11, {P(acc)} offset:{16*112*mt + 32*nt}")
        for h in range(2):
            a(f"ds_read_b64_tr_b16 {P(O + 4*nt + 2*h)}, v12 offset:{32*nt + 4*112*h}")
        if nt:
            a(f"s_waitcnt lgkmcnt(4)")
            a(f"global_store_dwordx4 v10, {Q(O + 4*(nt-1))}, s[42:43] offset:{1024*(nt-1)} {SC}")
    a(f"s_waitcnt lgkmcnt(0)")
    a(f"global_store_dwordx4 v10, {Q(O + 8)}, s[42:43] offset:2048 {SC}")
    stamp(a, 5, "x2")
    a(f"""
    s_lshl_b32 s12, s47, 10
    s_add_u32 s12, s12, {C_S2}
    s_lshl_b32 s58, s4, 7
    s_add_u32 s58, s58, s12
    s_waitcnt vmcnt(0)
    """)
    for u in range(NE): wread(a, 112, 4 + u, 4*u)
    padto(a, "pc", "O")
    stamp(a, 6, "x2")
    arrive_last(a, "K3A", LDS_FLAG + 20, 58, 10)
    stamp(a, 7, "x2")
    stamp(a, 7); stamp(a, 3, "cv2")
    a("s_setprio 0")
    a("s_barrier")
    stamp(a, 8, "x2")
    for u in range(NE, 4): wdma(a, 112, 4 + u, 4*u)
    wo_setup(a)
    NS2 = OPT.get("ns2", 2)
    for c in range(NS2): wo(a, c)
    for u in range(NE, 4):
        a(f"s_waitcnt vmcnt({12 + 5*NS2 - 4*u})"); wread(a, 112, 4 + u, 4*u)
    stamp(a, 9, "x2")
    a("s_branch PH4")

    a("PH3Y:")
    common(); setup(False)
    vm = Cnt(a, "vmcnt", 63); dma, dma_h = mk_dma(vm)
    a(f"""
    s_lshl_b32 s12, s10, 12
    s_lshl_b32 s13, s10, 6
    v_xor_b32 v12, s13, v12
    v_xor_b32 v13, s13, v13
    v_add_u32 v12, s12, v12
    v_add_u32 v13, s12, v13
    v_xor_b32 v14, 64, v12
    v_xor_b32 v15, 64, v13
    v_lshl_add_u32 v16, v1, 4, s59
    """)
    a(f"""
    s_lshl_b32 s12, s6, 10
    s_add_u32 s12, s12, {C_S1}
    v_and_b32 v20, 7, v1
    v_lshl_add_u32 v20, v20, 7, s12
    """)
    stamp(a, 10, "bs")
    a("s_barrier")
    def coop(off):
        a(f"""
        s_lshr_b32 s12, s7, 3
        s_lshl_b32 s12, s12, 2
        s_add_u32 s12, s12, s3
        s_mul_i32 s12, s12, {30*128}
        s_mul_i32 s13, s47, 122880
        s_add_u32 s12, s12, s13
        s_add_u32 s12, s12, {WS_WI + off}
        v_min_u32 v9, 29, v1
        v_lshl_add_u32 v9, v9, 7, s12
        global_load_dword v127, v9, s[42:43] sc1
        """)
        vm.issue("t", 1)
    if OPT.get("ep", 0): a("s_cmp_lt_u32 s7, 12\ns_cbranch_scc1 K3_PD")
    for i in range(5): dma(i)
    a("K3_PD:")
    if OPT.get("c2", 0): coop(8*122880 + 61440)
    if OPT.get("z0", 99) < 0: coop(0)
    a("s_cmp_lg_u32 s8, 4\ns_cbranch_scc1 K3_NP")
    poll(a, "S1", 20, 20, 21, sleep=OPT.get("sl1", 1))
    padto(a, "p1", "A")
    a("K3_NP:\ns_barrier")
    stamp(a, 5)
    for i in range(4): dma_h(i)
    for s in range(11):
        vm.wait({s} if s < 10 else set())
        if s: stamp(a, s, "p3a")
        a("s_barrier")
        if s >= 2: dma(s + 3)
        dma_h(s + 4)
        if s == 10: dma(14)
        if s == OPT.get("qt", 6) and not OPT.get("qe", 1):
            a(f"""
            s_lshl_b32 s12, s7, 15
            s_lshl_b32 s13, s4, 20
            s_add_u32 s12, s12, s13
            s_lshl_b32 s13, s3, 13
            s_add_u32 s12, s12, s13
            v_bfe_u32 v9, v1, 4, 1
            v_lshlrev_b32 v9, 12, v9
            v_or_b32 v8, 4, v2
            v_lshl_add_u32 v9, v8, 7, v9
            v_add_u32 v9, s12, v9
            global_load_dword v127, v9, s[34:35] {OPT.get('ntq', 'nt')}
            """)
            vm.issue("t", 1)
        if s == OPT.get("z0", 99): coop(0)
        if s == OPT.get("zs", 99): coop(61440)
    stamp(a, 6)
    AY = lambda lt, nt: 20 + 12*lt + 4*nt
    YH = lambda b, lt: 68 + 28*b + 4*lt
    YW = lambda b, nt: 84 + 28*b + 4*nt
    lg = Cnt(a, "lgkmcnt", 15)
    def yreads(st):
        b = st & 1; ho = 8192 * ((st - 10) % 5); wo_ = 12288 * ((st + 2) % K3_NS)
        h = [((st, "h", lt), f"ds_read_b64_tr_b16 {P(YH(b, lt) + 2*hf)}, v{12+lt} offset:{ho + 2048*hf}") for lt in range(4) for hf in range(2)]
        w = [((st, "w", nt), f"ds_read_b128 {Q(YW(b, nt))}, v16 offset:{wo_ + 1024*nt}") for nt in range(3)]
        return w + h
    a("s_cmp_lg_u32 s8, 4\ns_cbranch_scc1 K3O_OK")
    poll8(a, "K3O", C_WO, 4, 8)
    vm.wait({10})
    for t, r in yreads(10): a(r); lg.issue(t)
    a("s_barrier")
    for st in range(10, 20):
        stamp(a, st - 9, "p3b")
        lg.wait({(st, "w", 2)} if not OPT.get("mw2", 0) else {(st, "h", 3)})
        QS = OPT.get("qs", 14)
        if OPT.get("dfr", 0):
            if st == QS: a("s_barrier")
            if st == QS + 1:
                for i in range(15, st + 5): dma(i)
            if st > QS: dma(st + 5)
        else:
            dma(st + 5)
            if st == QS: a("s_barrier")
        if st == 14:
            for lt in range(4): a(f"v_add_u32 v{12+lt}, 40960, v{12+lt}")
        nxt = []
        if st < 19: vm.wait({st + 1}); nxt = yreads(st + 1)
        for lt in range(4):
            for nt in range(3):
                lg.wait({(st, "h", lt)})
                a(f"v_mfma_f32_16x16x32_bf16 {Q(AY(lt, nt))}, {Q(YW(st & 1, nt))}, {Q(YH(st & 1, lt))}, " + ("0" if st == 10 else Q(AY(lt, nt))))
                if nxt: t, r = nxt.pop(0); a(r); lg.issue(t)
    stamp(a, 7); stamp(a, 1, "cv2")
    a(f"""
    v_mov_b32 v8, {LDS_FLAG + 32}
    v_mov_b32 v10, 1
    s_mul_i32 s12, s3, 12288
    s_add_u32 s12, s12, {K3_RING}
    v_lshl_add_u32 v11, v1, 4, s12
    s_lshl_b32 s12, s3, 7
    s_add_u32 s12, s12, {K3_ST}
    v_lshl_add_u32 v17, v2, 3, s12
    v_lshlrev_b32 v18, 4, v3
    v_add_u32 v18, {K3_CS}, v18
    v_mov_b32 v{GC}, {fhex(-2.302208198)}
    v_mov_b32 v{GC+1}, {fhex(-0.1029432397)}
    """)
    for lt in range(4):
        for nt in range(3): a(f"ds_write_b128 v16, {Q(AY(lt, nt))} offset:{12288*lt + 1024*nt}")
    a("s_mov_b64 exec, 1\nds_add_u32 v8, v10\ns_mov_b64 exec, -1")
    a(f"ds_read_b64 {P(MR(0))}, v17")
    for p in range(6): a(f"ds_read_b128 {Q(80 + 4*p)}, v18 offset:{256*(p // 3) + 64*(p % 3)}")
    a("""
K3_YW:
    ds_read_b32 v10, v8
    s_waitcnt lgkmcnt(0)
    v_readfirstlane_b32 s12, v10
    s_cmp_lt_u32 s12, 4
    s_cbranch_scc1 K3_YW
    """)
    for p in range(6):
        for k in range(2): a(f"ds_read_b128 {Q(32 + 8*p + 4*k)}, v11 offset:{6144*k + 1024*p}")
    def z1_tiles(ps):
        for p in ps:
            acc = 32 + 8*p
            for h in (0, 2): a(f"v_pk_add_f32 {P(acc+h)}, {P(acc+h)}, {P(acc+4+h)}")
            gelu_tile(acc, 80 + 4*p, MR(0), 116)
            a(f"v_cvt_pk_bf16_f32 v{Z1R + 2*p}, v{acc}, v{acc+1}")
            a(f"v_cvt_pk_bf16_f32 v{Z1R + 2*p + 1}, v{acc+2}, v{acc+3}")
    a("s_waitcnt lgkmcnt(0)"); stamp(a, 2, "cv2"); a("s_barrier")
    NZ = OPT.get("nz", 6)
    z1_tiles(range(NZ))
    global late_z1
    late_z1 = lambda: z1_tiles(range(NZ, 6))
    stamp(a, 4, "cv2")
    if OPT.get("wot", 0):
        a(f"""
        s_lshl_b32 s12, s7, 2
        s_add_u32 s12, s12, s3
        s_mul_i32 s12, s12, {60*128}
        s_add_u32 s12, s12, {WS_WO}
        v_min_u32 v9, 59, v1
        v_lshl_add_u32 v9, v9, 7, s12
        global_load_dword v19, v9, s[42:43] sc1
        """)

def decode_z2(v):
    v = v.reshape(8, 32, 2, 6, 4, 16, 8)
    return v.transpose(1, 2, 4, 6, 0, 3, 5).reshape(2048, 768)
def decode_p(v):
    v = v.reshape(32, 4, 8, 3, 4, 16, 2, 4)
    return v.transpose(0, 1, 5, 2, 3, 6, 4, 7).reshape(2048, 768)

K4_NS = 4
SLOT = 24576
RED = 61440
WOC = [98304, 118784, 139264, 0, 20480, 40960]
LDS_TOTAL = 163840

def wo_setup(a):
    a(f"""
    s_mul_i32 s62, s3, 5120
    s_mul_i32 s12, s47, {24*5120}
    s_add_u32 s12, s12, s62
    v_lshl_add_u32 v4, v1, 4, s12
    """)
    srd(a, 64, 42, WS_WO, 768 * 1280)

def wo(a, c, parts=(0, 1)):
    for part in parts:
        a(f"s_add_u32 m0, s62, {WOC[c] + 3072*part}")
        a(f"s_mov_b32 s56, {20480*c + 3072*part}")
        for e in range(3 - part): a(f"buffer_load_dwordx4 v4, s[64:67], s56 offen offset:{1024*e} {SC} lds")

def gen_k4(a):
    vm = Cnt(a, "vmcnt", 63)
    ACC = lambda mt, p: 32 + 24*mt + 4*p
    FZ = lambda b, p: 80 + 24*b + 4*p
    a(f"""
PH4:
    s_lshr_b32 s60, s8, 2
    s_lshl_b32 s60, s60, 1
    s_add_u32 s60, s60, s11
    s_mul_i32 s12, s60, 6144
    v_lshl_add_u32 v12, v1, 4, s12
    v_add_u32 v13, {2*SLOT}, v12
    s_mul_i32 s13, s10, 3072
    s_add_u32 s61, s12, s13
    s_mul_i32 s12, s60, {16*6144}
    s_add_u32 s12, s12, s13
    s_mul_i32 s13, s47, {32*12288}
    s_add_u32 s12, s12, s13
    v_lshl_add_u32 v6, v1, 4, s12
    v_lshlrev_b32 v16, 16, v126
    """)
    srd(a, 52, 42, WS_Z2, 2048 * 768 * 2)
    def dma(i):
        r = [f"s_add_u32 m0, s61, {SLOT*(i % K4_NS)}\ns_mov_b32 s57, {6144*i}\nbuffer_load_dwordx4 v6, s[52:55], s57 offen {SC} lds"]
        r += [f"buffer_load_dwordx4 v6, s[52:55], s57 offen offset:{1024*e} {SC} lds" for e in (1, 2)]
        return r if i < 16 else []
    def reads(i):
        so = SLOT * (i % K4_NS); hi = 0
        if so >= 2*SLOT: so -= 2*SLOT; hi = 1
        return [((i, p), f"ds_read_b128 {Q(FZ(i & 1, p))}, v{12+hi} offset:{so + 1024*p}") for p in range(6)]
    a(f"""
    s_mul_i32 s12, s3, 9216
    s_add_u32 s12, s12, {RED}
    v_lshl_add_u32 v9, v1, 4, s12
    s_xor_b32 s12, s3, 1
    s_mul_i32 s12, s12, 9216
    s_add_u32 s12, s12, {RED}
    v_lshl_add_u32 v7, v1, 4, s12
    """)
    wo_setup(a)
    a(f"""
    s_cmp_lg_u32 s8, 0
    s_cbranch_scc1 S2_OK
    s_lshl_b32 s12, s47, 10
    s_add_u32 s12, s12, {C_S2}
    """)
    poll8(a, "S2", "s12", 4, 10, sleep=OPT.get("sl2", 1))
    padto(a, "p2", "B")
    a("s_waitcnt lgkmcnt(0)\ns_barrier")
    stamp(a, 8); stamp(a, 5, "cv2"); stamp(a, 1, "p4s")
    LA = OPT.get("la", 4)
    for i in range(LA - 1):
        for r in dma(i): a(r)
        if i == 0 and OPT.get("fb0", 0): a("s_barrier")
    if OPT.get("nz", 6) < 6:
        a("s_cmp_lt_u32 s8, 4\ns_cbranch_scc1 K4_NZ"); late_z1(); a("K4_NZ:")
    stamp(a, 2, "p4s")
    a(f"s_waitcnt vmcnt({3*(LA - 2)})")
    stamp(a, 3, "p4s")
    a("s_barrier")
    for t, r in reads(0): a(r)
    for r in dma(LA - 1): a(r)
    a("s_cmp_ge_u32 s8, 4\ns_cbranch_scc1 K4_Y")
    P4Y = OPT.get("p4y", 0)
    def send(mt, q, addr, off):
        d = ACC(mt, 2*q)
        return "\n".join(f"v_cvt_pk_bf16_f32 v{d + k}, v{d + 2*k}, v{d + 2*k + 1}" for k in range(4)) + f"\nds_write_b128 {addr}, {Q(d)} offset:{off + 1024*q}"
    def mainloop(first, sends):
        vm = Cnt(a, "vmcnt", 63)
        for i in range(1, LA): vm.issue(i, 3)
        for i in range(16):
            if i >= 6: stamp(a, i - 5, "p4a")
            if i < 7: stamp(a, i + 4, "p4s")
            n0 = len(a.lines)
            vm.wait({i + 1})
            if len(a.lines) > n0: a.lines[-1] += " lgkmcnt(0)"
            else: a("s_waitcnt lgkmcnt(0)")
            if i == 15 and first: a("s_setprio 2")
            a("s_barrier")
            nxt = reads(i + 1) if i < 15 else []
            def issue():
                for r in dma(i + LA): a(r); vm.issue(i + LA)
                if 12 <= i < 15: wo(a, i - 9, (0,) if first else (1,)); vm.issue("o", 3 if first else 2)
            if first: issue()
            tiles = [(mt, p) for mt in (1, 0) for p in range(6)] if i == 15 else [(mt, p) for p in range(6) for mt in range(2)]
            for k, (mt, p) in enumerate(tiles):
                c = "0" if i == 0 else Q(ACC(mt, p))
                a(f"v_mfma_f32_16x16x32_bf16 {Q(ACC(mt, p))}, {Q(FZ(i & 1, p))}, {Q(WF(mt, i))}, {c}")
                if nxt: a(nxt.pop(0)[1])
                if i == 15 and k >= 9 and not first: a(sends.pop(0))
            if not first: issue()
        stamp(a, 9); stamp(a, 1, 't')
        for r in sends: a(r)
    a("s_mul_i32 s13, s11, 3072\nv_add_u32 v7, s13, v7\nv_add_u32 v9, s13, v9")
    mainloop(True, [send(mt, q, ("v9", "v7")[mt], 0) for mt in (1, 0) for q in range(3)])
    a("s_waitcnt lgkmcnt(0)\ns_setprio 0\ns_barrier")
    for c in range(OPT.get("ns2", 2), 3): wo(a, c)
    stamp(a, 2, 't')
    A5 = lambda nt: 32 + 4*nt
    FW = lambda b, nt: 52 + 20*b + 4*nt
    a(f"""
    s_lshl_b32 s12, s46, 2
    s_add_u32 s12, s12, s3
    s_mul_i32 s12, s12, 24576
    v_lshl_add_u32 v12, v1, 4, s12
    v_lshlrev_b32 v14, 4, v1
    v_add_u32 v15, 98304, v14
    s_mul_i32 s12, s46, {64*1280}
    s_mul_i32 s13, s3, {16*1280}
    s_add_u32 s12, s12, s13
    s_mul_i32 s13, s47, 160
    s_add_u32 s12, s12, s13
    v_mul_u32_u24 v17, 1280, v2
    v_add_u32 v17, s12, v17
    v_and_b32 v9, 1, v3
    v_lshlrev_b32 v9, 5, v9
    v_lshrrev_b32 v10, 1, v3
    v_lshl_add_u32 v9, v10, 4, v9
    v_add_u32 v18, v17, v9
    v_lshl_add_u32 v17, v3, 3, v17
    s_lshl_b32 s12, s46, 7
    s_add_u32 s12, s12, {C_S3}
    v_mov_b32 v8, s12
    """)
    for nt in range(5):
        for h in range(2):
            a(f"v_lshlrev_b32 v{A5(nt)+2*h}, 16, v{HR+2*nt+h}")
            a(f"v_and_b32 v{A5(nt)+2*h+1}, 0xffff0000, v{HR+2*nt+h}")
    srd(a, 52, 42, WS_P, 2048 * 768 * 2)
    def reads5(j):
        o = WOC[j // 4] + (j % 4) * 5120; hi = 0
        if o >= 98304: o -= 98304; hi = 1
        return [((j, nt), f"ds_read_b128 {Q(FW(j % 3, nt))}, v{14+hi} offset:{o + 1024*nt}") for nt in range(5)]
    vm = Cnt(a, "vmcnt", 63)
    PF = lambda ks: 128 + 4*ks
    def pl(ks):
        if ks >= 24: return
        if ks % 4 == 0: a(f"s_mov_b32 s57, {1024*ks}")
        a(f"buffer_load_dwordx4 {Q(PF(ks))}, v12, s[52:55], s57 offen offset:{1024*(ks % 4)} {SC}")
        vm.issue(ks)
    NP = OPT.get("np", 12)
    def sync3():
        a("s_waitcnt vmcnt(0)\ns_barrier")
        stamp(a, 4, 't')
        a("s_cmp_lg_u32 s8, 0\ns_cbranch_scc1 S3_OK")
        if OPT.get("s3b", 1): a("v_mov_b32 v9, 1\ns_mov_b64 exec, 1\nglobal_atomic_add v8, v9, s[42:43] sc1\ns_mov_b64 exec, -1")
        poll(a, "S3", 8, 8, 9, sleep=OPT.get("sl3", 1))
        padto(a, "p3", "C")
        a("s_barrier")
        stamp(a, 10); stamp(a, 5, 't')
        for ks in range(NP): pl(ks)
        stamp(a, 6, 't')
    def mf(j):
        return [({(j, nt)}, f"v_mfma_f32_16x16x32_bf16 {Q(A5(nt))}, {Q(FW(j % 3, nt))}, {Q(PF(j))}, {Q(A5(nt))}") for nt in range(5)]
    def pre5(j):
        pl(NP + j)
        vm.wait({j})
        if j == 0: stamp(a, 7, 't')
    pipeline(a, 0, 24, reads5, mf, pre5, after_prologue=sync3)
    stamp(a, 8, 't')
    O = 112
    for nt in range(5):
        acc = A5(nt)
        a(f"v_cvt_pk_bf16_f32 v{O+2*nt}, v{acc}, v{acc+1}")
        a(f"v_cvt_pk_bf16_f32 v{O+2*nt+1}, v{acc+2}, v{acc+3}")
        if nt & 1:
            o = O + 2*nt - 2
            a(f"v_permlane16_swap_b32 v{o}, v{o+2}\nv_permlane16_swap_b32 v{o+1}, v{o+3}")
            a(f"global_store_dwordx4 v18, {Q(o)}, s[44:45] offset:{32*(nt-1)} {OPT.get('of', '')}")
    a(f"global_store_dwordx2 v17, {P(O+8)}, s[44:45] offset:128 {OPT.get('of', '')}")
    padto(a, "pe", "E")
    stamp_out(a, "X")
    a("s_endpgm")
    a(f"""
K4_Y:
    s_setprio {P4Y}
    s_lshl_b32 s12, s46, 2
    s_add_u32 s12, s12, s3
    s_mul_i32 s12, s12, 24576
    s_mul_i32 s13, s47, 3072
    s_add_u32 s12, s12, s13
    s_add_u32 s12, s12, {WS_P}
    v_lshl_add_u32 v10, v1, 4, s12
    s_mov_b32 s58, 0x00003f80
    s_mov_b32 s59, 0x3f800000
    s_lshl_b32 s63, s46, 7
    s_add_u32 s63, s63, {C_S3}
    v_mov_b32 v14, s63
    v_mov_b32 v15, 1
    """)
    mainloop(False, [send(1, q, "v7", 6144) for q in range(3)])
    T = 80
    for p in range(6):
        for h in range(2):
            a(f"v_lshlrev_b32 v{T + 4*p + 2*h}, 16, v{Z1R + 2*p + h}")
            a(f"v_and_b32 v{T + 4*p + 2*h + 1}, 0xffff0000, v{Z1R + 2*p + h}")
    for p in range(6):
        for h in (0, 2): a(f"v_pk_add_f32 {P(ACC(0, p)+h)}, {P(ACC(0, p)+h)}, v[16:17] op_sel:[0,0] op_sel_hi:[1,0]")
    a(f"s_waitcnt lgkmcnt(0)\ns_setprio {OPT.get('yp', 3)}\ns_barrier")
    stamp(a, 2, 't')
    R = lambda q, j: 128 + 12*q + 4*j
    for q in range(3):
        for j in range(3): a(f"ds_read_b128 {Q(R(q, j))}, v9 offset:{3072*j + 1024*q}")
    O = 104
    for q in range(3):
        d = ACC(0, 2*q)
        for j in range(3):
            a(f"s_waitcnt lgkmcnt({8 - 3*q - j})")
            for e in range(8): a(f"v_dot2_f32_bf16 v{d + e}, v{R(q, j) + (e >> 1)}, s{58 + (e & 1)}, v{d + e}")
        for h in range(0, 8, 2): a(f"v_pk_mul_f32 {P(d+h)}, {P(d+h)}, {P(T + 8*q + h)}")
        for k in range(4): a(f"v_cvt_pk_bf16_f32 v{O + 4*q + k}, v{d + 2*k}, v{d + 2*k + 1}")
        a(f"global_store_dwordx4 v10, {Q(O + 4*q)}, s[42:43] offset:{1024*q} {SC}")
    stamp(a, 3, 't')
    a("s_waitcnt vmcnt(0)")
    stamp(a, 4, 't')
    if OPT.get("s3b", 1):
        a("s_barrier\ns_barrier")
    else:
        arrive_last(a, "K4A", LDS_FLAG + 24, 63, 8)
        a("s_barrier\ns_barrier")
    stamp(a, 10)
    stamp_out(a, "Y")
    a("K_END:\ns_endpgm")
```

```python
from asmgen import Asm
from layout import *

LOG2E = "0x3fb8aa3b"
NLOG2E = "0xbfb8aa3b"
INV2PI = "0x3e22f983"

CP = 2752
TB = (1088, 1176, 1264)
KW_STRIDE = 4 * CP
U0 = 4 * KW_STRIDE; U_STRIDE = 4608
X0 = U0 + 4 * U_STRIDE
BS0 = X0 + 16384; BS_STRIDE = 4352
KC0 = BS0 + 4 * BS_STRIDE; KC_STRIDE = 4224
AS0 = KC0 + 4 * KC_STRIDE; AS_STRIDE = 8448
WST = 163328 - 65536
WS2 = 16384
assert BS0 <= WST and AS0 + 4 * AS_STRIDE <= LDS_FLAG and WST % 128 == 0 and KC0 % 16 == 0 and KC0 - 32768 < 65536
FLAG0 = LDS_FLAG

def cmul(a, sets):
    for d, x, y, t in sets:
        a(f"v_pk_mul_f32 {P(t)}, {P(x)}, {P(y)} op_sel:[0,0] op_sel_hi:[0,1]")
    for d, x, y, t in sets:
        a(f"v_pk_fma_f32 {P(d)}, {P(x)}, {P(y)}, {P(t)} op_sel:[1,1,0] op_sel_hi:[1,0,1] neg_lo:[1,0,0]")

def kgen(a, ns, erow, vwr, vrd, SB, PKS, ACC, AF, BF, unpack, maxsrc, mid=None, fill=None):
    AR, Z1, W, ZZ, CUR, R2, R4, R6, PW, T = [lambda s, k=k: SB[s] + 2 * k for k in range(10)]
    S = range(ns); nks = 4 * ns
    unpack(AR, CUR)
    for s in S: a(f"v_mul_f32 v{AR(s)}, {LOG2E}, v{AR(s)}")
    for s in S: a(f"v_exp_f32 v{AR(s)}, v{AR(s)}")
    m = maxsrc(CUR)
    a(f"v_max3_f32 v13, abs(v{m[0]}), abs(v{m[1]}), abs(v{m[2]})")
    a(f"v_max3_f32 v14, abs(v{m[3]}), abs(v{m[4]}), abs(v{m[5]})")
    a("v_max_u32 v13, v13, v14")
    for s in S: a(f"v_cvt_pk_bf16_f32 v{AR(s)}, 0, v{AR(s)}")
    a("v_max_u32_dpp v13, v13, v13 row_ror:8 row_mask:0xf bank_mask:0xf")
    for s in S: a(f"v_pk_mul_f32 {P(AR(s))}, {P(AR(s))}, v[12:13] op_sel:[0,0] op_sel_hi:[1,0]")
    a("v_max_u32_dpp v13, v13, v13 row_ror:4 row_mask:0xf bank_mask:0xf")
    for s in S: a(f"v_mul_f32 v{AR(s)}, {NLOG2E}, v{AR(s)}")
    a("v_max_u32_dpp v13, v13, v13 row_ror:2 row_mask:0xf bank_mask:0xf")
    for s in S: a(f"v_mul_f32 v{AR(s)+1}, {INV2PI}, v{AR(s)+1}")
    a("v_max_u32_dpp v13, v13, v13 row_ror:1 row_mask:0xf bank_mask:0xf")
    def anchor(dst, p, conj=False):
        for s in S:
            if p == 1:
                a(f"v_exp_f32 v{PW(s)}, v{AR(s)}")
                a(f"v_fract_f32 v{T(s)+1}, v{AR(s)+1}")
            else:
                a(f"v_mul_f32 v{T(s)}, {fhex(p)}, v{AR(s)}")
                a(f"v_mul_f32 v{T(s)+1}, {fhex(p)}, v{AR(s)+1}")
        if p != 1:
            for s in S:
                a(f"v_exp_f32 v{PW(s)}, v{T(s)}")
                a(f"v_fract_f32 v{T(s)+1}, v{T(s)+1}")
        for s in S:
            a(f"v_cos_f32 v{dst(s)}, v{T(s)+1}")
            a(f"v_sin_f32 v{dst(s)+1}, v{T(s)+1}")
        for s in S:
            a(f"v_pk_mul_f32 {P(dst(s))}, {P(dst(s))}, {P(PW(s))} op_sel:[0,0] op_sel_hi:[1,0]" + (" neg_hi:[1,0]" if conj else ""))
    anchor(Z1, 1)
    a("""
    v_readlane_b32 s48, v13, 0
    v_readlane_b32 s49, v13, 16
    v_readlane_b32 s50, v13, 32
    v_readlane_b32 s51, v13, 48
    """)
    anchor(ZZ, 256)
    a("""
    s_max_u32 s48, s48, s49
    s_max_u32 s50, s50, s51
    s_max_u32 s48, s48, s50
    s_and_b32 s48, s48, 0x7f800000
    s_max_u32 s48, s48, 0x01000000
    s_min_u32 s48, s48, 0x7e000000
    s_sub_u32 s49, 0x7f000000, s48
    """)
    anchor(W, 8, conj=True)
    for s in S:
        a(f"v_mul_f32 v{CUR(s)}, s49, v{CUR(s)}")
        a(f"v_mul_f32 v{CUR(s)+1}, s49, -v{CUR(s)+1}")
    cnt = [0]
    def row(slot, reg):
        pk = PKS[cnt[0] & 1]; cnt[0] += 1
        for s in S:
            if reg is None: a(f"v_mov_b32 v{pk+s}, 0x3c00")
            else: a(f"v_cvt_pk_f16_f32 v{pk+s}, v{reg(s)}, v{reg(s)+1}")
        if ns == 2: a(f"ds_write_b64 {vwr}, {P(pk)} offset:{slot*erow}")
        else: a(f"ds_write_addtid_b32 v{pk} offset:{slot*erow + 32768}")
        if fill and cnt[0] % OPT.get('gp', 12) == 1: a(fill.pop(0))
    def cm(d, x, y): cmul(a, [(d(s), x(s), y(s), T(s)) for s in S])
    TMP = AR
    row(0, None); row(1, Z1)
    cm(R2, Z1, Z1); row(2, R2)
    cm(TMP, R2, Z1); row(3, TMP)
    cm(R4, R2, R2); row(4, R4)
    cm(TMP, R4, Z1); row(5, TMP)
    cm(R6, R4, R2); row(6, R6)
    cm(TMP, R6, Z1); row(7, TMP)
    row(8, ZZ)
    cm(TMP, ZZ, R2); row(9, TMP)
    cm(TMP, ZZ, R4); row(10, TMP)
    cm(TMP, ZZ, R6); row(11, TMP)
    cm(PW, ZZ, ZZ); row(12, PW)
    cm(TMP, PW, R4); row(13, TMP)
    cm(PW, PW, ZZ); row(14, PW)
    cm(TMP, PW, R4); row(15, TMP)
    for ks in range(nks): a(f"ds_read_b128 {Q(AF + 4*ks)}, {vrd} offset:{64*ks}")
    for i in range(5):
        cm(PW, PW, ZZ); row(i, PW)
    for ks in range(nks): a(f"ds_read_b128 {Q(AF + 4*nks + 4*ks)}, {vrd} offset:{64*ks}")
    for j in range(16):
        row(j, CUR); cm(CUR, CUR, W)
    for ks in range(nks): a(f"ds_read_b128 {Q(BF + 4*ks)}, {vrd} offset:{64*ks}")
    def kmfma(nt, ks):
        for mt in range(2):
            acc = ACC + 8 * nt + 4 * mt
            c = "0" if (ks == 0 and not (mid and nt == 1)) else Q(acc)
            a(f"v_mfma_f32_16x16x32_f16 {Q(acc)}, {Q(AF + 4*nks*mt + 4*ks)}, {Q(BF + 4*ks)}, {c}")
    for j in range(16):
        row(j, CUR)
        if j == 3: a("s_waitcnt lgkmcnt(4)")
        if 3 <= j < 3 + nks: kmfma(0, j - 3)
        if mid: mid(j)
        if j < 15: cm(CUR, CUR, W)
    for ks in range(nks): a(f"ds_read_b128 {Q(BF + 4*ks)}, {vrd} offset:{64*ks}")
    young = 0
    for ks in range(nks):
        a(f"s_waitcnt lgkmcnt({nks - 1 - ks + young})")
        kmfma(1, ks)
        if mid: young += mid(16 + ks)

def dt_code(a):
    a(f"""
    s_waitcnt lgkmcnt(0)
    s_lshl_b32 s14, s74, 16
    s_and_b32 s13, s74, 0xffff0000
    s_bitcmp1_b32 s10, 0
    s_cselect_b32 s13, s13, s14
    v_mov_b32 v12, {LOG2E}
    v_mul_f32 v12, s13, v12
    v_exp_f32 v12, v12
    v_cvt_pk_bf16_f32 v12, 0, v12
    """)

def wait_init(a, tag, vtmp):
    a(f"v_mov_b32 v{vtmp}, 0")
    poll(a, tag + "I", vtmp, 1, vtmp + 1, base="s[40:41]", sleep=4)

def slab(a, lds_off, FR, ct0, mul, per, nks, dsrd, stores=True):
    for c in range(4):
        for h in range(2):
            a(f"ds_read_b64_tr_b16 {P(FR + 4*c + 2*h)}, v8 offset:{lds_off + 32*c + 2048*h}")
    for c in range(4):
        a(f"""
        s_add_u32 s53, s{ct0}, {c}
        s_mul_i32 s54, s53, {mul}
        s_lshr_b32 s54, s54, 8
        s_mul_i32 s55, s54, {nks - 1}
        s_add_u32 s55, s55, s52
        s_mul_i32 s55, s55, {per}
        s_add_u32 s55, s55, s53
        s_lshl_b32 s55, s55, 10
        s_waitcnt lgkmcnt({6 - 2*c})
        buffer_store_dwordx4 {Q(FR + 4*c)}, v9, s[{dsrd}:{dsrd+3}], s55 offen {SC}
        """)

def slab_addr(a, stride):
    a(f"""
    v_lshrrev_b32 v7, 3, v1
    v_mul_u32_u24 v7, {stride}, v7
    v_and_b32 v8, 7, v1
    v_lshl_add_u32 v7, v8, 4, v7
    v_lshrrev_b32 v8, 2, v1
    v_lshlrev_b32 v8, 7, v8
    v_and_b32 v9, 3, v1
    v_lshl_add_u32 v8, v9, 3, v8
    s_mul_i32 s56, s8, 12288
    v_add_u32 v8, s56, v8
    v_lshlrev_b32 v9, 4, v1
    """)

def gen_k1(a):
    NG0 = OPT.get('ng0', 3)
    a(f"""
    s_lshl_b32 s9, s8, 2
    s_add_u32 s9, s9, {FLAG0}
    v_mov_b32 v2, s9
    v_mov_b32 v3, 0
    ds_write_b32 v2, v3
    ds_write_b32 v2, v3 offset:32
    s_sub_u32 s9, s7, 8
    s_cmp_ge_u32 s9, 4
    s_cbranch_scc1 K1_NOPF
    s_cmp_eq_u32 s2, 95
    s_cbranch_scc1 K1_INIT
    s_getpc_b64 s[10:11]
K1_PC:
    v_lshlrev_b32 v2, 7, v0
    v_min_u32 v2, CODE_END-K1_PC-4, v2
    global_load_dword v255, v2, s[10:11]
    s_branch K1_NOPF
K1_INIT:
    v_lshlrev_b32 v2, 4, v0
    v_add_u32 v2, {WS_STAT1}, v2
    v_mov_b32 v4, 0
    v_mov_b32 v5, 0
    v_mov_b32 v6, 0
    v_mov_b32 v7, 0
    s_waitcnt lgkmcnt(0)
    global_store_dwordx4 v2, v[4:7], s[42:43] sc1
    v_add_u32 v2, 0x2000, v2
    global_store_dwordx4 v2, v[4:7], s[42:43] sc1
    v_add_u32 v2, 0x2000, v2
    global_store_dwordx4 v2, v[4:7], s[42:43] sc1
    v_add_u32 v2, 0x2000, v2
    global_store_dwordx4 v2, v[4:7], s[42:43] sc1
    v_add_u32 v2, 0x2000, v2
    global_store_dwordx4 v2, v[4:7], s[42:43] sc1
    v_add_u32 v2, 0x2000, v2
    global_store_dwordx4 v2, v[4:7], s[42:43] sc1
    s_waitcnt vmcnt(0)
    s_barrier
    s_cmp_lg_u32 s8, 0
    s_cbranch_scc1 K1_NOPF
    v_mov_b32 v5, 1
    s_mov_b64 exec, 1
    global_store_dword v4, v5, s[40:41] sc1
    s_mov_b64 exec, -1
K1_NOPF:
    s_waitcnt lgkmcnt(0)
    s_cmp_lt_u32 s7, 12
    s_cbranch_scc1 K1_HELPER
    s_mul_i32 s9, s6, 20
    s_add_u32 s9, s9, s7
    s_sub_u32 s9, s9, 12
    s_lshl_b32 s10, s9, 2
    s_add_u32 s10, s10, s3
    s_mul_i32 s11, s10, 384
    v_lshl_add_u32 v14, v1, 2, s11
    s_add_u32 s11, s11, 256
    v_lshl_add_u32 v15, v1, 1, s11
    s_lshl_b32 s12, s10, 1
    s_and_b32 s12, s12, -4
    s_load_dword s74, s[26:27], s12
    s_load_dword s58, s[28:29], s12
    global_load_dword v20, v14, s[22:23] {OPT.get('nt','nt')}
    global_load_ushort v21, v15, s[22:23] {OPT.get('nt','nt')}
    global_load_dword v22, v14, s[24:25] {OPT.get('nt','nt')}
    global_load_ushort v23, v15, s[24:25] {OPT.get('nt','nt')}
    s_mul_i32 s59, s3, {BS_STRIDE}
    s_add_u32 s59, s59, {BS0}
    v_and_b32 v10, 15, v1
    v_lshrrev_b32 v11, 4, v1
    s_cmp_lt_u32 s8, 4
    s_cbranch_scc1 K1_AW
    """)
    XG = 160
    a(f"""
    global_load_ushort v16, v15, s[18:19] {OPT.get('nt','nt')}
    global_load_ushort v18, v15, s[20:21] {OPT.get('nt','nt')}
    s_lshl_b32 s12, s46, 7
    s_lshl_b32 s13, s3, 5
    s_add_u32 s12, s12, s13
    v_and_b32 v126, 15, v1
    v_lshl_add_u32 v126, v126, 1, s12
    global_load_ushort v126, v126, s[36:37]
    s_barrier
    v_subrev_u32 v2, 256, v0
    v_mul_u32_u24 v3, 10240, v2
    s_lshl_b32 s11, s9, 3
    v_add_u32 v3, s11, v3
    v_add_u32 v5, 5120, v3
    """)
    gath = [f"global_load_dwordx2 {P(XG + 2*i)}, v{(3, 5)[i >> 2]}, s[16:17] offset:{1280*(i & 3)}" for i in range(8)]
    NGE = OPT.get("nge", 1)
    for i in range(NGE): a(gath.pop(0))
    a("s_branch K1_BW\nK1_AW:")
    a(f"""
    global_load_dword v16, v14, s[18:19] {OPT.get('nt','nt')}
    global_load_dword v18, v14, s[20:21] {OPT.get('nt','nt')}
    s_sub_u32 s48, s7, 12
    s_lshl_b32 s48, s48, 7
    v_lshrrev_b32 v2, 1, v0
    v_add_u32 v2, s48, v2
    v_min_u32 v2, 0x7ff, v2
    v_mul_u32_u24 v2, 1280, v2
    v_and_b32 v3, 1, v0
    v_lshl_add_u32 v2, v3, 7, v2
    s_mul_i32 s48, s6, 160
    s_and_b32 s48, s48, -128
    v_add_u32 v2, s48, v2
    s_barrier
    {'global_load_dword v255, v2, s[16:17] ' + OPT.get('ntx','') if OPT.get('xt', 1) else 'global_load_dword v255, v14, s[18:19]'}
    s_mul_i32 s61, s3, {KC_STRIDE}
    s_add_u32 s61, s61, {KC0 + 96}
    s_mul_i32 s62, s3, {U_STRIDE}
    s_add_u32 s62, s62, {U0}
    s_lshl_b32 s63, s3, 12
    s_add_u32 s63, s63, {X0}
    s_mul_i32 s60, s3, {AS_STRIDE}
    s_add_u32 s60, s60, {AS0}
    v_lshl_add_u32 v2, v1, 3, s60
    v_mul_u32_u24 v4, 528, v10
    v_lshl_add_u32 v4, v11, 4, v4
    v_add_u32 v4, s60, v4
    s_mul_i32 s60, s3, {KW_STRIDE}
    v_mov_b32 v12, 0
    v_mov_b32 v13, 0
    v_mov_b32 v14, 0
    v_mov_b32 v15, 0
    v_lshl_add_u32 v5, v1, 4, s60
    ds_write_b128 v5, v[12:15]
    ds_write_b128 v5, v[12:15] offset:{2*TB[0]}
    ds_write_b128 v5, v[12:15] offset:{2*TB[0] + CP}
    ds_write_b128 v5, v[12:15] offset:{2*TB[0] + 2*CP}
    ds_write_b128 v5, v[12:15] offset:{2*TB[0] + 3*CP}
    v_lshl_add_u32 v5, v1, 3, s62
    ds_write_b64 v5, v[12:13]
    s_sub_u32 s48, s61, 96
    v_lshl_add_u32 v5, v1, 2, s48
    ds_write_b32 v5, v12
    v_max_u32 v12, 1, v11
    v_sub_u32 v12, 6, v12
    v_lshlrev_b32 v5, v12, v10
    v_lshlrev_b32 v13, 4, v11
    v_lshlrev_b32 v6, 9, v11
    v_cmp_gt_u32 vcc, 2, v11
    v_cndmask_b32 v13, v6, v13, vcc
    v_add3_u32 v5, v5, v13, s61
    v_mov_b32 v13, 0x100
    v_cmp_eq_u32 vcc, 3, v11
    v_cndmask_b32 v13, 8, v13, vcc
    v_lshlrev_b32 v12, v12, 16
    v_add_u32 v7, v5, v12
    v_add_u32 v8, v7, v13
    v_lshl_add_u32 v9, v10, 2, v6
    v_add_u32 v6, v5, v13
    s_add_u32 s48, s61, 2048
    v_add_u32 v9, s48, v9
    """)
    VA, VB, VX, VO, VT, VU, BAND = 200, 201, 202, 203, 224, 225, 212
    a(f"""
    v_add_u32 v12, 1, v10
    v_and_b32 v12, 3, v12
    v_mul_u32_u24 v13, {CP + 2}, v12
    v_lshlrev_b32 v12, 3, v11
    v_sub_u32 v12, v12, v10
    v_lshl_add_u32 v13, v12, 1, v13
    s_add_u32 s48, s60, 30
    v_add_u32 v{VA}, s48, v13
    v_lshlrev_b32 v13, 3, v11
    v_sub_u32 v{VT}, v{VA}, v13
    v_sub_u32 v199, 48, v12
    v_lshlrev_b32 v12, 5, v10
    v_lshl_add_u32 v12, v11, 4, v12
    s_add_u32 s48, s62, 32
    v_add_u32 v{VB}, s48, v12
    v_lshlrev_b32 v12, 2, v10
    v_add_u32 v12, v12, v11
    v_lshl_add_u32 v{VX}, v12, 3, s63
    s_add_u32 s48, s62, 512
    v_lshl_add_u32 v{VU}, v12, 3, s48
    v_and_b32 v12, 1, v11
    v_lshrrev_b32 v13, 2, v10
    v_lshl_add_u32 v12, v12, 2, v13
    v_mul_u32_u24 v12, 81920, v12
    v_and_b32 v13, 3, v10
    v_lshl_add_u32 v12, v13, 5, v12
    v_lshrrev_b32 v13, 1, v11
    v_lshl_add_u32 v12, v13, 4, v12
    s_lshl_b32 s48, s10, 7
    v_add_u32 v{VO}, s48, v12
    s_sub_u32 s48, s61, 96
    v_lshl_add_u32 v204, v1, 5, s48
    v_cmp_eq_u32 vcc, 34, v1
    s_add_u32 s48, s61, 1024
    v_lshl_add_u32 v206, v1, 3, s48
    v_cndmask_b32 v205, 0, 4, vcc
    v_sub_u32 v205, v204, v205
    v_cmp_eq_u32 vcc, 63, v1
    v_lshlrev_b32 v208, 4, v1
    v_add_u32 v211, s59, v208
    s_add_u32 s48, s60, 1072
    v_cndmask_b32 v207, 0, 4, vcc
    v_sub_u32 v207, v206, v207
    v_sub_u32 v208, s48, v208
    v_lshlrev_b32 v209, 3, v1
    s_add_u32 s48, s60, 1592
    v_sub_u32 v209, s48, v209
    v_lshlrev_b32 v210, 1, v1
    s_add_u32 s48, s60, {126 + CP + 2}
    v_sub_u32 v210, s48, v210
    v_and_b32 v12, 1, v1
    v_mul_u32_u24 v12, {CP + 2}, v12
    v_sub_u32 v210, v210, v12
    s_lshl_b32 s48, s3, 2
    s_add_u32 s48, s48, {FLAG0}
    v_mov_b32 v3, s48
    """)
    def band():
        a("v_mov_b32 v29, 0\nv_mov_b32 v30, 0x3c00")
        for w, (lo, hi) in enumerate(((0, 4), (5, 11), (12, 15))):
            a(f"v_subrev_u32 v25, {hi}, v199\nv_mov_b32 v28, {(1 << (hi - lo + 1)) - 1}\nv_lshlrev_b64 v[26:27], v25, v[28:29]")
            for d in range(4):
                a(f"v_bfe_u32 v25, v27, {2*d}, 2\nv_lshl_or_b32 v25, v25, 15, v25\nv_and_b32 v25, 0x10001, v25\nv_mul_u32_u24 v{BAND + 4*w + d}, v25, v30")
    band()
    stamp(a, 1, "kg")
    dt_code(a)
    a("s_lshl_b32 s57, s58, 16\ns_and_b32 s58, s58, 0xffff0000\ns_bitcmp1_b32 s10, 0\ns_cselect_b32 s58, s58, s57")
    a("s_waitcnt vmcnt(1)")
    stamp(a, 1); stamp(a, 2, "kg")
    padto(a, "pk", "K")
    def unpackA(AR, CUR):
        for dst, raw in ((AR, 16), (lambda s: AR(s) + 1, 18), (CUR, 20), (lambda s: CUR(s) + 1, 22)):
            a(f"v_lshlrev_b32 v{dst(0)}, 16, v{raw}")
            a(f"v_and_b32 v{dst(1)}, 0xffff0000, v{raw}")
        a("v_lshlrev_b32 v21, 16, v21\nv_lshlrev_b32 v23, 16, v23")
    ACC = 68
    def midA(j):
        if j == 12: a("ds_read_b32 v17, v3")
        if j == 14:
            a("""
            s_waitcnt lgkmcnt(2)
K1_PW:
            v_readfirstlane_b32 s50, v17
            s_cmp_lg_u32 s50, 0
            s_cbranch_scc1 K1_PR
            ds_read_b32 v17, v3
            s_waitcnt lgkmcnt(0)
            s_branch K1_PW
K1_PR:
            """)
            for k in range(4): a(f"ds_read_b128 {Q((180, 184, ACC + 8, ACC + 12)[k])}, v211 offset:{1024*k}")
        if j in (16, 17):
            for r in range(4*(j - 16), 4*(j - 16) + 4): a(f"v_add_f32 v{ACC + r}, v{ACC + r}, v{180 + r}")
        if j == 18: a(f"ds_write_b64 v5, {P(ACC)}"); return 1
        if j == 19: a(f"ds_write_b64 v6, {P(ACC+2)}"); return 1
        if j == 20: a(f"ds_write2_b32 v9, v{ACC+4}, v{ACC+5} offset0:0 offset1:32"); return 1
        if j == 21: a(f"ds_write2_b32 v9, v{ACC+6}, v{ACC+7} offset0:64 offset1:96"); return 1
        if j == 22: a("v_mul_f32 v15, s48, v12\nv_add_f32 v15, v15, v15")
        return 0
    if OPT.get("krep"): a("s_mov_b32 s73, 0\nKA_REP:")
    kgen(a, 2, 528, "v2", "v4", [24, 44], [64, 66], ACC, 84, 148, unpackA,
         lambda CUR: [CUR(0), CUR(0)+1, CUR(1), CUR(1)+1, 21, 23], midA)
    if OPT.get("krep"):
        a("s_cmp_lg_u32 s73, 0\ns_cbranch_scc1 KA_DN"); stamp(a, 8); a("s_mov_b32 s73, 1\ns_nop 7\ns_barrier\ns_branch KA_REP\nKA_DN:"); stamp(a, 9)
    stamp(a, 3, "kg")
    a(f"""
    ds_write_b64 v7, {P(ACC+8)}
    ds_write_b64 v8, {P(ACC+10)}
    ds_write2_b32 v9, v{ACC+12}, v{ACC+13} offset0:16 offset1:48
    ds_write2_b32 v9, v{ACC+14}, v{ACC+15} offset0:80 offset1:112
    ds_read_b64 v[44:45], v206 offset:512
    ds_read_b32 v46, v206 offset:520
    ds_read_b64 v[48:49], v206
    ds_read_b32 v50, v206 offset:8
    ds_read_b32 v51, v207 offset:12
    ds_read_b128 v[24:27], v204
    ds_read_b128 v[28:31], v204 offset:16
    ds_read_b32 v32, v204 offset:32
    ds_read2_b32 v[34:35], v205 offset0:9 offset1:10
    ds_read2_b64 v[36:39], v206 offset0:127 offset1:128
    ds_read_b32 v42, v206 offset:1032
    """)
    def emit_region(e, n, addr, off0, regs):
        cur = [None] * (n // 2)
        for sg in range(4):
            for d in range(n // 2):
                want = (e[sg + n - 1 - 2 * d], e[sg + n - 2 - 2 * d])
                if cur[d] != want:
                    a(f"v_cvt_pk_f16_f32 v{regs + d}, v{want[0]}, v{want[1]}")
                    cur[d] = want
            if n == 4:
                a(f"ds_write_b64 {addr}, {P(regs)} offset:{off0 + CP*sg}")
            else:
                for h in range(n // 8):
                    a(f"ds_write_b128 {addr}, {Q(regs + 4*h)} offset:{off0 + CP*sg + 16*h}")
            if n <= 8 and len(set(e)) > 4:
                regs += n // 2; cur = [None] * (n // 2)
    a("s_waitcnt lgkmcnt(9)\nv_mov_b32 v47, v46\nv_writelane_b32 v47, 0, 63")
    emit_region([44]*3 + [45]*3 + [46]*2 + [47]*3, 8, "v208", 0, 92)
    a("s_waitcnt lgkmcnt(10)")
    emit_region([48, 48, 49, 50, 50, 50, 51], 4, "v209", 0, 96)
    a("s_waitcnt lgkmcnt(8)\ns_mov_b32 exec_hi, 7")
    emit_region([24, 25, 26, 27, 28, 29, 30, 31, 32, 34, 35], 8, "v208", 1072, 100)
    a("s_mov_b64 exec, -1")
    a("""
    v_mov_b32 v40, v38
    v_writelane_b32 v36, 0, 0
    v_writelane_b32 v37, 0, 0
    v_writelane_b32 v40, 0, 0
    v_cvt_pk_f16_f32 v226, v38, v36
    v_cvt_pk_f16_f32 v227, v39, v37
    v_cvt_pk_f16_f32 v211, v42, v40
    """)
    tw = [("W", f"ds_write_b32 v210, v{(226, 227, 211)[w]} offset:{2*(CP + 2)*sg + 2*TB[w]}") for w in range(3) for sg in range(2)]
    for t_ in tw: a(t_[1])
    stamp(a, 2); stamp(a, 5, "kg")
    CA = 24; XR = 88; SR = 152; HH = 228; HB = 152
    AA = lambda q, s: (56 + 16*(s & 1) + 4*q) if q < 4 else 252
    BB = lambda d, s: 88 + 32*(s & 1) + 4*d
    lg = Cnt(a, "lgkmcnt", 15)
    def rdA(q, s, h): return (("A", q, s), f"ds_read_b64 {P(AA(q, s) + 2*h)}, v{VA} offset:{64*(32 - 8*q - s) + 8*h}")
    def rdB(d, s): return (("B", d, s), f"ds_read_b128 {Q(BB(d, s))}, v{VB} offset:{512*d + 64*(7 - s)}")
    UD = lambda c: 152 + 4*c
    XF32 = lambda c: (184 + 4*c) if c < 4 else (228 + 4*(c - 4))
    def epi_pre(c):
        u, x = UD(c), XF32(c)
        r = [(("U", c), f"ds_read_b64 {P(u + 2)}, v{VU} offset:{512*c}"), (("X", c), f"ds_read_b64 {P(x + 2)}, v{VX} offset:{512*c}")]
        v = [("X", f"v_lshlrev_b32 v{x}, 16, v{x+2}\nv_and_b32 v{x+1}, 0xffff0000, v{x+2}"),
             ("X", f"v_lshlrev_b32 v{x+2}, 16, v{x+3}\nv_and_b32 v{x+3}, 0xffff0000, v{x+3}"),
             ("X", f"v_fma_mix_f32 v{x}, v{u+2}, s58, v{x} op_sel:[0,0,0] op_sel_hi:[1,0,0]\nv_fma_mix_f32 v{x+1}, v{u+2}, s58, v{x+1} op_sel:[1,0,0] op_sel_hi:[1,0,0]"),
             ("X", f"v_fma_mix_f32 v{x+2}, v{u+3}, s58, v{x+2} op_sel:[0,0,0] op_sel_hi:[1,0,0]\nv_fma_mix_f32 v{x+3}, v{u+3}, s58, v{x+3} op_sel:[1,0,0] op_sel_hi:[1,0,0]")]
        return r, [(None, t, (k, c)) for k, t in v]
    def rdT(w, e): return (("T", w), f"ds_read_b64 {P(HB + 10*w + 2*(3 - e))}, v{VT} offset:{2*TB[w] + 96 - 32*e}")
    def emit(r):
        if len(r) > 2: lg.wait({r[2]})
        a(r[1])
        if r[0] is not None: lg.issue(r[0])
    a("s_waitcnt vmcnt(0)\ns_setprio " + str(OPT.get("cprio", 2)))
    for q in range(4, -1, -1):
        emit(rdA(q, 0, 0)); emit(rdA(q, 0, 1))
    padto(a, "p0", "Z")
    a("s_barrier")
    stamp(a, 3)
    for d in range(4): emit(rdB(d, 0))
    fifo = [rdB(d, 0) for d in range(4, 8)]
    touched = set()
    def mm(c, ra, rb, tags):
        assert not any(t[0] in tags for t in fifo), tags
        lg.wait(tags)
        cin = Q(c) if c in touched else "0"
        touched.add(c)
        a(f"v_mfma_f32_16x16x32_f16 {Q(c)}, {Q(ra)}, {Q(rb)}, {cin}")
        if fifo: emit(fifo.pop(0))
    look = lambda n: [rdA(3, n, 0), rdA(3, n, 1)] + [rdB(d, n) for d in range(5)] + [rdA(2, n, 0), rdA(2, n, 1), rdB(5, n), rdA(1, n, 0), rdA(1, n, 1), rdB(6, n), rdA(0, n, 0), rdA(0, n, 1), rdB(7, n)]
    fifo += look(1)
    for x in range(4):
        for w in range(3): mm(SR + 16*w + 4*x, BB(x, 0), BAND + 4*w, {("B", x, 0)})
    for d in range(4): mm(CA + 4*(4 + d), AA(4, 0), BB(d, 0), {("A", 4, 0), ("B", d, 0)})
    for s in range(8):
        stamp(a, s + 1, "bs")
        if OPT.get("mw", 1): lg.wait({t[0] for t in look(s)})
        if 0 < s < 7: fifo[0:0] = look(s + 1)
        if s == 0:
            fifo += [(None, f"v_cvt_pk_f16_f32 v{HH + 8*w + 2*x}, v{SR + 16*w + 4*x}, v{SR + 16*w + 4*x + 1}\nv_cvt_pk_f16_f32 v{HH + 8*w + 2*x + 1}, v{SR + 16*w + 4*x + 2}, v{SR + 16*w + 4*x + 3}") for w in range(3) for x in range(4)]
            fifo += [rdT(w, e) for w in range(3) for e in range(4)] + [(None, f"v_mov_b32 v{HB + 10*w + 8}, 0\nv_mov_b32 v{HB + 10*w + 9}, 0") for w in range(3)]
        if s == 4:
            pr = [epi_pre(c) for c in range(8)]
            for c in range(8): fifo += pr[c][0]
            for c in range(8): fifo += pr[c][1]
        for q in range(3, -1, -1):
            for d in range(0, 8 - q):
                mm(CA + 4*(q + d), AA(q, s), BB(d, s), {("A", q, s), ("B", d, s)})
        if s == 3:
            assert not fifo
            for w in range(3):
                for cc in range(4):
                    for kb in range(cc // 2 + 1):
                        e = cc - 2*kb
                        mm(CA + 4*(4 + cc), HH + 8*w + 4*kb, HB + 10*w + 2*(3 - e), {("T", w)})
    stamp(a, 1, "cv"); stamp(a, 9, "bs")
    a("v_mov_b32 v14, v15")
    while fifo: emit(fifo.pop(0))
    for c in range(8):
        acc = CA + 4*c
        for h in (0, 2): a(f"v_pk_fma_f32 {P(acc+h)}, {P(acc+h)}, v[14:15], {P(XF32(c)+h)}")
        o = 56 + 2*c
        a(f"v_cvt_pk_bf16_f32 v{o}, v{acc}, v{acc+1}")
        a(f"v_cvt_pk_bf16_f32 v{o+1}, v{acc+2}, v{acc+3}")
        if c & 1:
            a(f"v_permlane16_swap_b32 v{o-2}, v{o}\nv_permlane16_swap_b32 v{o-1}, v{o+1}")
            a(f"global_store_dwordx4 v{VO}, {Q(o-2)}, s[42:43] {SC}")
            if c < 7: a(f"v_add_u32 v{VO}, {8*81920}, v{VO}")
    a("s_setprio 0")
    stamp(a, 3, "cv")
    wsetup(a, 112, WST, 16384)
    a("s_barrier")
    for u in range(4): wread(a, 112, u, u)
    a("s_branch PH3X")

    XG = 160
    a("K1_BW:")
    a(f"""
    s_mov_b32 s60, s59
    s_sub_u32 m0, s60, 32768
    v_mul_u32_u24 v4, 272, v10
    v_lshl_add_u32 v4, v11, 4, v4
    v_add_u32 v4, s60, v4
    v_lshl_add_u32 v9, v1, 4, s60
    v_lshlrev_b32 v6, 5, v2
    v_add_u32 v7, {WS_STAT1}, v6
    v_lshlrev_b32 v8, 4, v2
    v_add_u32 v6, {X0}, v8
    v_add_u32 v8, {U0 + 512}, v8
    """)
    wsetup(a, 112, WST, 16384)
    a(f"""
    v_mov_b32 v119, 0
    """)
    for i in range(NGE, NG0): a(gath.pop(0))
    gath += [""] * OPT.get('gz', 0) + ["global_load_dword v118, v119, s[40:41] sc1"]
    a(f"s_setprio {OPT.get('bp', 3)}")
    dt_code(a)
    a(f"s_waitcnt vmcnt({NG0})")
    stamp(a, 1, "kg")
    padto(a, "pk", "L")
    def unpackB(AR, CUR):
        for dst, raw in ((AR(0), 16), (AR(0) + 1, 18), (CUR(0), 21), (CUR(0) + 1, 23), (17, 20), (19, 22)):
            a(f"v_lshlrev_b32 v{dst}, 16, v{raw}")
    ACC = 48
    if OPT.get("krep"): stamp(a, 7); a("s_mov_b32 s73, 0\nKB_REP:")
    kgen(a, 1, 272, None, "v4", [24], [44, 45], ACC, 64, 96, unpackB, lambda CUR: [CUR(0), CUR(0)+1, 17, 19, 20, 22], fill=gath)
    if OPT.get("krep"):
        a("s_cmp_lg_u32 s73, 0\ns_cbranch_scc1 KB_DN"); stamp(a, 8); a("s_mov_b32 s73, 1\ns_nop 7\ns_barrier\ns_branch KB_REP\nKB_DN:"); stamp(a, 9)
    for k in range(4): a(f"ds_write_b128 v9, {Q(ACC + 4*k)} offset:{1024*k}")
    a(f"""
    s_lshl_b32 s48, s3, 2
    s_add_u32 s48, s48, {FLAG0}
    v_mov_b32 v3, s48
    v_mov_b32 v5, 1
    ds_write_b32 v3, v5
    s_mov_b32 s64, 0x05040100
    s_mov_b32 s65, 0x07060302
    """)
    stamp(a, 1); stamp(a, 2, "kg")
    a(f"s_setprio {OPT.get('bp2', 3)}")
    assert len(gath) <= 1
    for g_ in gath: a(g_)
    a("s_waitcnt vmcnt(0)")
    stamp(a, 3, "kg")
    a("v_cmp_eq_u32 vcc, 0, v118\ns_cbranch_vccz K1BI_OK")
    wait_init(a, "K1B", 10)
    if OPT.get("st2"): stamp(a, 3)
    XF = lambda i, c: 64 + 4*i + c
    UF = XF
    MR = lambda i: 40 + 2*i
    ldst = f"global_load_dwordx4 v[32:35], v7, s[42:43] sc1\nglobal_load_dwordx4 v[36:39], v7, s[42:43] offset:16 sc1"
    a(ldst)
    for i in range(8):
        for h in range(2):
            a(f"v_lshlrev_b32 v{XF(i, 2*h)}, 16, v{XG + 2*i + h}")
            a(f"v_and_b32 v{XF(i, 2*h+1)}, 0xffff0000, v{XG + 2*i + h}")
    for c in range(4):
        for i in range(0, 8, 2):
            a(f"v_perm_b32 v{16 + 4*c + i//2}, v{XG + 2*i + 2 + (c >> 1)}, v{XG + 2*i + (c >> 1)}, s{64 + (c & 1)}")
        a(f"ds_write_b128 v6, {Q(16 + 4*c)} offset:{4096*c}")
    a(f"""
    s_mov_b32 s15, 0
K1_POLL:
    s_waitcnt vmcnt(0)
    v_min3_u32 v10, v32, v33, v34
    v_min3_u32 v11, v35, v36, v37
    v_min3_u32 v10, v10, v38, v39
    v_min_u32 v10, v10, v11
    v_cmp_eq_u32 vcc, 0, v10
    s_add_u32 s15, s15, 1
    s_cbranch_vccz K1_READY
    s_cmp_ge_u32 s15, {SPIN}
    s_cbranch_scc1 K1_READY
    s_sleep 4
    {ldst}
    s_branch K1_POLL
K1_READY:
    """)
    stamp(a, 2)
    for i in range(8):
        a(f"v_lshlrev_b32 v{MR(i)+1}, 16, v{32+i}")
        a(f"v_and_b32 v{MR(i)}, 0xffff0000, v{32+i}")
        a(f"v_rcp_f32 v{MR(i)+1}, v{MR(i)+1}")
    for i in range(8): a(f"v_mul_f32 v{MR(i)}, v{MR(i)}, -v{MR(i)+1}")
    for i in range(8):
        for h in range(2):
            a(f"v_pk_fma_f32 {P(UF(i, 2*h))}, {P(XF(i, 2*h))}, {P(MR(i))}, {P(MR(i))} op_sel:[0,1,0] op_sel_hi:[1,1,0]")
    for c in range(4):
        for i in range(0, 8, 2):
            a(f"v_cvt_pk_f16_f32 v{16 + 4*c + i//2}, v{UF(i,c)}, v{UF(i+1,c)}")
        a(f"ds_write_b128 v8, {Q(16 + 4*c)} offset:{U_STRIDE*c}")
    a("s_waitcnt lgkmcnt(0)")
    if not OPT.get("st2"): stamp(a, 3)
    stamp(a, 4, "kg")
    a("s_setprio 0\ns_barrier")
    for u in range(4): wdma(a, 112, u, u)
    for u in range(8):
        a(f"s_waitcnt vmcnt(12)")
        stamp(a, u + 1, "bs")
        wread(a, 112, u, u & 3)
        a("s_waitcnt lgkmcnt(0)")
        wdma(a, 112, u + 4 if u < 4 else u - 20, u & 3)
    a("s_cmp_lg_u32 s8, 4\ns_cbranch_scc1 K1V_OK")
    poll8(a, "K1V", C_WI, 4, 14, sleep=2)
    a("s_waitcnt vmcnt(0)")
    stamp(a, 9, "bs")
    a("s_barrier\ns_branch PH3Y")

    a(f"""
K1_HELPER:
    s_lshl_b32 s9, s7, 3
    s_add_u32 s9, s9, s6
    s_cmp_ge_u32 s7, 8
    s_cbranch_scc1 K1_H2
    v_lshrrev_b32 v2, 4, v0
    s_lshl_b32 s10, s9, 5
    v_add_u32 v3, s10, v2
    v_mul_u32_u24 v3, 1280, v3
    v_and_b32 v4, 15, v0
    v_lshl_add_u32 v3, v4, 4, v3
    """)
    for j in range(5): a(f"global_load_dwordx4 {Q(16 + 4*j)}, v3, s[16:17] offset:{256*j} {OPT.get('ntx','')}")
    a(f"""
    s_mov_b32 s11, 0x3f803f80
    v_lshlrev_b32 v2, 2, v2
    v_add_u32 v2, 0x18000, v2
    v_mov_b32 v10, 0
    v_mov_b32 v11, 0
    v_mov_b32 v12, 0
    v_mov_b32 v13, 0
    """)
    ET = OPT.get("et", 0)
    a(f"""
    s_lshl_b32 s12, s7, 17
    s_lshl_b32 s13, s4, 20
    s_add_u32 s12, s12, s13
    v_lshrrev_b32 v5, 4, v0
    v_lshlrev_b32 v5, 12, v5
    v_lshl_add_u32 v5, v4, 7, v5
    v_add_u32 v5, s12, v5
    """)
    if ET == 1: a("s_barrier\nglobal_load_dword v255, v5, s[34:35] offset:2048 nt")
    for j in range(5):
        a(f"s_waitcnt vmcnt({4 - j + (1 if ET == 1 else 0)})")
        if ET == 2 and j == 4: a("global_load_dword v255, v5, s[34:35] offset:2048 nt")
        for r in range(4):
            a(f"v_dot2_f32_bf16 v{10 + (r & 1)}, v{16 + 4*j + r}, s11, v{10 + (r & 1)}")
            a(f"v_dot2_f32_bf16 v{12 + (r & 1)}, v{16 + 4*j + r}, v{16 + 4*j + r}, v{12 + (r & 1)}")
    stamp(a, 1)
    a("v_add_f32 v10, v10, v11\nv_add_f32 v12, v12, v13")
    for sh in (8, 4, 2, 1):
        for r in (10, 12): a(f"v_add_f32_dpp v{r}, v{r}, v{r} row_ror:{sh} row_mask:0xf bank_mask:0xf")
    ln_finish(a, 10, 12, 640, 11, rcp=False)
    a(f"""
    v_cvt_pk_bf16_f32 v12, v12, v10
    ds_write_b32 v2, v12
    s_cmp_lg_u32 s8, 4
    s_cbranch_scc1 K1_NI
    """)
    wait_init(a, "K1H", 10)
    a(f"""
K1_NI:
    s_waitcnt lgkmcnt(0)
    s_barrier
    s_cmp_lg_u32 s8, 4
    s_cbranch_scc1 K1_WO
    v_lshlrev_b32 v2, 2, v1
    v_add_u32 v3, 0x18000, v2
    ds_read_b32 v12, v3
    s_lshl_b32 s12, s9, 7
    s_add_u32 s12, s12, {WS_STAT1}
    v_add_u32 v2, s12, v2
    s_waitcnt lgkmcnt(0)
    s_mov_b32 exec_hi, 0
    global_store_dword v2, v12, s[42:43] sc1
    s_mov_b32 exec_hi, -1
    """)
    stamp(a, 2)
    a(f"""
K1_WO:
    s_barrier
    v_mov_b32 v2, v5
    {"" if ET else "global_load_dword v255, v2, s[34:35] offset:2048 nt"}
    {"" if ET else "s_barrier"}
    v_and_b32 v3, 0xfffffdff, v2
    global_load_dword v255, v3, s[34:35] nt
    """)
    if OPT.get("qe", 1): a("s_barrier\nv_or_b32 v2, 0x200, v2\nglobal_load_dword v255, v2, s[34:35]\ns_waitcnt vmcnt(1)")
    else: a("s_waitcnt vmcnt(0)")
    stamp(a, 3)
    a(f"""
    s_barrier
    s_cmp_lt_u32 s8, 4
    s_cbranch_scc1 K1_HX
    s_branch K1_HW
K1_H2:
    s_sub_u32 s10, s9, 64
    s_lshl_b32 s14, s10, 13
    s_lshl_b32 s10, s10, 3
    s_add_u32 s10, s10, s8
    s_cmp_ge_u32 s10, 240
    s_cbranch_scc1 K1_H3
    s_mul_i32 s52, s10, 171
    s_lshr_b32 s52, s52, 11
    s_mul_i32 s60, s52, 12
    s_sub_u32 s60, s10, s60
    s_mul_i32 s12, s52, {32*3072}
    s_lshl_b32 s13, s60, 7
    s_add_u32 s12, s12, s13
    """)
    slab_addr(a, 3072)
    srd(a, 68, 32, 0, 640 * 3072)
    srd(a, 64, 42, WS_WI, 640 * 3072)
    for r in range(2):
        for e in range(4):
            a(f"s_add_u32 m0, s56, {4096*r + 1024*e}")
            a(f"s_add_u32 s13, s12, {1536*(1 - r) + 8*3072*e}")
            a(f"buffer_load_dwordx4 v7, s[68:71], s13 offen nt lds")
    a(f"""
    s_mul_i32 s61, s10, 205
    s_lshr_b32 s61, s61, 11
    s_mul_i32 s62, s61, 10
    s_sub_u32 s62, s10, s62
    s_mul_i32 s58, s61, {32*1280}
    s_lshl_b32 s15, s62, 7
    s_add_u32 s58, s58, s15
    s_lshl_b32 s62, s62, 2
    """)
    stamp(a, 1, "hi")
    a(f"""
    s_mov_b32 s11, 0x3f803f80
    s_mul_i32 s12, s60, {16*320}
    s_lshl_b32 s13, s52, 4
    s_add_u32 s12, s12, s13
    s_add_u32 s12, s12, {WS_CSUM}
    v_lshrrev_b32 v2, 2, v1
    v_mul_u32_u24 v2, 320, v2
    v_and_b32 v3, 3, v1
    v_lshl_add_u32 v2, v3, 2, v2
    v_add_u32 v2, s12, v2
    v_add_u32 v3, {192*320}, v2
    """)
    for r in range(2):
        a(f"s_waitcnt vmcnt({4 + r})")
        stamp(a, 2 + r, "hi")
        a(f"s_lshl_b32 s57, s60, 2\ns_add_u32 s57, s57, {48*(1 - r)}")
        slab(a, 4096*r, 16 + 16*r, 57, 43, 6, 20, 64)
        C = 48 + 4*r
        for k in range(4):
            for c in range(4):
                a(f"v_dot2_f32_bf16 v{C+c}, v{16 + 16*r + 4*c + k}, s11, " + ("0" if k == 0 else f"v{C+c}"))
        a(f"""
        v_permlane16_swap_b32 v{C}, v{C+1}
        v_permlane16_swap_b32 v{C+2}, v{C+3}
        v_add_f32 v{C}, v{C}, v{C+1}
        v_add_f32 v{C+2}, v{C+2}, v{C+3}
        v_permlane32_swap_b32 v{C}, v{C+2}
        v_add_f32 v{C}, v{C}, v{C+2}
        global_store_dword v{3 - r}, v{C}, s[42:43] {SC}
        """)
    a(f"""
K1_H3:
    s_add_u32 s14, s14, {WS_PST}
    v_lshl_add_u32 v2, v0, 4, s14
    v_mov_b32 v4, -1
    v_mov_b32 v5, -1
    v_mov_b32 v6, -1
    v_mov_b32 v7, -1
    global_store_dwordx4 v2, v[4:7], s[42:43] {SC}
    """)
    a(f"""
K1_PF:
    s_cmp_lg_u32 s8, 4
    s_cbranch_scc1 K1_PG
    """)
    wait_init(a, "K1P", 10)
    a(f"""
K1_PG:
    """)
    stamp(a, 6, "hi")
    a("s_waitcnt vmcnt(0)")
    stamp(a, 7, "hi")
    a(f"""
    s_barrier
    s_cmp_lg_u32 s8, 4
    s_cbranch_scc1 K1_NA
    s_lshl_b32 s12, s6, 7
    s_add_u32 s9, s12, {C_WI}
    """)
    arrive(a, 9, 10)
    stamp(a, 3)
    a("K1_NA:\ns_cmp_ge_u32 s10, 240\ns_cbranch_scc1 K1_NS")
    slab_addr(a, 1280)
    srd(a, 68, 38, 0, 768 * 1280)
    for e in range(4):
        a(f"s_add_u32 m0, s56, {8192 + 1024*e}")
        a(f"s_add_u32 s13, s58, {8*1280*e}")
        a(f"buffer_load_dwordx4 v7, s[68:71], s13 offen nt lds")
    srd(a, 64, 42, WS_WO, 768 * 1280)
    a("s_mov_b32 s52, s61\ns_waitcnt vmcnt(0)")
    slab(a, 8192, 16, 62, 52, 5, 24, 64)
    a("K1_NS:\ns_barrier\ns_cmp_lt_u32 s8, 4\ns_cbranch_scc1 K1_HX")
    a("K1_HW:")
    a("""    s_lshl_b32 s12, s46, 7
    s_lshl_b32 s13, s3, 5
    s_add_u32 s12, s12, s13
    v_and_b32 v126, 15, v1
    v_lshl_add_u32 v126, v126, 1, s12
    global_load_ushort v126, v126, s[36:37]
""")
    stamp(a, 1, "cv"); stamp(a, 8, "hi")
    if OPT.get("ep", 0):
        wsetup(a, 10, 32768, 16384)
        for u in range(4): wdma(a, 10, u, u)
        ring_setup(a)
        poll8(a, "K1W", C_WI, 4, 14, sleep=4)
        for u in range(4): wread(a, 10, u, u)
        for i in range(5): ring_dma(a, i)
        a("s_waitcnt lgkmcnt(0)")
        for u in range(4): wdma(a, 10, u + 4, u)
        for u in range(4):
            a(f"s_waitcnt vmcnt({12 - 4*u})")
            wread(a, 10, u + 4, u)
    else:
        wsetup(a, 10, WST, 16384)
        for u in range(4): wdma(a, 10, u, u)
        for u in range(8):
            a(f"s_waitcnt vmcnt({12 if u < 5 else 4*(7 - u)})")
            wread(a, 10, u, u & 3)
            if u < 4:
                a("s_waitcnt lgkmcnt(0)")
                wdma(a, 10, u + 4, u)
    stamp(a, 3, "cv"); stamp(a, 10, "hi"); stamp(a, 9, "bs")
    a("s_waitcnt lgkmcnt(0)\ns_barrier")
    stamp(a, 4)
    a(f"""
    s_cmp_lg_u32 s8, 4
    s_cbranch_scc1 PH3Y
    s_cmp_lt_u32 s7, 8
    s_cbranch_scc1 PH3Y
    s_lshl_b32 s12, s6, 7
    s_add_u32 s9, s12, {C_WO}
    """)
    arrive(a, 9, 14)
    a("s_branch PH3Y\nK1_HX:")
    if OPT.get("ep", 0):
        wsetup(a, 112, 0, 8192)
        wdma(a, 112, 0, 0); wdma(a, 112, 1, 1)
        for u in range(4):
            a(f"s_waitcnt vmcnt({4 if u < 3 else 0})")
            wread(a, 112, u, u & 1)
            if u < 2:
                a("s_waitcnt lgkmcnt(0)")
                wdma(a, 112, u + 2, u)
    else:
        wsetup(a, 112, WS2, 16384)
        for u in range(4): wdma(a, 112, u, u)
        for u in range(4):
            a(f"s_waitcnt vmcnt({12 - 4*u})")
            wread(a, 112, u, u)
    poll8(a, "K1X", C_WI, 4, 14, sleep=4)
    stamp(a, 4)
```

```python
import struct
WS_HT = 0
WS_STAT1 = 0x280000
WS_CNT = 0x282000
C_S1 = WS_CNT + 256*128
C_WI = WS_CNT + 8*128
C_WO = WS_CNT + 16*128
C_S2 = WS_CNT + 64*128
C_S3 = WS_CNT + 128*128
WS_CSUM = 0x2d0000
WS_PST = 0x290000
WS_Z2 = 0x300000
WS_P = 0x600000
WS_WI = 0x900000
WS_WO = WS_WI + 640*3072
WS_STAMP = 0x1000000
LDS_FLAG = 163840 - 64
SC = "sc1"
SPIN = "0x20000"
OPT = {}
def fhex(x): return "0x%08x" % struct.unpack("<I", struct.pack("<f", x))[0]
def P(r): return f"v[{r}:{r+1}]"
def Q(r): return f"v[{r}:{r+3}]"

class Cnt:
    def __init__(self, a, name, mx): self.a = a; self.name = name; self.mx = mx; self.q = []
    def issue(self, tag, n=1): self.q.extend([tag] * n)
    def wait(self, tags):
        last = max((i for i, t in enumerate(self.q) if t in tags), default=-1)
        if last < 0: return
        n = min(len(self.q) - 1 - last, self.mx)
        self.a(f"s_waitcnt {self.name}({n})")
        del self.q[:len(self.q) - n]
    def all(self):
        self.a(f"s_waitcnt {self.name}(0)"); self.q = []

def LG(): return OPT.get('lg', 3)
NSTAMP = 12
def stamp(a, k, grp="main"):
    if not OPT.get("stamp"): return
    if k not in (0, NSTAMP - 1) and OPT.get("sg", "main") != grp: return
    a(f"s_memrealtime s[{76+2*k}:{77+2*k}]")

def padto(a, key, tag):
    if not OPT.get(key): return
    a(f"""
PAD_{tag}:
    s_memrealtime s[100:101]
    s_waitcnt lgkmcnt(0)
    s_sub_u32 s100, s100, s76
    s_cmp_lt_u32 s100, {OPT[key]}
    s_cbranch_scc1 PAD_{tag}
    """)

def stamp_out(a, tag):
    if not OPT.get("stamp"): return
    a("s_waitcnt vmcnt(0)")
    stamp(a, NSTAMP - 1)
    a("s_waitcnt lgkmcnt(0)")
    for i in range(NSTAMP): a(f"v_mov_b32 v{4+i}, s{76+2*i}")
    if OPT.get("dbg"):
        if tag == OPT["dbg"]:
            for i in range(1, NSTAMP): a(f"v_subrev_u32 v{4+i}, s76, v{4+i}")
            a(f"""
            v_mov_b32 v2, 16
            s_cmp_lg_u32 s3, 0
            s_cbranch_scc1 ST_{tag}
            s_cmp_lg_u32 s2, 200
            s_cbranch_scc1 ST_{tag}
            s_mov_b64 exec, 1
            global_store_dwordx4 v2, v[4:7], s[40:41]
            global_store_dwordx4 v2, v[8:11], s[40:41] offset:16
            global_store_dwordx4 v2, v[12:15], s[40:41] offset:32
ST_{tag}:
            """)
        return
    a(f"""
    s_lshl_b32 s74, s2, 7
    s_lshl_b32 s5, s8, 4
    s_add_u32 s74, s74, s5
    s_add_u32 s74, s74, {WS_STAMP}
    v_mov_b32 v2, s74
    s_cmp_lg_u32 s3, 0
    s_cbranch_scc1 ST_{tag}
    s_mov_b64 exec, 1
    global_store_dwordx4 v2, v[4:7], s[42:43]
    global_store_dwordx4 v2, v[8:11], s[42:43] offset:16
    global_store_dwordx4 v2, v[12:15], s[42:43] offset:32
ST_{tag}:
    """)

def entry(a, name):
    a(f"{name}:")
    if OPT.get("diag"): a("s_memrealtime s[76:77]")
    if OPT.get("stamp"):
        for k in range(1, NSTAMP): a(f"s_mov_b32 s{76+2*k}, 0")
        stamp(a, 0)
    a(f"""
    s_cmp_ge_u32 s2, 256
    s_cbranch_scc1 K_END
    s_load_dwordx16 s[16:31], s[0:1], 0
    s_load_dwordx8 s[32:39], s[0:1], 64
    s_load_dwordx4 s[40:43], s[0:1], 104
    s_load_dwordx2 s[44:45], s[0:1], 96
    v_and_b32 v1, 63, v0
    v_lshrrev_b32 v2, 6, v0
    s_add_u32 s2, s2, {8*OPT.get('rot', 0)}
    s_and_b32 s2, s2, 255
    s_and_b32 s6, s2, 7
    s_lshr_b32 s7, s2, 3
    v_readfirstlane_b32 s8, v2
    s_and_b32 s4, s6, {(1 << LG()) - 1}
    s_lshl_b32 s46, s4, {5 - LG()}
    s_lshr_b32 s9, s7, {LG()}
    s_add_u32 s46, s46, s9
    s_lshr_b32 s47, s6, {LG()}
    s_lshl_b32 s47, s47, {LG()}
    s_and_b32 s9, s7, {(1 << LG()) - 1}
    s_add_u32 s47, s47, s9
    s_and_b32 s3, s8, 3
    """)

def srd(a, r, base, off, nbytes):
    if off:
        a(f"s_add_u32 s{r}, s{base}, {off}\ns_addc_u32 s{r+1}, s{base+1}, 0")
    else:
        a(f"s_mov_b32 s{r}, s{base}\ns_mov_b32 s{r+1}, s{base+1}")
    a(f"s_mov_b32 s{r+2}, {nbytes}\ns_mov_b32 s{r+3}, 0x20000")

def allred_g(a, regs, tmp):
    for swap in ("v_permlane32_swap_b32", "v_permlane16_swap_b32"):
        for k, r in enumerate(regs): a(f"v_mov_b32 v{tmp+k}, v{r}")
        for k, r in enumerate(regs): a(f"{swap} v{r}, v{tmp+k}")
        for k, r in enumerate(regs): a(f"v_add_f32 v{r}, v{r}, v{tmp+k}")

def ln_finish(a, s, q, n, t, rcp=True):
    a(f"v_mul_f32 v{s}, {fhex(1/n)}, v{s}")
    a(f"v_mul_f32 v{t}, v{s}, v{s}")
    a(f"v_mul_f32 v{q}, {fhex(1/n)}, v{q}")
    a(f"v_sub_f32 v{q}, v{q}, v{t}")
    a(f"v_max_f32 v{q}, 0, v{q}")
    a(f"v_cvt_pk_bf16_f32 v{q}, 0, v{q}")
    a(f"v_add_f32 v{q}, {fhex(1e-5)}, v{q}")
    a(f"v_cvt_pk_bf16_f32 v{q}, 0, v{q}")
    a(f"v_sqrt_f32 v{q}, v{q}")
    if rcp:
        a(f"v_cvt_pk_bf16_f32 v{s}, 0, v{s}")
        a(f"v_cvt_pk_bf16_f32 v{q}, 0, v{q}")
        a(f"v_rcp_f32 v{q}, v{q}")

def arrive(a, sreg, vt, inc=1):
    a(f"""
    v_mov_b32 v{vt}, s{sreg}
    v_mov_b32 v{vt+1}, {inc}
    s_mov_b64 exec, 1
    global_atomic_add v{vt}, v{vt+1}, s[42:43] sc1
    s_mov_b64 exec, -1
    """)

def arrive_last(a, tag, ldsaddr, sreg, vt, rep=False):
    a(f"""
    v_mov_b32 v{vt}, {ldsaddr}
    v_mov_b32 v{vt+1}, 1
    s_mov_b64 exec, 1
    ds_add_rtn_u32 v{vt+2}, v{vt}, v{vt+1}
    s_mov_b64 exec, {"0xff" if rep else "1"}
    v_lshl_add_u32 v{vt}, v1, 10, s{sreg}
    s_waitcnt lgkmcnt(0)
    v_readfirstlane_b32 s15, v{vt+2}
    s_cmp_lg_u32 s15, 3
    s_cbranch_scc1 {tag}_NL
    global_atomic_add v{vt}, v{vt+1}, s[42:43] sc1
{tag}_NL:
    s_mov_b64 exec, -1
    """)

def warm(a, sreg, vt, rep=False):
    a(f"""
    v_lshl_add_u32 v{vt}, v1, 10, s{sreg}
    v_mov_b32 v{vt+1}, 0
    s_mov_b64 exec, {"0xff" if rep else "1"}
    global_atomic_add v{vt}, v{vt+1}, s[42:43] sc1
    s_mov_b64 exec, -1
    """)

def poll(a, tag, vaddr, want, vt, base="s[42:43]", sleep=2):
    a(f"""
    s_mov_b32 s15, 0
{tag}_PL:
    global_load_dword v{vt}, v{vaddr}, {base} sc1
    s_waitcnt vmcnt(0)
    v_cmp_gt_u32 vcc, {want}, v{vt}
    s_add_u32 s15, s15, 1
    s_cbranch_vccz {tag}_OK
    {'s_sleep %d' % sleep if sleep else ''}
    s_cmp_lt_u32 s15, {SPIN}
    s_cbranch_scc1 {tag}_PL
{tag}_OK:
    """)

def poll8(a, tag, off_expr, want, vt, sleep=2, n=8):
    a(f"v_and_b32 v{vt}, {n-1}, v1\nv_lshlrev_b32 v{vt}, 7, v{vt}\nv_add_u32 v{vt}, {off_expr}, v{vt}")
    poll(a, tag, vt, want, vt + 1, sleep=sleep)

WF = lambda mt, ks: 128 + 64*mt + 4*ks
def wsetup(a, va, lds_base, per_wave):
    a(f"""
    s_lshl_b32 s73, s46, 1
    s_lshr_b32 s13, s3, 1
    s_add_u32 s73, s73, s13
    s_lshl_b32 s73, s73, 17
    s_lshr_b32 s13, s8, 2
    s_lshl_b32 s13, s13, 1
    s_and_b32 s9, s8, 1
    s_add_u32 s13, s13, s9
    s_lshl_b32 s13, s13, 10
    s_add_u32 s73, s73, s13
    s_lshl_b32 s9, s9, 16
    s_add_u32 s73, s73, s9
    s_xor_b32 s75, s73, 0x10000
    s_mul_i32 s72, s3, {per_wave}
    s_add_u32 s72, s72, {lds_base}
    v_lshrrev_b32 v{va}, 3, v1
    v_lshrrev_b32 v{va+1}, 4, v1
    v_and_b32 v{va+2}, 7, v1
    v_xor_b32 v{va+1}, v{va+1}, v{va+2}
    v_lshlrev_b32 v{va}, 12, v{va}
    v_lshl_add_u32 v{va}, v{va+1}, 4, v{va}
    v_xor_b32 v{va+1}, 64, v{va}
    v_add_u32 v{va+1}, {8*4096 - 1024}, v{va+1}
    v_and_b32 v{va+3}, 15, v1
    v_lshrrev_b32 v{va+2}, 1, v{va+3}
    v_lshlrev_b32 v{va+2}, 4, v{va+2}
    v_lshl_add_u32 v{va+2}, v{va+3}, 7, v{va+2}
    v_and_b32 v{va+3}, 48, v1
    v_xor_b32 v{va+2}, v{va+2}, v{va+3}
    v_add_u32 v{va+2}, s72, v{va+2}
    v_xor_b32 v{va+3}, 64, v{va+2}
    """)
    srd(a, 68, 34, 0, 2048 * 4096)

def wdma(a, va, u, slot):
    for mt in range(2):
        a(f"s_add_u32 m0, s72, {4096*slot + 2048*mt}")
        a(f"s_add_u32 s13, s{(73, 75)[mt]}, {128*u}")
        a(f"buffer_load_dwordx4 v{va}, s[68:71], s13 offen lds")
        a(f"buffer_load_dwordx4 v{va+1}, s[68:71], s13 offen offset:1024 lds")

def wread(a, va, u, slot):
    for ks in range(2):
        for mt in range(2):
            a(f"ds_read_b128 {Q(WF(mt, 2*u + ks))}, v{va+2+ks} offset:{4096*slot + 2048*mt}")

K3_NS = 5
K3_RING = 163328 - K3_NS * 12288
def ring_setup(a):
    a(f"""
    s_mul_i32 s59, s3, 3072
    s_mul_i32 s12, s47, {20*6144}
    s_add_u32 s12, s12, s59
    v_lshl_add_u32 v6, v1, 4, s12
    s_add_u32 s59, s59, {K3_RING}
    """)
    srd(a, 52, 42, WS_WI, 640 * 3072)
def ring_dma(a, i):
    a(f"s_add_u32 m0, s59, {12288*((i + 2) % K3_NS)}")
    a(f"s_mov_b32 s57, {12288*(i % 10) + (8*20*6144 if i < 10 else 0)}")
    for e in range(3):
        a(f"buffer_load_dwordx4 v6, s[52:55], s57 offen offset:{1024*e} {SC} lds")
```
